```python
import torch

def _softmax(x, axis=-1):
    return torch.softmax(x, dim=axis)
def _gelu(x):
    return torch.nn.functional.gelu(x, approximate="tanh")
def _silu(x):
    return torch.nn.functional.silu(x)
def _sigmoid(x):
    return torch.sigmoid(x)
def _layernorm(x, axis=-1, eps=1e-5):
    m = x.mean(dim=axis, keepdim=True)
    v = x.var(dim=axis, keepdim=True, unbiased=False)
    return (x - m) / torch.sqrt(v + eps)
def _scatter_add(tgt, idx, src, axis=0):
    return tgt.clone().index_add_(axis, idx, src)
def _segment_sum(src, seg, n):
    out = torch.zeros((n,) + src.shape[1:], dtype=src.dtype)
    return out.index_add_(0, seg, src)
def _pad(x, pw):
    flat = tuple(v for pair in reversed(pw) for v in pair)
    return torch.nn.functional.pad(x, flat)

kernel_name = 'interleave_layers__grouped_kv_mqa__glu_gated_bilinear__prompt'

def setup_inputs():

    _w = (lambda a: (lambda t: t.to(torch.bfloat16) if t.is_floating_point() else t)(torch.as_tensor(a)))
    def _A_setup():
        B, S, D, H = 1, 2048, 448, 16
        Dh = D // H
        return {
            "x": _w((lambda *s: torch.randn(*s, dtype=torch.bfloat16) * 0.05)(B, S, D)),
            "wq": _w((lambda *s: torch.randn(*s, dtype=torch.bfloat16) * 0.05)(D, H * Dh)),
            "wk": _w((lambda *s: torch.randn(*s, dtype=torch.bfloat16) * 0.05)(D, Dh)),
            "wv": _w((lambda *s: torch.randn(*s, dtype=torch.bfloat16) * 0.05)(D, Dh)),
            "wo": _w((lambda *s: torch.randn(*s, dtype=torch.bfloat16) * 0.05)(H * Dh, D)),
        }
    _A_in = _A_setup()

    def _B_setup():
        B, S, D, F = 1, 2048, 448, 1792
        return {
            "x": _w((lambda *s: torch.randn(*s, dtype=torch.bfloat16) * 0.05)(B, S, D)),
            "w_gate": _w((lambda *s: torch.randn(*s, dtype=torch.bfloat16) * 0.4)(D, F) * (D ** -0.5)),
            "w_up": _w((lambda *s: torch.randn(*s, dtype=torch.bfloat16) * 0.4)(D, F) * (D ** -0.5)),
            "w_down": _w((lambda *s: torch.randn(*s, dtype=torch.bfloat16) * 0.4)(F, D) * (F ** -0.5)),
        }
    _B_in = _B_setup()

    return {
        "A_x": _A_in["x"],
        "A_wq": _A_in["wq"],
        "A_wk": _A_in["wk"],
        "A_wv": _A_in["wv"],
        "A_wo": _A_in["wo"],
        "B_x": _B_in["x"],
        "B_w_gate": _B_in["w_gate"],
        "B_w_up": _B_in["w_up"],
        "B_w_down": _B_in["w_down"],
    }

def reference(A_x, A_wq, A_wk, A_wv, A_wo, B_x, B_w_gate, B_w_up, B_w_down):
    def _A_ref(x, wq, wk, wv, wo):
        B, S, D = x.shape
        H = 16
        Dh = D // H
        q = (lambda x, *d: x.permute(*d))((x @ wq).reshape(B, S, H, Dh), 0, 2, 1, 3)
        k = x @ wk
        v = x @ wv
        scores = torch.einsum("bhqd,bkd->bhqk", q, k) * (Dh ** -0.5)
        p = _softmax(scores, axis=-1)
        o = torch.einsum("bhqk,bkd->bhqd", p, v)
        return (lambda x, *d: x.permute(*d))(o, 0, 2, 1, 3).reshape(B, S, H * Dh) @ wo

    def _B_ref(x, w_gate, w_up, w_down):
        g = torch.einsum("bsd,df->bsf", x, w_gate)
        u = torch.einsum("bsd,df->bsf", x, w_up)
        h = g * u
        return torch.einsum("bsf,fd->bsd", h, w_down)

    x = A_x
    x = x + _A_ref(_layernorm(x, axis=-1), A_wq, A_wk, A_wv, A_wo)
    x = x + _B_ref(_layernorm(x, axis=-1), B_w_gate, B_w_up, B_w_down)
    x = x + _A_ref(_layernorm(x, axis=-1), A_wq, A_wk, A_wv, A_wo)
    x = x + _B_ref(_layernorm(x, axis=-1), B_w_gate, B_w_up, B_w_down)
    return x
```

```python
import re

TRANS = ("v_exp_f32", "v_log_f32", "v_rcp_f32", "v_rsq_f32", "v_sqrt_f32", "v_sin_f32", "v_cos_f32",
         "v_exp_f16", "v_rcp_iflag_f32")

_reg_re = re.compile(r"^(-?)(?:abs\()?([vas])(?:(\d+)|\[(\d+):(\d+)\])\)?$")


def parse_reg(tok):
    tok = tok.strip()
    if tok in ("vcc",):
        return [("s", "vcc_lo"), ("s", "vcc_hi")]
    if tok in ("vcc_lo", "vcc_hi", "m0", "exec_lo", "exec_hi"):
        return [("s", tok)]
    if tok == "exec":
        return [("s", "exec_lo"), ("s", "exec_hi")]
    m = _reg_re.match(tok)
    if not m:
        return []
    k = m.group(2)
    if m.group(3) is not None:
        return [(k, int(m.group(3)))]
    return [(k, i) for i in range(int(m.group(4)), int(m.group(5)) + 1)]


class Ins:
    __slots__ = ("text", "op", "ops", "mods", "cls", "dst", "src", "srcC", "srcAB", "passes", "label", "target", "nop")

    def __init__(self, text):
        self.text = text
        self.label = None
        self.target = None
        self.nop = 0
        self.srcC = []
        self.srcAB = []
        self.passes = 0
        t = text.split(";")[0].strip()
        if t.endswith(":"):
            self.label = t[:-1]
            self.op = "label"; self.cls = "label"; self.dst = []; self.src = []; self.ops = []; self.mods = ""
            return
        if t.startswith("."):
            self.op = "directive"; self.cls = "label"; self.dst = []; self.src = []; self.ops = []; self.mods = ""
            return
        sp = t.split(None, 1)
        op = sp[0]
        rest = sp[1] if len(sp) > 1 else ""
        parts = []
        depth = 0; cur = ""
        for ch in rest:
            if ch in "[(":
                depth += 1
            if ch in "])":
                depth -= 1
            if ch == "," and depth == 0:
                parts.append(cur.strip()); cur = ""
            else:
                cur += ch
        if cur.strip():
            parts.append(cur.strip())
        mods = ""
        if parts:
            last = parts[-1].split(None, 1)
            if len(last) > 1 and not op.startswith("s_waitcnt"):
                parts[-1] = last[0]; mods = last[1]
        self.op = op; self.ops = parts; self.mods = mods
        base = op
        for suf in ("_e32", "_e64", "_dpp", "_sdwa"):
            if base.endswith(suf):
                base = base[: -len(suf)]
        R = [parse_reg(p) for p in parts]
        dst = []; src = []
        if op.startswith("v_mfma"):
            self.cls = "mfma"
            dst = R[0]; self.srcAB = R[1] + R[2]; self.srcC = R[3]; src = R[1] + R[2] + R[3]
            self.passes = 8 if "32x32x16" in op else 4
        elif op.startswith("v_"):
            self.cls = "trans" if base in TRANS else "valu"
            if base.startswith("v_cmp"):
                dst = R[0]; src = sum(R[1:], [])
                if base.startswith("v_cmpx"):
                    dst = dst + parse_reg("exec")
            elif base in ("v_permlane32_swap_b32", "v_permlane16_swap_b32", "v_swap_b32"):
                dst = R[0] + R[1]; src = R[0] + R[1]
            elif base in ("v_fmac_f32", "v_dot2c_f32_bf16", "v_pk_fmac_f16", "v_writelane_b32"):
                dst = R[0]; src = sum(R, [])
            elif base in ("v_add_co_u32", "v_sub_co_u32", "v_addc_co_u32", "v_subb_co_u32", "v_subrev_co_u32", "v_div_scale_f32", "v_mad_u64_u32"):
                dst = R[0] + R[1]; src = sum(R[2:], [])
            elif base == "v_nop":
                pass
            else:
                dst = R[0]; src = sum(R[1:], [])
                if "UNUSED_PRESERVE" in mods or op.endswith("_dpp"):
                    src = src + R[0]
                if base == "v_cndmask_b32" and len(parts) == 3:
                    src = src + parse_reg("vcc")
        elif op.startswith("buffer_") or op.startswith("global_"):
            self.cls = "vmem"
            if op in ("buffer_wbl2", "buffer_inv"):
                pass
            elif op.startswith("buffer_load"):
                if re.search(r"\blds\b", mods):
                    src = sum(R, []) + parse_reg("m0")
                    self.cls = "vmem_lds"
                else:
                    dst = R[0]; src = sum(R[1:], [])
                    if "d16" in op:
                        src = src + R[0]
            elif op.startswith("buffer_store"):
                src = sum(R, []); self.cls = "vmem_st"
            elif op.startswith("buffer_atomic"):
                src = sum(R, [])
                if "sc0" in mods:
                    dst = R[0]
                else:
                    self.cls = "vmem_st"
            elif op.startswith("global_load_lds"):
                src = sum(R, []) + parse_reg("m0"); self.cls = "vmem_lds"
            elif op.startswith("global_load"):
                dst = R[0]; src = sum(R[1:], [])
            elif op.startswith("global_store"):
                src = sum(R, []); self.cls = "vmem_st"
            elif op.startswith("global_atomic"):
                if "sc0" in mods:
                    dst = R[0]; src = sum(R[1:], [])
                else:
                    src = sum(R, []); self.cls = "vmem_st"
            else:
                raise ValueError(op)
        elif op.startswith("ds_"):
            self.cls = "ds"
            if op.startswith("ds_read") or op.startswith("ds_bpermute") or op.startswith("ds_permute") or op.startswith("ds_swizzle"):
                dst = R[0]; src = sum(R[1:], [])
            else:
                src = sum(R, [])
        elif op.startswith("s_"):
            self.cls = "salu"
            if op.startswith("s_load") or op.startswith("s_buffer_load") or op in ("s_memtime", "s_memrealtime"):
                self.cls = "smem"; dst = R[0]; src = sum(R[1:], [])
            elif op == "s_nop":
                self.nop = int(parts[0], 0) + 1
            elif op.startswith("s_cbranch") or op == "s_branch":
                self.target = parts[0]
                if "vcc" in op: src = parse_reg("vcc")
                if "exec" in op: src = parse_reg("exec")
            elif op.startswith("s_cmp") or op.startswith("s_bitcmp"):
                src = sum(R, [])
            elif op in ("s_waitcnt", "s_barrier", "s_endpgm", "s_setprio", "s_sleep", "s_setreg_b32", "s_setreg_imm32_b32"):
                pass
            elif "saveexec" in op:
                dst = R[0] + parse_reg("exec"); src = sum(R[1:], []) + parse_reg("exec")
            else:
                dst = R[0]; src = sum(R[1:], [])
                if op in ("s_addk_i32", "s_mulk_i32"):
                    src = src + R[0]
        else:
            raise ValueError("unknown op " + text)
        self.dst = dst; self.src = src

    def ws(self):
        if self.cls == "label":
            return 0
        return self.nop if self.nop else 1


def is_valu(i):
    return i.cls in ("valu", "trans")


def required_gap(p, c):
    need = 0
    pd = set(p.dst); cs = set(c.src); cd = set(c.dst)
    if is_valu(p):
        vd = {r for r in pd if r[0] in "va"}
        sd = {r for r in pd if r[0] == "s"}
        if c.cls == "mfma" and vd & cs:
            need = max(need, 2)
        if p.op.startswith("v_dot"):
            if c.op == p.op:
                ab = set(parse_reg(c.ops[1]) + parse_reg(c.ops[2]))
                if vd & ab:
                    need = max(need, 3)
            elif vd & (cs | cd):
                need = max(need, 3)
        if p.cls == "trans" and is_valu(c) and c.cls != "trans" and vd & (cs | cd):
            need = max(need, 1)
        if p.cls == "trans" and c.cls == "trans" and vd & cs:
            need = max(need, 1)
        if p.cls == "trans" and c.cls in ("vmem", "vmem_st", "vmem_lds", "ds") and vd & cs:
            need = max(need, 1)
        if is_valu(c):
            if (c.op.startswith("v_readlane") or c.op.startswith("v_readfirstlane")) and vd & cs:
                need = max(need, 1)
            if c.op.startswith("v_permlane") and vd & cs:
                need = max(need, 2)
            if c.op.endswith("_dpp") and vd & cs:
                need = max(need, 2)
            if sd & cs:
                need = max(need, 4 if c.op.startswith(("v_readlane", "v_writelane")) else 2)
            if ("sdwa" in p.op or "op_sel" in p.mods) and vd & (cs | cd):
                need = max(need, 1)
            if any(r[1] in ("exec_lo", "exec_hi") for r in sd):
                if c.op.endswith("_dpp"): need = max(need, 5)
                if c.op.startswith(("v_readlane", "v_readfirstlane", "v_writelane", "v_permlane")): need = max(need, 4)
        if c.cls in ("vmem", "vmem_st", "vmem_lds") and sd & cs:
            need = max(need, 5)
        if c.cls == "mfma" and any(r[1] in ("exec_lo", "exec_hi") for r in sd):
            need = max(need, 4)
        if c.cls == "salu" and sd & cs:
            need = max(need, 1)
        if c.op.startswith("s_cbranch_vcc") and any(r[1] in ("vcc_lo", "vcc_hi") for r in sd):
            need = max(need, 5)
    if p.cls == "mfma":
        P = p.passes
        big = {8: 12, 4: 8}[P]
        ovl = {8: 10, 4: 6}[P]
        if c.cls == "mfma":
            if pd & set(c.srcAB):
                need = max(need, big)
            if pd & set(c.srcC):
                if not (p.dst == c.srcC and p.passes == c.passes):
                    need = max(need, ovl)
            elif pd & cd:
                need = max(need, ovl)
        elif is_valu(c):
            if pd & (cs | cd):
                need = max(need, big)
            if set(p.srcC) & cd:
                need = max(need, {8: 7, 4: 3}[P])
        elif c.cls in ("vmem", "vmem_st", "vmem_lds", "ds"):
            if pd & (cs | cd):
                need = max(need, big)
            if set(p.srcC) & cd:
                need = max(need, {8: 7, 4: 3}[P])
    if p.cls == "salu" and ("s", "m0") in pd and c.cls == "vmem_lds":
        need = max(need, 1)
    if p.cls == "vmem_st" and re.search(r"x[34]$", p.op):
        data = set(parse_reg(p.ops[0] if p.op.startswith("buffer") else p.ops[1]))
        if data & cd:
            need = max(need, 2 if is_valu(c) else 1)
    if p.cls == "ds" and p.op.startswith("ds_write") and ("b128" in p.op or "b96" in p.op):
        pass
    return need


MAXW = 20


def insert_nops(ins):
    out = []
    for c in ins:
        if c.cls != "label":
            dist = 0
            need_extra = 0
            for p in reversed(out):
                if dist >= MAXW:
                    break
                if p.cls == "label":
                    continue
                g = required_gap(p, c)
                if g > dist:
                    need_extra = max(need_extra, g - dist)
                dist += p.ws()
            while need_extra > 0:
                n = min(need_extra, 16)
                out.append(Ins(f"s_nop {n-1}"))
                need_extra -= n
        out.append(c)
    return out


def check_branch_hazards(ins):
    labels = {i.label: n for n, i in enumerate(ins) if i.label}
    errs = []
    for n, b in enumerate(ins):
        if b.target and b.target in labels:
            pre = [i for i in ins[max(0, n - 40): n + 1] if i.cls != "label"]
            t = labels[b.target]
            post = [i for i in ins[t: t + 40] if i.cls != "label"]
            seq = pre + post
            for ci in range(len(pre), len(seq)):
                dist = 0
                for pi in range(ci - 1, -1, -1):
                    if dist >= MAXW:
                        break
                    if pi < len(pre):
                        g = required_gap(seq[pi], seq[ci])
                        if g > dist:
                            errs.append(f"branch hazard: {seq[pi].text} -> {seq[ci].text} need {g} have {dist} via {b.text}")
                    dist += seq[pi].ws()
    return errs


def check_waitcnt(ins, name=""):
    labels = {i.label: n for n, i in enumerate(ins) if i.label}
    errs = []

    def sim(seq, vm, lg):
        for i in seq:
            if i.cls == "label":
                continue
            if i.op == "s_waitcnt":
                txt = " ".join(i.ops) + " " + i.mods
                m = re.search(r"vmcnt\((\d+)\)", txt)
                if m:
                    n = int(m.group(1))
                    while len(vm) > n:
                        vm.pop(0)
                m = re.search(r"lgkmcnt\((\d+)\)", txt)
                if m:
                    n = int(m.group(1))
                    if n == 0:
                        lg.clear()
                    else:
                        if any(k == "smem" for k, _ in lg):
                            pass
                        else:
                            while len(lg) > n:
                                lg.pop(0)
                continue
            touched = set(i.src) | set(i.dst)
            for k, d in vm:
                tv = set(i.src) if i.cls == "vmem" else touched
                if d & tv:
                    errs.append(f"{name}: vmcnt hazard: {i.text} touches pending load regs {sorted(d & touched)[:4]}")
            for k, d in lg:
                if d & touched:
                    errs.append(f"{name}: lgkmcnt hazard: {i.text} touches pending regs {sorted(d & touched)[:4]}")
            if i.cls in ("vmem", "vmem_st", "vmem_lds"):
                vm.append(("d16" if "d16" in i.op else "v", set(i.dst)))
            elif i.cls == "ds":
                lg.append(("ds", set(i.dst)))
            elif i.cls == "smem":
                lg.append(("smem", set(i.dst)))
    vm = []; lg = []
    pos = 0
    for n, b in enumerate(ins):
        if b.target and b.target in labels and labels[b.target] < n:
            sim(ins[pos:n + 1], vm, lg)
            pos = n + 1
            vm2 = list(vm); lg2 = list(lg)
            sim(ins[labels[b.target]: n + 1], vm2, lg2)
        elif b.op in ("s_endpgm", "s_branch"):
            sim(ins[pos:n + 1], vm, lg)
            pos = n + 1
            vm = []; lg = []
    sim(ins[pos:], vm, lg)
    return errs


class Kernel:
    def __init__(self, name, vgpr=256, agpr=0, sgpr=102):
        self.name = name
        self.lines = []
        self.vgpr = vgpr; self.agpr = agpr; self.sgpr = sgpr
        self._lab = 0

    def __call__(self, s):
        for l in s.strip().split("\n"):
            l = l.strip()
            if l and not l.startswith(";"):
                self.lines.append(l)

    def newlabel(self, base="L"):
        self._lab += 1
        return f"{self.name}_{base}{self._lab}"

    def finish(self):
        ins = [Ins(l) for l in self.lines]
        ins = insert_nops(ins)
        errs = check_branch_hazards(ins) + check_waitcnt(ins, self.name)
        maxv = max([r[1] for i in ins for r in i.dst + i.src if r[0] == "v"] + [0])
        maxa = max([r[1] for i in ins for r in i.dst + i.src if r[0] == "a"] + [-1])
        maxs = max([r[1] for i in ins for r in i.dst + i.src if r[0] == "s" and isinstance(r[1], int)] + [0])
        acc = (maxv + 1 + 3) // 4 * 4
        nfv = acc + maxa + 1 if maxa >= 0 else maxv + 1
        if errs:
            print("\n".join(errs[:30]))
            raise SystemExit(f"{self.name}: {len(errs)} hazard errors")
        body = "\n".join(("" if i.cls == "label" and i.label else "  ") + i.text for i in ins)
        txt = f""".text
.globl {self.name}
.p2align 8
.type {self.name},@function
{self.name}:
{body}
.section .rodata,"a"
.p2align 6
.amdhsa_kernel {self.name}
  .amdhsa_next_free_vgpr {nfv}
  .amdhsa_next_free_sgpr {max(maxs + 1, 16)}
  .amdhsa_accum_offset {acc}
  .amdhsa_group_segment_fixed_size 0
  .amdhsa_kernarg_size 96
  .amdhsa_user_sgpr_count 2
  .amdhsa_user_sgpr_kernarg_segment_ptr 1
  .amdhsa_system_sgpr_workgroup_id_x 1
.end_amdhsa_kernel
"""
        self.stats = dict(nins=sum(1 for i in ins if i.cls != "label"), vgpr=maxv + 1, agpr=maxa + 1, sgpr=maxs + 1,
                          nops=sum(1 for i in ins if i.op == "s_nop"))
        return txt


def vr(b, n=1):
    return f"v{b}" if n == 1 else f"v[{b}:{b+n-1}]"


def ar(b, n=1):
    return f"a{b}" if n == 1 else f"a[{b}:{b+n-1}]"


def sr(b, n=1):
    return f"s{b}" if n == 1 else f"s[{b}:{b+n-1}]"


def interleave(main, fill, start=0, per=None):
    out = []
    fi = 0
    for n, m in enumerate(main):
        out.append(m)
        if n >= start:
            k = per[n - start] if isinstance(per, (list, tuple)) else per
            for _ in range(k):
                if fi < len(fill):
                    out.append(fill[fi]); fi += 1
    out.extend(fill[fi:])
    return out
```

```python
from asmlib import *
from layout import *

P_X, P_WQ, P_WK, P_WV, P_WO, P_BX, P_WG, P_WU, P_WD, P_OUT, P_DBG, P_WS = [16 + 2 * i for i in range(12)]
S_WS = 40
S_WAVE = 3


def prologue(k, nwg):
    k(f"""
    s_cmp_ge_u32 s2, {nwg}
    s_cbranch_scc1 {k.name}_end
    s_load_dwordx16 s[16:31], s[0:1], 0
    s_load_dwordx8 s[32:39], s[0:1], 64
    v_and_b32 v1, 63, v0
    v_lshrrev_b32 v2, 6, v0
    s_nop 0
    v_readfirstlane_b32 s3, v2
    """)


def wait_ptrs(k):
    k("s_waitcnt lgkmcnt(0)")
    srd(k, S_WS, P_WS, WS_USED)


def srd(k, s, ptr, size):
    k(f"""
    s_mov_b32 s{s}, s{ptr}
    s_and_b32 s{s+1}, s{ptr+1}, 0xffff
    s_mov_b32 s{s+2}, {size}
    s_mov_b32 s{s+3}, 0x20000
    """)


def epilogue(k):
    k(f"""
    {k.name}_end:
    s_endpgm
    """)


class VM:
    def __init__(self, k):
        self.k = k; self.tags = []; self.done = 0

    def issue(self, text, tag=None):
        self.k(text); self.tags.append(tag)

    def count_after(self, tag):
        idx = max(i for i, t in enumerate(self.tags) if t == tag)
        return len(self.tags) - 1 - idx, idx

    def wait(self, tag, extra=""):
        n, idx = self.count_after(tag)
        if idx < self.done and not extra:
            return
        assert n <= 63, n
        self.done = max(self.done, idx + 1)
        self.k(f"s_waitcnt vmcnt({n}) {extra}".strip())

    def waitstr(self, tag):
        n, idx = self.count_after(tag)
        if idx < self.done:
            return None
        assert n <= 63, n
        self.done = max(self.done, idx + 1)
        return f"s_waitcnt vmcnt({n})"


class LG:
    def __init__(self):
        self.tags = []; self.done = 0

    def issue(self, tag):
        self.tags.append(tag)

    def waitstr(self, tag):
        idx = max(i for i, t in enumerate(self.tags) if t == tag)
        if idx < self.done:
            return None
        n = len(self.tags) - 1 - idx
        assert n <= 15, n
        self.done = idx + 1
        return f"s_waitcnt lgkmcnt({n})"

    def all_done(self):
        self.done = len(self.tags)


def ws_sub_srd(k, s, off, size):
    k(f"""
    s_add_u32 s{s}, s{P_WS}, {off}
    s_addc_u32 s{s+1}, s{P_WS+1}, 0
    s_and_b32 s{s+1}, s{s+1}, 0xffff
    s_mov_b32 s{s+2}, {size}
    s_mov_b32 s{s+3}, 0x20000
    """)
```

```python
from common import *
from k_p1 import f2h
MF = "v_mfma_f32_32x32x16_bf16"


def gen_g22(name, kind, layer):
    k = Kernel(name)
    prologue(k, 224)
    KB = 32 if kind == "p3" else 112
    WBASE, XBASE = (WOF, OF) if kind == "p3" else (WDF, HF)
    NCH = KB // 4
    RCH = min(NCH, 9)
    RB = RCH * 4096
    k(f"""
    s_and_b32 s4, s2, 7
    s_lshl_b32 s4, s4, 2
    s_lshr_b32 s5, s2, 3
    s_and_b32 s6, s5, 3
    s_add_u32 s4, s4, s6
    s_lshr_b32 s5, s5, 2
    v_lshlrev_b32 v4, 4, v1
    s_and_b32 s6, s3, 1
    s_lshl_b32 s7, s5, 1
    s_add_u32 s13, s7, s6
    s_lshl_b32 s8, s4, 1
    s_add_u32 s9, s8, s6
    s_mul_i32 s10, s13, {KB*1024}
    s_add_u32 s10, s10, {WBASE}
    s_mul_i32 s11, s9, {KB*1024}
    s_add_u32 s11, s11, {XBASE}
    s_cmp_lt_u32 s3, 2
    s_cselect_b32 s10, s10, s11
    s_mul_i32 s11, s3, {RB}
    s_lshr_b32 s7, s3, 1
    s_add_u32 s12, s8, s7
    s_mul_i32 s14, s6, {RB}
    v_add_u32 v5, s14, v4
    s_add_u32 s14, s7, 2
    s_mul_i32 s14, s14, {RB}
    v_add_u32 v6, s14, v4
    v_and_b32 v2, 31, v1
    v_lshrrev_b32 v3, 5, v1
    """)
    wait_ptrs(k)
    vm = VM(k)

    def dma(c):
        k(f"s_add_u32 m0, s11, {(c % RCH)*4096}\ns_add_u32 s15, s10, {c*4096}")
        for i in range(4):
            vm.issue(f"buffer_load_dwordx4 v4, s[40:43], s15 offen offset:{i*1024} lds", ("c", c))
    for c in range(RCH):
        dma(c)
    RES = 16
    if kind == "p3":
        if layer == 0:
            srd(k, 44, P_X, XBYTES)
        else:
            ws_sub_srd(k, 44, X2, XBYTES)
        k(f"""
        s_lshl_b32 s6, s12, 5
        v_add_u32 v7, s6, v2
        v_mul_u32_u24 v7, 896, v7
        v_lshl_add_u32 v7, v3, 3, v7
        s_lshl_b32 s6, s13, 6
        """)
        for q in range(4):
            vm.issue(f"buffer_load_dwordx2 v[{RES+2*q}:{RES+2*q+1}], v7, s[44:47], s6 offen offset:{q*16}", "res")
    else:
        if layer == 0:
            ws_sub_srd(k, 44, X2, XBYTES)
        else:
            srd(k, 44, P_OUT, XBYTES)
        k(f"""
        s_mul_i32 s6, s12, 28
        s_lshl_b32 s7, s13, 1
        s_add_u32 s6, s6, s7
        s_lshl_b32 s6, s6, 10
        s_add_u32 s6, s6, {X1F}
        """)
        for h in range(2):
            vm.issue(f"buffer_load_dwordx4 v[{RES+4*h}:{RES+4*h+3}], v4, s[40:43], s6 offen offset:{h*1024}", "res")
        k(f"""
        s_lshl_b32 s6, s12, 5
        v_add_u32 v7, s6, v2
        v_mul_u32_u24 v7, 896, v7
        v_lshl_add_u32 v7, v3, 4, v7
        """)
    ACC = 32
    FR = [64, 96]

    def mfmas(c):
        b = FR[c & 1]
        for i in range(4):
            cc = "0" if (c == 0 and i == 0) else f"v[{ACC}:{ACC+15}]"
            k(f"{MF} v[{ACC}:{ACC+15}], v[{b+8*i}:{b+8*i+3}], v[{b+8*i+4}:{b+8*i+7}], {cc}")
    for c in range(NCH):
        vm.wait(("c", c), "lgkmcnt(0)")
        k("s_barrier")
        b = FR[c & 1]
        for i in range(4):
            off = ((c % RCH) * 4 + i) * 1024
            k(f"ds_read_b128 v[{b+8*i}:{b+8*i+3}], v5 offset:{off}")
            k(f"ds_read_b128 v[{b+8*i+4}:{b+8*i+7}], v6 offset:{off}")
        if c >= 1 and c - 1 + RCH < NCH:
            dma(c - 1 + RCH)
        if c >= 1:
            mfmas(c - 1)
    k("s_waitcnt lgkmcnt(0)")
    mfmas(NCH - 1)
    vm.wait("res")
    U = 64
    k("s_mov_b32 s14, 0xffff0000")
    for d in range(8):
        k(f"v_lshlrev_b32 v{U+2*d}, 16, v{RES+d}")
        k(f"v_and_b32 v{U+2*d+1}, s14, v{RES+d}")
    for r in range(16):
        k(f"v_add_f32 v{ACC+r}, v{ACC+r}, v{U+r}")
    P = 24
    for d in range(8):
        k(f"v_cvt_pk_bf16_f32 v{P+d}, v{ACC+2*d}, v{ACC+2*d+1}")
    if kind == "p3":
        k(f"""
        s_mul_i32 s6, s12, 28
        s_lshl_b32 s7, s13, 1
        s_add_u32 s6, s6, s7
        s_lshl_b32 s6, s6, 10
        s_add_u32 s6, s6, {X1F}
        buffer_store_dwordx4 v[{P}:{P+3}], v4, s[40:43], s6 offen
        buffer_store_dwordx4 v[{P+4}:{P+7}], v4, s[40:43], s6 offen offset:1024
        v_add_f32 v8, v{ACC}, v{ACC+1}
        v_mul_f32 v9, v{ACC}, v{ACC}
        v_fmac_f32 v9, v{ACC+1}, v{ACC+1}
        """)
        for r in range(2, 16):
            k(f"v_add_f32 v8, v8, v{ACC+r}")
            k(f"v_fmac_f32 v9, v{ACC+r}, v{ACC+r}")
        k(f"""
        s_mul_i32 s6, s12, 14
        s_add_u32 s6, s6, s13
        s_lshl_b32 s6, s6, 9
        s_add_u32 s6, s6, {ST1}
        v_lshlrev_b32 v10, 3, v1
        buffer_store_dwordx2 v[8:9], v10, s[40:43], s6 offen
        """)
    else:
        k(f"""
        s_lshl_b32 s6, s13, 6
        v_permlane32_swap_b32 v{P}, v{P+2}
        v_permlane32_swap_b32 v{P+1}, v{P+3}
        v_permlane32_swap_b32 v{P+4}, v{P+6}
        v_permlane32_swap_b32 v{P+5}, v{P+7}
        buffer_store_dwordx4 v[{P}:{P+3}], v7, s[44:47], s6 offen
        buffer_store_dwordx4 v[{P+4}:{P+7}], v7, s[44:47], s6 offen offset:32
        """)
    epilogue(k)
    return k, dict(grid=224, block=256, lds=4 * RB)
```

```python
from common import *
import struct, math


def f2h(x):
    return "0x%08x" % struct.unpack("<I", struct.pack("<f", x))[0]


QSCALE = (28 ** -0.5) * math.log2(math.e)


def gen_p1(name, layer):
    k = Kernel(name)
    prologue(k, 256)
    WB = 57344
    k(f"""
    s_and_b32 s4, s2, 7
    s_lshl_b32 s4, s4, 2
    s_lshr_b32 s5, s2, 3
    s_and_b32 s6, s5, 3
    s_add_u32 s4, s4, s6
    s_lshr_b32 s5, s5, 2
    v_and_b32 v2, 31, v1
    v_lshrrev_b32 v3, 5, v1
    v_lshrrev_b32 v4, 3, v1
    v_and_b32 v5, 7, v1
    v_lshrrev_b32 v6, 4, v1
    """)
    k(f"""
    s_lshl_b32 s6, s4, 6
    s_lshl_b32 s7, s3, 4
    s_add_u32 s6, s6, s7
    v_add_u32 v7, s6, v4
    v_mul_u32_u24 v7, 896, v7
    v_xor_b32 v8, v5, v6
    v_lshl_add_u32 v8, v8, 4, v7
    v_xor_b32 v9, v5, v6
    v_xor_b32 v9, 4, v9
    v_lshl_add_u32 v9, v9, 4, v7
    v_add_u32 v9, {8*896}, v9
    """)
    k(f"""
    s_mul_i32 s6, s5, 112
    s_mul_i32 s7, s3, {8*896}
    s_add_u32 s6, s6, s7
    v_mul_u32_u24 v10, 896, v4
    v_lshl_add_u32 v10, v5, 4, v10
    v_add_u32 v10, s6, v10
    """)
    k(f"""
    s_lshl_b32 s6, s3, 6
    v_add_u32 v11, s6, v1
    v_lshlrev_b32 v12, 7, v11
    v_add_u32 v12, {WB+112}, v12
    v_mul_u32_u24 v11, 56, v11
    s_and_b32 s7, s5, 3
    s_lshl_b32 s7, s7, 4
    v_add_u32 v11, s7, v11
    s_mov_b32 s8, {256*56}
    """)
    wait_ptrs(k)
    if layer == 0:
        srd(k, 44, P_X, XBYTES)
        xs = 0
    else:
        k(f"""
        s_add_u32 s44, s{P_WS}, {X2}
        s_addc_u32 s45, s{P_WS+1}, 0
        s_and_b32 s45, s45, 0xffff
        s_mov_b32 s46, {XBYTES}
        s_mov_b32 s47, 0x20000
        """)
    srd(k, 48, P_WQ, D * D * 2)
    k(f"""
    s_cmp_lt_u32 s5, 4
    s_cselect_b32 s52, s{P_WK}, s{P_WV}
    s_cselect_b32 s53, s{P_WK+1}, s{P_WV+1}
    s_and_b32 s53, s53, 0xffff
    s_mov_b32 s54, {D*DH*2}
    s_mov_b32 s55, 0x20000
    buffer_load_dwordx4 v[16:19], v11, s[52:55], 0 offen
    buffer_load_dwordx4 v[20:23], v11, s[52:55], s8 offen
    s_lshl_b32 s9, s3, 11
    s_lshl_b32 s10, s3, 10
    s_add_u32 s10, s10, {WB}
    """)
    for c in range(7):
        k(f"""
        s_mov_b64 exec, -1
        s_add_u32 m0, s9, {c*8192}
        s_mov_b32 s11, {c*128}
        buffer_load_dwordx4 v8, s[44:47], s11 offen lds
        s_add_u32 m0, s9, {c*8192+1024}
        s_nop 0
        buffer_load_dwordx4 v9, s[44:47], s11 offen lds
        s_mov_b32 exec_lo, 0x7f7f7f7f
        s_mov_b32 exec_hi, 0x7f7f7f7f
        s_add_u32 m0, s10, {(2*c)*4096}
        s_mov_b32 s11, {(2*c)*32*896}
        buffer_load_dwordx4 v10, s[48:51], s11 offen lds
        s_add_u32 m0, s10, {(2*c+1)*4096}
        s_mov_b32 s11, {(2*c+1)*32*896}
        buffer_load_dwordx4 v10, s[48:51], s11 offen lds
        """)
    k("s_mov_b64 exec, -1")
    k(f"""
    s_lshr_b32 s12, s3, 1
    s_and_b32 s13, s3, 1
    s_lshl_b32 s6, s12, 5
    v_add_u32 v13, s6, v2
    v_lshrrev_b32 v14, 3, v13
    v_lshlrev_b32 v14, 10, v14
    v_and_b32 v15, 7, v13
    v_lshl_add_u32 v14, v15, 7, v14
    v_bfe_u32 v15, v13, 1, 3
    """)
    for q in range(4):
        k(f"""
        v_add_u32 v13, {2*q}, v3
        v_xor_b32 v13, v13, v15
        v_lshl_add_u32 v{24+q}, v13, 4, v14
        """)
    k(f"""
    v_bfe_u32 v13, v1, 2, 2
    v_lshl_add_u32 v13, v3, 3, v13
    v_lshlrev_b32 v13, 7, v13
    v_bfe_u32 v14, v1, 4, 1
    v_and_b32 v15, 3, v1
    v_lshl_add_u32 v14, v14, 2, v15
    v_lshlrev_b32 v15, 3, v14
    s_mul_i32 s6, s13, 56
    v_add_u32 v15, s6, v15
    s_lshl_b32 s7, s13, 3
    s_add_u32 s7, s7, 112
    v_mov_b32 v29, s7
    v_cmp_eq_u32 vcc, 7, v14
    v_cndmask_b32 v15, v15, v29, vcc
    v_add_u32 v28, v13, v15
    v_add_u32 v28, {WB}, v28
    s_mov_b32 s14, 0x3f803f80
    v_mov_b32 v32, s14
    v_mov_b32 v33, s14
    v_mov_b32 v34, s14
    v_mov_b32 v35, s14
    v_mov_b32 v30, 0
    v_mov_b32 v31, 0
    s_waitcnt vmcnt(28)
    ds_write_b128 v12, v[16:19]
    ds_write_b128 v12, v[20:23] offset:32768
    """)
    ACC, CS, RING = 64, 80, 96
    stages = [(0, 8, 20), (8, 16, 12), (16, 28, 0)]

    def reads(kb):
        r = RING + 8 * (kb % 4)
        return [f"ds_read_b64_tr_b16 v[{r}:{r+1}], v28 offset:{kb*2048}",
                f"ds_read_b64_tr_b16 v[{r+2}:{r+3}], v28 offset:{kb*2048+512}",
                f"ds_read_b128 v[{r+4}:{r+7}], v{24+(kb&3)} offset:{(kb>>2)*8192}"]
    for (k0, k1, vm) in stages:
        k(f"s_waitcnt vmcnt({vm}) lgkmcnt(0)\ns_barrier")
        for kb in range(k0, min(k0 + 3, k1)):
            for r in reads(kb): k(r)
        for kb in range(k0, k1):
            if kb + 3 < k1:
                for r in reads(kb + 3): k(r)
            out = min(3, k1 - 1 - kb) * 3
            k(f"s_waitcnt lgkmcnt({out})")
            r = RING + 8 * (kb % 4)
            c0 = "0" if kb == 0 else f"v[{ACC}:{ACC+15}]"
            c1 = "0" if kb == 0 else f"v[{CS}:{CS+15}]"
            k(f"v_mfma_f32_32x32x16_bf16 v[{ACC}:{ACC+15}], v[{r}:{r+3}], v[{r+4}:{r+7}], {c0}")
            for d in range(2):
                k(f"v_dot2_f32_bf16 v30, v{r+4+d}, s14, v30")
                k(f"v_dot2_f32_bf16 v31, v{r+4+d}, v{r+4+d}, v31")
            k(f"v_mfma_f32_32x32x16_bf16 v[{CS}:{CS+15}], v[{r}:{r+3}], v[32:35], {c1}")
            for d in range(2, 4):
                k(f"v_dot2_f32_bf16 v30, v{r+4+d}, s14, v30")
                k(f"v_dot2_f32_bf16 v31, v{r+4+d}, v{r+4+d}, v31")
    k(f"""
    v_mov_b32 v36, v30
    v_mov_b32 v37, v31
    s_nop 1
    v_permlane32_swap_b32 v30, v36
    v_permlane32_swap_b32 v31, v37
    v_add_f32 v30, v30, v36
    v_add_f32 v31, v31, v37
    v_mul_f32 v30, {f2h(1.0/448)}, v30
    v_mul_f32 v31, {f2h(1.0/448)}, v31
    v_fma_f32 v31, -v30, v30, v31
    v_max_f32 v31, 0, v31
    v_add_f32 v31, {f2h(1e-5)}, v31
    v_rsq_f32 v31, v31
    s_nop 0
    v_mul_f32 v36, {f2h(QSCALE)}, v31
    v_cmp_eq_u32 vcc, 1, v3
    v_cndmask_b32 v37, v36, v31, vcc
    """)
    for r in range(16):
        k(f"v_fma_f32 v{ACC+r}, -v30, v{CS+r}, v{ACC+r}")
    for r in range(16):
        k(f"v_mul_f32 v{ACC+r}, v{36 if r < 12 else 37}, v{ACC+r}")
    PKD = 40
    for d in range(8):
        k(f"v_cvt_pk_bf16_f32 v{PKD+d}, v{ACC+2*d}, v{ACC+2*d+1}")
    k(f"""
    s_lshl_b32 s6, s4, 1
    s_add_u32 s6, s6, s12
    s_lshl_b32 s7, s5, 1
    s_add_u32 s7, s7, s13
    s_lshl_b32 s8, s6, 4
    s_add_u32 s8, s8, s7
    s_lshl_b32 s8, s8, 11
    s_add_u32 s8, s8, {QF}
    v_lshlrev_b32 v38, 4, v1
    buffer_store_dwordx4 v[{PKD}:{PKD+3}], v38, s[40:43], s8 offen
    buffer_store_dwordx4 v[{PKD+4}:{PKD+7}], v38, s[40:43], s8 offen offset:1024
    s_lshl_b32 s9, s6, 12
    s_add_u32 s9, s9, {KVF}
    s_and_b32 s10, s7, 7
    v_mov_b32 v48, v{PKD+6}
    v_mov_b32 v49, v{PKD+7}
    s_mov_b32 exec_lo, 0
    s_cmp_ge_u32 s7, 8
    s_cbranch_scc1 {k.name}_v
    """)
    k(f"""
    s_cmp_lg_u32 s10, 7
    s_cbranch_scc1 {k.name}_k1
    v_mov_b32 v48, 0
    v_mov_b32 v49, 0
    {k.name}_k1:
    s_lshr_b32 s11, s10, 2
    s_lshl_b32 s11, s11, 10
    s_add_u32 s9, s9, s11
    s_and_b32 s11, s10, 1
    s_lshl_b32 s11, s11, 9
    s_add_u32 s9, s9, s11
    s_and_b32 s11, s10, 2
    s_lshl_b32 s11, s11, 2
    s_add_u32 s9, s9, s11
    v_lshlrev_b32 v38, 4, v2
    buffer_store_dwordx2 v[48:49], v38, s[40:43], s9 offen
    s_endpgm
    {k.name}_v:
    s_cmp_lg_u32 s10, 7
    s_cbranch_scc1 {k.name}_v1
    v_mov_b32 v48, 0x3f80
    v_mov_b32 v49, 0
    {k.name}_v1:
    s_lshl_b32 s11, s10, 6
    s_add_u32 s9, s9, s11
    s_add_u32 s9, s9, 2048
    v_lshrrev_b32 v38, 4, v2
    v_lshlrev_b32 v38, 10, v38
    v_bfe_u32 v39, v2, 2, 1
    v_lshl_add_u32 v38, v39, 9, v38
    v_and_b32 v39, 3, v2
    v_lshl_add_u32 v38, v39, 1, v38
    v_bfe_u32 v39, v2, 3, 1
    v_lshl_add_u32 v38, v39, 3, v38
    buffer_store_short v48, v38, s[40:43], s9 offen
    buffer_store_short_d16_hi v48, v38, s[40:43], s9 offen offset:16
    buffer_store_short v49, v38, s[40:43], s9 offen offset:32
    buffer_store_short_d16_hi v49, v38, s[40:43], s9 offen offset:48
    """)
    epilogue(k)
    return k, dict(grid=256, block=256, lds=WB + 512 * 128)
```

```python
from common import *
from k_p1 import f2h

MF = "v_mfma_f32_32x32x16_bf16"


def gen_p2(name="p2_kernel"):
    k = Kernel(name)
    prologue(k, 256)
    Q, O, SA, SB, P = 16, 48, 112, 128, 144
    k(f"""
    s_lshr_b32 s4, s2, 2
    s_and_b32 s5, s2, 3
    v_lshlrev_b32 v4, 4, v1
    s_lshl_b32 s6, s4, 4
    s_lshl_b32 s7, s5, 2
    s_add_u32 s6, s6, s7
    s_lshl_b32 s6, s6, 11
    s_add_u32 s6, s6, {QF}
    s_lshl_b32 s8, s3, 16
    s_add_u32 s8, s8, {KVF}
    """)
    for jj in range(4):
        k(f"""
        s_add_u32 s9, s3, {jj}
        s_and_b32 s9, s9, 3
        s_lshl_b32 s9, s9, 11
        s_add_u32 s{10+jj}, s6, s9
        """)
    wait_ptrs(k)
    vm = VM(k)
    order = [1, 2, 3, 0]

    def ld_kv(t, parts=(0, 1, 2, 3)):
        k(f"s_add_u32 s9, s8, {t*4096}")
        for f in parts:
            vm.issue(f"buffer_load_dwordx4 a[{16*t+4*f}:{16*t+4*f+3}], v4, s[40:43], s9 offen offset:{f*1024}", ("k" if f < 2 else "v", t))

    def ld_q(jj):
        for h in range(2):
            vm.issue(f"buffer_load_dwordx4 v[{Q+8*jj+4*h}:{Q+8*jj+4*h+3}], v4, s[40:43], s{10+jj} offen offset:{h*1024}", ("q", jj))
    ld_kv(0, (0, 1))
    ld_q(1)
    ld_q(2)
    ld_kv(0, (2, 3))
    ld_q(3)
    ld_q(0)
    NPRE = 13
    for t in range(1, NPRE):
        ld_kv(t)
    steps = [(t, jj) for t in range(16) for jj in order]
    Sb = [SA, SB]

    def qk(s, half):
        t, jj = steps[s]
        S = Sb[s & 1]
        c = "0" if half == 0 else f"v[{S}:{S+15}]"
        return f"{MF} v[{S}:{S+15}], a[{16*t+4*half}:{16*t+4*half+3}], v[{Q+8*jj+4*half}:{Q+8*jj+4*half+3}], {c}"

    def pv(s, half):
        t, jj = steps[s]
        o = O + 16 * jj
        c = "0" if (t == 0 and half == 0) else f"v[{o}:{o+15}]"
        return f"{MF} v[{o}:{o+15}], a[{16*t+8+4*half}:{16*t+8+4*half+3}], v[{P+4*half}:{P+4*half+3}], {c}"

    def need_qk(s):
        t, jj = steps[s]
        vm.wait(("k", t)); vm.wait(("q", jj))

    for jj in range(1, 4):
        k(f"""
        s_add_u32 s9, s3, {jj}
        s_and_b32 s9, s9, 3
        s_mul_i32 s9, s9, {3*4096}
        s_add_u32 s9, s9, {(jj-1)*4096}
        v_add_u32 v{5+jj}, s9, v4
        """)
    k(f"""
    s_mul_i32 s9, s3, {3*4096}
    v_add_u32 v5, s9, v4
    """)

    def lds_wr(jj):
        o = O + 16 * jj
        return [f"ds_write_b128 v{5+jj}, v[{o+4*q}:{o+4*q+3}] offset:{q*1024}" for q in range(4)]

    need_qk(0)
    k(qk(0, 0)); k(qk(0, 1))
    k("s_nop 7")
    n = len(steps)
    for s in range(n):
        t, jj = steps[s]
        S = Sb[s & 1]
        e = lambda i: f"v_exp_f32 v{S+i}, v{S+i}"
        c = lambda d: f"v_cvt_pk_bf16_f32 v{P+d}, v{S+2*d}, v{S+2*d+1}"
        if (s & 3) == 1 and t + NPRE < 16 and t >= 1:
            ld_kv(t + NPRE - 1 + 0) if False else None
        if (s & 3) == 0 and 1 <= t <= 16 - NPRE:
            ld_kv(NPRE - 1 + t)
        if s + 1 < n:
            need_qk(s + 1)
            k(qk(s + 1, 0))
        for i in range(4): k(e(i))
        if s > 0:
            k(pv(s - 1, 1))
        for i in range(4, 8): k(e(i))
        if s + 1 < n:
            k(qk(s + 1, 1))
        for d in range(4): k(c(d))
        for i in range(8, 11): k(e(i))
        vm.wait(("v", t))
        k(pv(s, 0))
        extra = []
        if t == 15 and s & 3 >= 2:
            extra = lds_wr(order[(s & 3) - 2])
        for i in range(11, 16):
            k(e(i))
            if extra: k(extra.pop(0))
        for d in range(4, 8): k(c(d))
    k("s_nop 0")
    k(pv(n - 1, 1))
    for w in lds_wr(3): k(w)
    R = 112
    k("s_waitcnt lgkmcnt(0)\ns_barrier")
    for j in range(3):
        for q in range(4):
            k(f"ds_read_b128 v[{R+16*j+4*q}:{R+16*j+4*q+3}], v5 offset:{j*4096+q*1024}")
    for j in range(3):
        k(f"s_waitcnt lgkmcnt({8-4*j})")
        for r in range(16):
            k(f"v_add_f32 v{O+r}, v{O+r}, v{R+16*j+r}")
    FB, NORM = k.name + "_fb", k.name + "_norm"
    k(f"""
    v_mov_b32 v8, v{O+12}
    v_mov_b32 v9, v{O+12}
    s_nop 1
    v_permlane32_swap_b32 v8, v9
    s_mov_b32 s14, {f2h(2.0**-60)}
    s_mov_b32 s15, {f2h(2.0**60)}
    v_cmp_nle_f32 vcc, s14, v9
    v_cmp_nge_f32 s[44:45], s15, v9
    s_or_b64 vcc, vcc, s[44:45]
    s_cbranch_vccnz {FB}
    {NORM}:
    v_rcp_f32 v9, v9
    s_lshl_b32 s9, s3, 11
    s_sub_u32 s9, s9, {QF}
    s_add_u32 s9, s9, s6
    s_add_u32 s9, s9, {OF}
    """)
    for r in range(16):
        k(f"v_mul_f32 v{O+r}, v9, v{O+r}")
    for d in range(8):
        k(f"v_cvt_pk_bf16_f32 v{P+d}, v{O+2*d}, v{O+2*d+1}")
    k(f"""
    buffer_store_dwordx4 v[{P}:{P+3}], v4, s[40:43], s9 offen
    buffer_store_dwordx4 v[{P+4}:{P+7}], v4, s[40:43], s9 offen offset:1024
    s_endpgm
    """)
    KR = 112
    S = SB
    k(f"""
    {FB}:
    v_mov_b32 v10, 0xff800000
    s_mov_b32 s9, {KVF}
    {FB}_l1:
    buffer_load_dwordx4 v[{KR}:{KR+3}], v4, s[40:43], s9 offen
    buffer_load_dwordx4 v[{KR+4}:{KR+7}], v4, s[40:43], s9 offen offset:1024
    s_waitcnt vmcnt(0)
    {MF} v[{S}:{S+15}], v[{KR}:{KR+3}], v[{Q}:{Q+3}], 0
    {MF} v[{S}:{S+15}], v[{KR+4}:{KR+7}], v[{Q+4}:{Q+7}], v[{S}:{S+15}]
    """)
    for r in range(0, 16, 2):
        k(f"v_max3_f32 v10, v{S+r}, v{S+r+1}, v10")
    k(f"""
    s_add_u32 s9, s9, 4096
    s_cmp_lt_u32 s9, {KVF + 64*4096}
    s_cbranch_scc1 {FB}_l1
    v_mov_b32 v11, v10
    s_nop 1
    v_permlane32_swap_b32 v10, v11
    v_max_f32 v10, v10, v11
    """)
    for r in range(16):
        k(f"v_mov_b32 v{O+r}, 0")
    k(f"""
    s_mov_b32 s9, {KVF}
    {FB}_l2:
    buffer_load_dwordx4 v[{KR}:{KR+3}], v4, s[40:43], s9 offen
    buffer_load_dwordx4 v[{KR+4}:{KR+7}], v4, s[40:43], s9 offen offset:1024
    buffer_load_dwordx4 v[{KR+8}:{KR+11}], v4, s[40:43], s9 offen offset:2048
    buffer_load_dwordx4 v[{KR+12}:{KR+15}], v4, s[40:43], s9 offen offset:3072
    s_waitcnt vmcnt(0)
    {MF} v[{S}:{S+15}], v[{KR}:{KR+3}], v[{Q}:{Q+3}], 0
    {MF} v[{S}:{S+15}], v[{KR+4}:{KR+7}], v[{Q+4}:{Q+7}], v[{S}:{S+15}]
    """)
    for r in range(16):
        k(f"v_sub_f32 v{S+r}, v{S+r}, v10")
    for r in range(16):
        k(f"v_exp_f32 v{S+r}, v{S+r}")
    for d in range(8):
        k(f"v_cvt_pk_bf16_f32 v{P+d}, v{S+2*d}, v{S+2*d+1}")
    k(f"""
    {MF} v[{O}:{O+15}], v[{KR+8}:{KR+11}], v[{P}:{P+3}], v[{O}:{O+15}]
    {MF} v[{O}:{O+15}], v[{KR+12}:{KR+15}], v[{P+4}:{P+7}], v[{O}:{O+15}]
    s_add_u32 s9, s9, 4096
    s_cmp_lt_u32 s9, {KVF + 64*4096}
    s_nop 7
    s_cbranch_scc1 {FB}_l2
    s_nop 7
    v_mov_b32 v8, v{O+12}
    v_mov_b32 v9, v{O+12}
    s_nop 1
    v_permlane32_swap_b32 v8, v9
    s_nop 1
    s_branch {NORM}
    """)
    epilogue(k)
    return k, dict(grid=256, block=256, lds=48 * 1024)
```

```python
from common import *
from k_p1 import f2h
MF = "v_mfma_f32_32x32x16_bf16"


def gen_p4(name="p4_kernel"):
    k = Kernel(name)
    prologue(k, 256)
    CSB = 140 * 1024
    k(f"""
    s_and_b32 s6, s2, 7
    s_lshr_b32 s7, s2, 3
    s_and_b32 s4, s6, 1
    s_lshl_b32 s4, s4, 3
    s_and_b32 s8, s7, 7
    s_add_u32 s4, s4, s8
    s_lshr_b32 s5, s6, 1
    s_lshl_b32 s5, s5, 2
    s_lshr_b32 s8, s7, 3
    s_add_u32 s5, s5, s8
    s_lshl_b32 s12, s4, 2
    s_add_u32 s12, s12, s3
    v_lshlrev_b32 v4, 4, v1
    s_mul_i32 s8, s12, {28*1024}
    s_add_u32 s8, s8, {X1F}
    s_mul_i32 s9, s5, {196*1024}
    s_mul_i32 s10, s3, {7*1024}
    s_add_u32 s9, s9, s10
    s_add_u32 s9, s9, {WGUF}
    v_lshrrev_b32 v3, 5, v1
    v_add_u32 v5, 0x10000, v4
    v_add_u32 v6, 0x20000, v4
    s_lshl_b32 s11, s3, 10
    s_add_u32 s11, s11, {CSB}
    v_lshlrev_b32 v7, 4, v3
    v_add_u32 v7, s11, v7
    v_lshlrev_b32 v8, 3, v1
    s_mul_i32 s13, s12, {14*512}
    s_add_u32 s13, s13, {ST1}
    s_mul_i32 s14, s12, 112
    s_mul_i32 s15, s5, 7
    s_add_u32 s14, s14, s15
    s_lshl_b32 s14, s14, 10
    s_add_u32 s14, s14, {HF}
    s_mul_i32 s15, s5, 896
    s_add_u32 s15, s15, {CSGU}
    """)
    wait_ptrs(k)
    vm = VM(k)
    lg = LG()

    def ldx(kbs):
        for kb in kbs:
            if kb % 4 == 0 or kb == kbs[0]:
                k(f"s_add_u32 s44, s8, {(kb//4)*4096}")
            vm.issue(f"buffer_load_dwordx4 a[{4*kb}:{4*kb+3}], v4, s[40:43], s44 offen offset:{(kb%4)*1024}", ("x", kb))

    def ldw(G):
        for i in range(7):
            if i % 4 == 0:
                k(f"s_add_u32 m0, s10, {(G%5)*28*1024 + i*1024}\ns_add_u32 s45, s9, {G*28*1024 + i*1024}")
            vm.issue(f"buffer_load_dwordx4 v4, s[40:43], s45 offen offset:{(i%4)*1024} lds", ("g", G))
    ldx([0, 1, 2, 3]); ldw(0); ldx([4, 5, 6, 7]); ldw(1); ldx(list(range(8, 14))); ldw(2); ldw(3)
    k("s_mov_b32 m0, s11\ns_nop 0")
    vm.issue("buffer_load_dwordx4 v4, s[40:43], s15 offen lds", "cs")
    ldw(4)
    ACC, WR, CS, HP, STT = 16, 128, 152, 168, 176
    NR = 6
    RA = 4

    def fk(n):
        if n < 98:
            return n % 7, n // 7
        return (n - 98) // 14, 14 + (n - 98) % 14

    def rd(f):
        slot = (f % 140) * 1024
        base = [4, 5, 6][slot >> 16]
        r = WR + 4 * (f % NR)
        lg.issue(("w", f))
        k(f"ds_read_b128 v[{r}:{r+3}], v{base} offset:{slot & 0xffff}")

    def group_sync(G):
        vm.wait(("g", G))
        k("s_barrier")
        if G == 0:
            ldx(list(range(14, 28)))
        elif G == 1:
            for c in range(14):
                vm.issue(f"buffer_load_dwordx2 v[{STT+2*c}:{STT+2*c+1}], v8, s[40:43], s13 offen offset:{(c%8)*512}", "st")
                if c == 7:
                    k("s_add_u32 s13, s13, 4096")
        elif G == 2:
            ldw(5)
        elif G == 3:
            ldw(6)

    fill = []

    def stats_ops():
        o = []
        o.append(lambda: vm.wait("st"))
        for c in range(1, 14):
            o.append(f"v_add_f32 v{STT}, v{STT}, v{STT+2*c}")
            o.append(f"v_add_f32 v{STT+1}, v{STT+1}, v{STT+2*c+1}")
        o += [f"v_mov_b32 v10, v{STT}", f"v_mov_b32 v11, v{STT+1}", "s_nop 0",
              f"v_permlane32_swap_b32 v10, v{STT}", f"v_permlane32_swap_b32 v11, v{STT+1}",
              f"v_add_f32 v10, v10, v{STT}", f"v_add_f32 v11, v11, v{STT+1}",
              f"v_mul_f32 v10, {f2h(1.0/448)}, v10", f"v_mul_f32 v11, {f2h(1.0/448)}, v11",
              "v_fma_f32 v11, -v10, v10, v11", "v_max_f32 v11, 0, v11", f"v_add_f32 v11, {f2h(1e-5)}, v11",
              "v_rcp_f32 v11, v11"]
        return o

    def epi_ops(ct):
        a = ACC + 16 * ct
        hp = HP + 4 * (ct & 1)
        o = []

        def csrd(q):
            def f():
                lg.issue(("cs", ct))
                k(f"ds_read_b128 v[{CS+4*q}:{CS+4*q+3}], v7 offset:{ct*128+q*32}")
            return f
        if ct == 0:
            o.append(lambda: vm.wait("cs"))
        for q in range(4):
            o.append(csrd(q))
        o.append("GAP"); o.append("GAP")

        def cswait():
            w = lg.waitstr(("cs", ct))
            if w: k(w)
        o.append(cswait)
        for r in range(16):
            o.append(f"v_fma_f32 v{a+r}, -v10, v{CS+r}, v{a+r}")
        for r in range(8):
            o.append(f"v_mul_f32 v{a+r}, v{a+r}, v{a+8+r}")
        for r in range(8):
            o.append(f"v_mul_f32 v{a+r}, v11, v{a+r}")
        for d in range(4):
            o.append(f"v_cvt_pk_bf16_f32 v{hp+d}, v{a+2*d}, v{a+2*d+1}")

        def st():
            if ct == 4:
                k("s_add_u32 s14, s14, 4096")
            vm.issue(f"buffer_store_dwordx4 v[{hp}:{hp+3}], v4, s[40:43], s14 offen offset:{(ct%4)*1024}", "hst")
        o.append(st)
        return o

    def run_fill(n):
        cnt = 0
        while fill and cnt < n:
            f = fill.pop(0)
            if f == "GAP":
                break
            if callable(f): f()
            else: k(f)
            cnt += 1

    group_sync(0)
    for f in range(RA): rd(f)
    for n in range(196):
        ct, kb = fk(n)
        f = n + RA
        if f < 196:
            if f % 28 == 0:
                group_sync(f // 28)
            rd(f)
        vm.wait(("x", kb))
        w = lg.waitstr(("w", n))
        if w: k(w)
        r = WR + 4 * (n % NR)
        a = ACC + 16 * ct
        c = "0" if kb == 0 else f"v[{a}:{a+15}]"
        k(f"{MF} v[{a}:{a+15}], v[{r}:{r+3}], a[{4*kb}:{4*kb+3}], {c}")
        if n == 60:
            fill.extend(stats_ops())
        if n >= 98 and (n - 98) % 14 == 13:
            fill.extend(epi_ops(ct))
        run_fill(4)
    while fill:
        run_fill(100)
    epilogue(k)
    return k, dict(grid=256, block=256, lds=CSB + 4096)
```

```python
from common import *


def gen_pre(name="pre_kernel"):
    k = Kernel(name)
    prologue(k, 184)
    k("""
    v_and_b32 v2, 31, v1
    v_lshrrev_b32 v3, 5, v1
    v_lshlrev_b32 v4, 4, v1
    """)
    wait_ptrs(k)
    RAW = 16
    PK = 72
    LD, LO = k.name + "_wd", k.name + "_wo"
    k(f"""
    s_cmp_ge_u32 s2, 168
    s_cbranch_scc1 {LO}
    s_cmp_ge_u32 s2, 112
    s_cbranch_scc1 {LD}
    """)

    def pack_all():
        for j in range(7):
            for d in range(4):
                k(f"v_lshl_or_b32 v{PK+4*j+d}, v{RAW+8*j+2*d+1}, 16, v{RAW+8*j+2*d}")

    srd(k, 44, P_WG, D * F * 2)
    srd(k, 48, P_WU, D * F * 2)
    RB = F * 2
    k(f"""
    v_and_b32 v5, 15, v2
    s_lshl_b32 s4, s2, 4
    v_add_u32 v5, s4, v5
    v_lshlrev_b32 v5, 1, v5
    v_mul_u32_u24 v6, {4*RB}, v3
    v_add_u32 v5, v5, v6
    v_add_u32 v6, {2*RB}, v5
    s_mul_i32 s5, s3, {7*16*RB}
    """)
    for half, (sd, lo, hi) in enumerate(((44, "0x0000ffff", "0x0000ffff"), (48, "0xffff0000", "0xffff0000"))):
        k(f"s_mov_b32 exec_lo, {lo}\ns_mov_b32 exec_hi, {hi}")
        for j in range(7):
            k(f"s_add_u32 s6, s5, {j*16*RB}\ns_add_u32 s7, s5, {j*16*RB + 8*RB}")
            for e in range(8):
                vo = 5 if (e & 3) < 2 else 6
                so = 6 if e < 4 else 7
                imm = RB if (e & 1) else 0
                k(f"buffer_load_ushort v{RAW+8*j+e}, v{vo}, s[{sd}:{sd+3}], s{so} offen offset:{imm}")
    k("s_mov_b64 exec, -1")
    k(f"""
    s_mul_i32 s8, s2, 9363
    s_lshr_b32 s8, s8, 16
    s_mul_i32 s9, s8, 7
    s_sub_u32 s9, s2, s9
    s_mul_i32 s10, s3, 49
    s_add_u32 s10, s10, s9
    s_mul_i32 s11, s9, 14
    s_mul_i32 s12, s3, 7
    s_add_u32 s11, s11, s12
    s_add_u32 s11, s11, 84
    s_cmp_lt_u32 s3, 2
    s_cselect_b32 s10, s10, s11
    s_cselect_b32 s11, 7, 1
    s_lshl_b32 s11, s11, 10
    s_mul_i32 s8, s8, 196
    s_add_u32 s10, s10, s8
    s_lshl_b32 s10, s10, 10
    s_add_u32 s10, s10, {WGUF}
    s_mov_b32 s13, 0x3f803f80
    v_mov_b32 v7, 0
    s_waitcnt vmcnt(0)
    """)
    pack_all()
    for j in range(7):
        k(f"buffer_store_dwordx4 v[{PK+4*j}:{PK+4*j+3}], v4, s[40:43], s10 offen")
        k("s_add_u32 s10, s10, s11")
    for j in range(28):
        k(f"v_dot2_f32_bf16 v7, v{PK+j}, s13, v7")
    k(f"""
    v_lshlrev_b32 v8, 2, v0
    ds_write_b32 v8, v7
    s_waitcnt lgkmcnt(0)
    s_barrier
    s_cmp_lg_u32 s3, 0
    s_cbranch_scc1 {k.name}_end
    v_lshlrev_b32 v8, 2, v2
    """)
    for t in range(8):
        k(f"ds_read_b32 v{16+t}, v8 offset:{t*128}")
    k("s_waitcnt lgkmcnt(0)")
    for t in range(1, 8):
        k(f"v_add_f32 v16, v16, v{16+t}")
    k(f"""
    s_lshl_b32 s10, s2, 7
    s_add_u32 s10, s10, {CSGU}
    buffer_store_dword v16, v8, s[40:43], s10 offen
    s_endpgm
    """)
    RB = D * 2
    k(f"{LD}:")
    srd(k, 44, P_WD, F * D * 2)
    k(f"""
    s_sub_u32 s4, s2, 112
    s_lshl_b32 s4, s4, 2
    s_add_u32 s4, s4, s3
    s_lshr_b32 s5, s4, 4
    s_and_b32 s6, s4, 15
    s_mul_i32 s6, s6, 7
    v_lshlrev_b32 v5, 1, v2
    v_mul_u32_u24 v6, {4*RB}, v3
    v_add_u32 v5, v5, v6
    s_mul_i32 s7, s6, {16*RB}
    s_lshl_b32 s8, s5, 6
    s_add_u32 s7, s7, s8
    """)
    for j in range(7):
        k(f"s_add_u32 s8, s7, {j*16*RB}\ns_add_u32 s9, s7, {j*16*RB + 8*RB}")
        for e in range(8):
            k(f"buffer_load_ushort v{RAW+8*j+e}, v5, s[44:47], s{8 if e < 4 else 9} offen offset:{(e&3)*RB}")
    k(f"""
    s_mul_i32 s10, s5, 112
    s_add_u32 s10, s10, s6
    s_lshl_b32 s10, s10, 10
    s_add_u32 s10, s10, {WDF}
    s_waitcnt vmcnt(0)
    """)
    pack_all()
    for j in range(7):
        k(f"buffer_store_dwordx4 v[{PK+4*j}:{PK+4*j+3}], v4, s[40:43], s10 offen")
        k("s_add_u32 s10, s10, 1024")
    k("s_endpgm")
    k(f"{LO}:")
    srd(k, 44, P_WO, D * D * 2)
    k(f"""
    s_sub_u32 s4, s2, 168
    s_lshl_b32 s4, s4, 2
    s_add_u32 s4, s4, s3
    s_mul_i32 s4, s4, 7
    v_lshlrev_b32 v5, 1, v2
    v_mul_u32_u24 v6, {4*RB}, v3
    v_add_u32 v5, v5, v6
    """)
    for j in range(7):
        k(f"""
        s_add_u32 s5, s4, {j}
        s_lshr_b32 s6, s5, 5
        s_and_b32 s7, s5, 31
        s_lshr_b32 s8, s7, 1
        s_mul_i32 s8, s8, {28*RB}
        s_and_b32 s9, s7, 1
        s_mul_i32 s9, s9, {16*RB}
        s_add_u32 s8, s8, s9
        s_lshl_b32 s6, s6, 6
        s_add_u32 s8, s8, s6
        s_add_u32 s9, s8, {8*RB}
        """)
        for e in range(8):
            k(f"buffer_load_ushort v{RAW+8*j+e}, v5, s[44:47], s{8 if e < 4 else 9} offen offset:{(e&3)*RB}")
    k(f"""
    s_lshl_b32 s10, s4, 10
    s_add_u32 s10, s10, {WOF}
    s_waitcnt vmcnt(0)
    """)
    pack_all()
    for j in range(7):
        k(f"""
        s_add_u32 s5, s4, {j}
        s_and_b32 s5, s5, 1
        s_mov_b32 exec_lo, 0
        s_cmp_lg_u32 s5, 0
        s_cselect_b32 exec_hi, -1, 0
        v_mov_b32 v{PK+4*j+2}, 0
        v_mov_b32 v{PK+4*j+3}, 0
        """)
    k("s_mov_b64 exec, -1")
    for j in range(7):
        k(f"buffer_store_dwordx4 v[{PK+4*j}:{PK+4*j+3}], v4, s[40:43], s10 offen")
        k("s_add_u32 s10, s10, 1024")
    epilogue(k)
    return k, dict(grid=184, block=256, lds=1024)
```

```python
S, D, H, DH, F = 2048, 448, 16, 28, 1792
def al(x, a=4096): return (x + a - 1) // a * a
off = 0
def alloc(n):
    global off
    o = off; off = al(off + n); return o
QF  = alloc(64 * 16 * 2 * 1024)
KVF = alloc(64 * 4096)
OF  = alloc(64 * 32 * 1024)
X1F = alloc(64 * 28 * 1024)
ST1 = alloc(64 * 14 * 512)
HF  = alloc(64 * 112 * 1024)
X2  = alloc(S * D * 2)
WOF = alloc(14 * 32 * 1024)
WGUF= alloc(16 * 196 * 1024)
WDF = alloc(14 * 112 * 1024)
CSGU= alloc(112 * 128)
WS_USED = off
XBYTES = S * D * 2
if __name__ == "__main__":
    for k in "QF KVF OF X1F ST1 HF X2 WOF WGUF WDF CSGU WS_USED".split():
        print(k, hex(globals()[k]))
```

```python
import sys
from build import *
from k_pre import gen_pre
from k_p1 import gen_p1
from k_p2 import gen_p2
from k_g22 import gen_g22
from k_p4 import gen_p4
p2 = gen_p2(); p4 = gen_p4()
L = [gen_pre(), gen_p1("p1a_kernel", 0), p2, gen_g22("p3a_kernel", "p3", 0), p4, gen_g22("p5a_kernel", "p5", 0),
     gen_p1("p1b_kernel", 1), p2, gen_g22("p3b_kernel", "p3", 1), p4, gen_g22("p5b_kernel", "p5", 1)]
assemble(L, sys.argv[1] if len(sys.argv) > 1 else "out.s")
```

```python
from asmlib import *
from layout import *

P_X, P_WQ, P_WK, P_WV, P_WO, P_BX, P_WG, P_WU, P_WD, P_OUT, P_DBG, P_WS = [16 + 2 * i for i in range(12)]
S_WS = 40
S_WAVE = 3


STAMP = False
STAMP_BASE = 0x2000000
_stamp_slot = [0]


def stamp_mid(k, idx):
    if STAMP:
        k(f"s_memtime s[98:99]\ns_waitcnt lgkmcnt(0)\ns_mov_b32 s{70+idx}, s98")


def prologue(k, nwg):
    if STAMP:
        k("s_memtime s[90:91]\ns_memrealtime s[92:93]")
        for i in range(12): k(f"s_mov_b32 s{70+i}, 0")
    k(f"""
    s_cmp_ge_u32 s2, {nwg}
    s_cbranch_scc1 {k.name}_end
    s_load_dwordx16 s[16:31], s[0:1], 0
    s_load_dwordx8 s[32:39], s[0:1], 64
    v_and_b32 v1, 63, v0
    v_lshrrev_b32 v2, 6, v0
    s_nop 0
    v_readfirstlane_b32 s3, v2
    """)


def wait_ptrs(k):
    k("s_waitcnt lgkmcnt(0)")
    srd(k, S_WS, P_WS, WS_USED)


def srd(k, s, ptr, size):
    k(f"""
    s_mov_b32 s{s}, s{ptr}
    s_and_b32 s{s+1}, s{ptr+1}, 0xffff
    s_mov_b32 s{s+2}, {size}
    s_mov_b32 s{s+3}, 0x20000
    """)


def epilogue(k):
    if STAMP:
        k.lines = [(f"s_branch {k.name}_stamp" if l == "s_endpgm" else l) for l in k.lines]
        k(f"""
        {k.name}_stamp:
        s_mov_b64 exec, -1
        s_waitcnt vmcnt(0) lgkmcnt(0)
        s_memtime s[98:99]
        s_memrealtime s[100:101]
        s_load_dwordx2 s[88:89], s[0:1], 80
        s_waitcnt lgkmcnt(0)
        s_mov_b32 s84, s{P_WS}
        s_and_b32 s85, s{P_WS+1}, 0xffff
        s_mov_b32 s86, 0x4000000
        s_mov_b32 s87, 0x20000
        s_lshr_b32 s88, s88, 9
        s_and_b32 s88, s88, 31
        s_lshl_b32 s88, s88, 8
        s_add_u32 s88, s88, s2
        s_lshl_b32 s88, s88, 2
        s_add_u32 s88, s88, s3
        s_lshl_b32 s88, s88, 6
        s_add_u32 s88, s88, {STAMP_BASE}
        v_mov_b32 v0, s90
        v_mov_b32 v1, s98
        v_mov_b32 v2, s92
        v_mov_b32 v3, s100
        v_mov_b32 v4, s70
        v_mov_b32 v5, s71
        v_mov_b32 v6, s72
        v_mov_b32 v7, s73
        v_mov_b32 v8, s74
        v_mov_b32 v9, s75
        v_mov_b32 v10, s76
        v_mov_b32 v11, s77
        v_mov_b32 v12, s78
        v_mov_b32 v13, s79
        v_mov_b32 v14, s80
        v_mov_b32 v15, s81
        v_mov_b32 v16, 0
        s_mov_b64 exec, 1
        buffer_store_dwordx4 v[0:3], v16, s[84:87], s88 offen
        buffer_store_dwordx4 v[4:7], v16, s[84:87], s88 offen offset:16
        buffer_store_dwordx4 v[8:11], v16, s[84:87], s88 offen offset:32
        buffer_store_dwordx4 v[12:15], v16, s[84:87], s88 offen offset:48
        s_endpgm
        """)
    k(f"""
    {k.name}_end:
    s_endpgm
    """)


class VM:
    def __init__(self, k):
        self.k = k; self.tags = []; self.done = 0

    def issue(self, text, tag=None):
        self.k(text); self.tags.append(tag)

    def count_after(self, tag):
        idx = max(i for i, t in enumerate(self.tags) if t == tag)
        return len(self.tags) - 1 - idx, idx

    def wait(self, tag, extra=""):
        n, idx = self.count_after(tag)
        if idx < self.done and not extra:
            return
        assert n <= 63, n
        self.done = max(self.done, idx + 1)
        self.k(f"s_waitcnt vmcnt({n}) {extra}".strip())

    def waitstr(self, tag):
        n, idx = self.count_after(tag)
        if idx < self.done:
            return None
        assert n <= 63, n
        self.done = max(self.done, idx + 1)
        return f"s_waitcnt vmcnt({n})"


class LG:
    def __init__(self):
        self.tags = []; self.done = 0

    def issue(self, tag):
        self.tags.append(tag)

    def waitstr(self, tag):
        idx = max(i for i, t in enumerate(self.tags) if t == tag)
        if idx < self.done:
            return None
        n = len(self.tags) - 1 - idx
        n = min(n, 15)
        self.done = idx + 1
        return f"s_waitcnt lgkmcnt({n})"

    def all_done(self):
        self.done = len(self.tags)


def ws_sub_srd(k, s, off, size):
    k(f"""
    s_add_u32 s{s}, s{P_WS}, {off}
    s_addc_u32 s{s+1}, s{P_WS+1}, 0
    s_and_b32 s{s+1}, s{s+1}, 0xffff
    s_mov_b32 s{s+2}, {size}
    s_mov_b32 s{s+3}, 0x20000
    """)
```

```python
from common import *
from k_p1 import f2h, qkv_epilogue, qkv_setup, stats_finish
MF = "v_mfma_f32_32x32x16_bf16"


def gen_g22(name, kind, layer, AHEAD=5):
    k = Kernel(name)
    NWG = 224 if kind == "p5" else 256
    prologue(k, NWG)
    KB = 28 if kind == "p1" else 112
    WBASE, XBASE = (WQF, X2F) if kind == "p1" else (WDF, HF)
    NCH = KB // 4
    RCH = min(NCH, 9)
    RB = RCH * 4096
    k(f"""
    s_and_b32 s4, s2, 7
    s_lshl_b32 s4, s4, 2
    s_lshr_b32 s5, s2, 3
    s_and_b32 s6, s5, 3
    s_add_u32 s4, s4, s6
    s_lshr_b32 s5, s5, 2
    v_lshlrev_b32 v4, 4, v1
    s_and_b32 s13, s3, 1
    s_lshl_b32 s7, s5, 1
    s_add_u32 s57, s7, s13
    s_lshl_b32 s8, s4, 1
    s_add_u32 s9, s8, s13
    s_mul_i32 s10, s57, {KB*1024}
    s_add_u32 s10, s10, {WBASE}
    s_mul_i32 s11, s9, {KB*1024}
    s_add_u32 s11, s11, {XBASE}
    s_cmp_lt_u32 s3, 2
    s_cselect_b32 s10, s10, s11
    s_mul_i32 s11, s3, {RB}
    s_lshr_b32 s12, s3, 1
    s_add_u32 s56, s8, s12
    s_mul_i32 s14, s13, {RB}
    v_add_u32 v5, s14, v4
    s_add_u32 s14, s12, 2
    s_mul_i32 s14, s14, {RB}
    v_add_u32 v6, s14, v4
    v_and_b32 v2, 31, v1
    v_lshrrev_b32 v3, 5, v1
    """)
    wait_ptrs(k)
    stamp_mid(k, 0)
    vm = VM(k)

    def dma(c):
        k(f"s_add_u32 m0, s11, {(c % RCH)*4096}\ns_add_u32 s15, s10, {c*4096}")
        for i in range(4):
            vm.issue(f"buffer_load_dwordx4 v4, s[40:43], s15 offen offset:{i*1024} lds", ("c", c))
    for c in range(AHEAD):
        dma(c)
    if kind == "p1":
        qkv_setup(k)
    RES = 16
    STT = 128
    CS = 160

    def side_loads():
        if kind == "p5":
            k(f"""
            s_mul_i32 s6, s56, 28
            s_lshl_b32 s7, s57, 1
            s_add_u32 s6, s6, s7
            s_lshl_b32 s58, s6, 10
            s_add_u32 s6, s58, {X1F}
            """)
            for h in range(2):
                vm.issue(f"buffer_load_dwordx4 v[{RES+4*h}:{RES+4*h+3}], v4, s[40:43], s6 offen offset:{h*1024}", "res")
            if layer == 1:
                srd(k, 44, P_OUT, XBYTES)
                k(f"""
                s_lshl_b32 s6, s56, 5
                v_add_u32 v7, s6, v2
                v_mul_u32_u24 v7, 896, v7
                v_lshl_add_u32 v7, v3, 4, v7
                """)
        else:
            k(f"""
            s_mul_i32 s6, s56, {14*512}
            s_add_u32 s6, s6, {ST2}
            v_lshlrev_b32 v8, 3, v1
            v_lshlrev_b32 v9, 4, v3
            s_lshl_b32 s7, s57, 7
            s_add_u32 s7, s7, {CSQ}
            """)
            for c in range(14):
                if c == 8:
                    k("s_add_u32 s6, s6, 4096")
                vm.issue(f"buffer_load_dwordx2 v[{STT+2*c}:{STT+2*c+1}], v8, s[40:43], s6 offen offset:{(c%8)*512}", "res")
            for q in range(4):
                vm.issue(f"buffer_load_dwordx4 v[{CS+4*q}:{CS+4*q+3}], v9, s[40:43], s7 offen offset:{q*32}", "res")
    ACC = 64
    FR = [80, 176]

    def mfmas(c):
        b = FR[c & 1]
        o = []
        for i in range(4):
            cc = "0" if (c == 0 and i == 0) else f"v[{ACC}:{ACC+15}]"
            o.append(f"{MF} v[{ACC}:{ACC+15}], v[{b+8*i}:{b+8*i+3}], v[{b+8*i+4}:{b+8*i+7}], {cc}")
        return o
    side_at = max(0, NCH - AHEAD - 1) if kind == "p5" else NCH - AHEAD
    for c in range(NCH):
        vm.wait(("c", c), "lgkmcnt(0)")
        k("s_barrier")
        if c == 0: stamp_mid(k, 1)
        if c == NCH // 2: stamp_mid(k, 2)
        b = FR[c & 1]
        mf = mfmas(c - 1) if c >= 1 else []
        for i in range(4):
            off = ((c % RCH) * 4 + i) * 1024
            k(f"ds_read_b128 v[{b+8*i}:{b+8*i+3}], v5 offset:{off}")
            k(f"ds_read_b128 v[{b+8*i+4}:{b+8*i+7}], v6 offset:{off}")
            if mf: k(mf[i])
        if c + AHEAD < NCH:
            dma(c + AHEAD)
        if c == side_at:
            side_loads()
    k("s_waitcnt lgkmcnt(0)")
    for m in mfmas(NCH - 1): k(m)
    stamp_mid(k, 3)
    vm.wait("res")
    if kind == "p1":
        for c in range(1, 14):
            k(f"v_add_f32 v{STT}, v{STT}, v{STT+2*c}")
            k(f"v_add_f32 v{STT+1}, v{STT+1}, v{STT+2*c+1}")
        k(f"""
        v_mov_b32 v30, v{STT}
        v_mov_b32 v31, v{STT+1}
        s_nop 0
        v_permlane32_swap_b32 v30, v{STT}
        v_permlane32_swap_b32 v31, v{STT+1}
        v_add_f32 v30, v30, v{STT}
        v_add_f32 v31, v31, v{STT+1}
        """)
        stats_finish(k, 30, 31)
        qkv_epilogue(k, ACC, CS)
        epilogue(k)
        return k, dict(grid=NWG, block=256, lds=4 * RB)
    U = 80
    k("s_mov_b32 s14, 0xffff0000")
    for d in range(8):
        k(f"v_lshlrev_b32 v{U+2*d}, 16, v{RES+d}")
        k(f"v_and_b32 v{U+2*d+1}, s14, v{RES+d}")
    for r in range(16):
        k(f"v_add_f32 v{ACC+r}, v{ACC+r}, v{U+r}")
    P = 24
    for d in range(8):
        k(f"v_cvt_pk_bf16_f32 v{P+d}, v{ACC+2*d}, v{ACC+2*d+1}")
    if layer == 0:
        k(f"""
        s_add_u32 s6, s58, {X2F}
        buffer_store_dwordx4 v[{P}:{P+3}], v4, s[40:43], s6 offen
        buffer_store_dwordx4 v[{P+4}:{P+7}], v4, s[40:43], s6 offen offset:1024
        """)
        for d in range(8):
            k(f"v_lshlrev_b32 v{ACC+2*d}, 16, v{P+d}")
            k(f"v_and_b32 v{ACC+2*d+1}, s14, v{P+d}")
        k(f"""
        v_add_f32 v8, v{ACC}, v{ACC+1}
        v_mul_f32 v9, v{ACC}, v{ACC}
        v_fmac_f32 v9, v{ACC+1}, v{ACC+1}
        """)
        for r in range(2, 16):
            k(f"v_add_f32 v8, v8, v{ACC+r}")
            k(f"v_fmac_f32 v9, v{ACC+r}, v{ACC+r}")
        k(f"""
        s_mul_i32 s6, s56, 14
        s_add_u32 s6, s6, s57
        s_lshl_b32 s6, s6, 9
        s_add_u32 s6, s6, {ST2}
        v_lshlrev_b32 v10, 3, v1
        buffer_store_dwordx2 v[8:9], v10, s[40:43], s6 offen
        """)
    else:
        k(f"""
        s_lshl_b32 s6, s57, 6
        v_permlane32_swap_b32 v{P}, v{P+2}
        v_permlane32_swap_b32 v{P+1}, v{P+3}
        v_permlane32_swap_b32 v{P+4}, v{P+6}
        v_permlane32_swap_b32 v{P+5}, v{P+7}
        buffer_store_dwordx4 v[{P}:{P+3}], v7, s[44:47], s6 offen
        buffer_store_dwordx4 v[{P+4}:{P+7}], v7, s[44:47], s6 offen offset:32
        """)
    epilogue(k)
    return k, dict(grid=NWG, block=256, lds=4 * RB)
```

```python
from common import *
import struct, math


def f2h(x):
    return "0x%08x" % struct.unpack("<I", struct.pack("<f", x))[0]


QSCALE = (28 ** -0.5) * math.log2(math.e)
MF = "v_mfma_f32_32x32x16_bf16"


def stats_finish(k, s1, s2):
    k(f"""
    v_mul_f32 v{s1}, {f2h(1.0/448)}, v{s1}
    v_mul_f32 v{s2}, {f2h(1.0/448)}, v{s2}
    v_fma_f32 v{s2}, -v{s1}, v{s1}, v{s2}
    v_max_f32 v{s2}, 0, v{s2}
    v_add_f32 v{s2}, {f2h(1e-5)}, v{s2}
    v_rsq_f32 v{s2}, v{s2}
    """)


def qkv_setup(k):
    k(f"""
    s_lshl_b32 s6, s4, 1
    s_add_u32 s6, s6, s12
    s_lshl_b32 s7, s5, 1
    s_add_u32 s62, s7, s13
    s_lshl_b32 s8, s6, 4
    s_add_u32 s8, s8, s62
    s_lshl_b32 s8, s8, 11
    s_add_u32 s60, s8, {QF}
    v_lshlrev_b32 v50, 4, v1
    s_lshl_b32 s9, s6, 12
    s_add_u32 s9, s9, {KVF}
    s_and_b32 s6, s62, 7
    s_lshr_b32 s7, s6, 2
    s_lshl_b32 s7, s7, 10
    s_and_b32 s8, s6, 1
    s_lshl_b32 s8, s8, 9
    s_add_u32 s7, s7, s8
    s_and_b32 s8, s6, 2
    s_lshl_b32 s8, s8, 2
    s_add_u32 s7, s7, s8
    s_lshl_b32 s8, s6, 6
    s_add_u32 s8, s8, 2048
    s_cmp_ge_u32 s62, 8
    s_cselect_b32 s7, s8, s7
    s_cselect_b64 vcc, -1, 0
    s_add_u32 s61, s9, s7
    v_lshrrev_b32 v51, 4, v2
    v_lshlrev_b32 v51, 10, v51
    v_bfe_u32 v52, v2, 2, 1
    v_lshl_add_u32 v51, v52, 9, v51
    v_and_b32 v52, 3, v2
    v_lshl_add_u32 v51, v52, 1, v51
    v_bfe_u32 v52, v2, 3, 1
    v_lshl_add_u32 v51, v52, 3, v51
    v_lshlrev_b32 v52, 4, v2
    v_cndmask_b32 v51, v52, v51, vcc
    """)


def qkv_epilogue(k, ACC, CS):
    k(f"""
    v_mul_f32 v36, {f2h(QSCALE)}, v31
    v_cmp_eq_u32 vcc, 1, v3
    v_sub_f32 v30, 0, v30
    v_cndmask_b32 v37, v36, v31, vcc
    """)
    for r in range(16):
        k(f"v_fmac_f32 v{ACC+r}, v30, v{CS+r}")
    for r in range(16):
        k(f"v_mul_f32 v{ACC+r}, v{36 if r < 12 else 37}, v{ACC+r}")
    PKD = 40
    for d in range(8):
        k(f"v_cvt_pk_bf16_f32 v{PKD+d}, v{ACC+2*d}, v{ACC+2*d+1}")
    k(f"""
    buffer_store_dwordx4 v[{PKD}:{PKD+3}], v50, s[40:43], s60 offen
    buffer_store_dwordx4 v[{PKD+4}:{PKD+7}], v50, s[40:43], s60 offen offset:1024
    s_and_b32 s10, s62, 7
    v_mov_b32 v48, v{PKD+6}
    v_mov_b32 v49, v{PKD+7}
    s_mov_b32 exec_lo, 0
    s_cmp_lg_u32 s10, 7
    s_cbranch_scc1 {k.name}_kv1
    s_cmp_ge_u32 s62, 8
    s_cselect_b32 s10, 0x3f80, 0
    v_mov_b32 v48, s10
    v_mov_b32 v49, 0
    {k.name}_kv1:
    s_cmp_ge_u32 s62, 8
    s_cbranch_scc1 {k.name}_v
    buffer_store_dwordx2 v[48:49], v51, s[40:43], s61 offen
    s_branch {k.name}_kvd
    {k.name}_v:
    buffer_store_short v48, v51, s[40:43], s61 offen
    buffer_store_short_d16_hi v48, v51, s[40:43], s61 offen offset:16
    buffer_store_short v49, v51, s[40:43], s61 offen offset:32
    buffer_store_short_d16_hi v49, v51, s[40:43], s61 offen offset:48
    {k.name}_kvd:
    s_mov_b64 exec, -1
    """)


def gen_p1a(name):
    k = Kernel(name)
    prologue(k, 256)
    WB = 57344
    PB = WB + 512 * 128
    STB = PB + 28 * 1024
    LDS = STB + 512
    k(f"""
    s_and_b32 s4, s2, 7
    s_lshl_b32 s4, s4, 2
    s_lshr_b32 s5, s2, 3
    s_and_b32 s6, s5, 3
    s_add_u32 s4, s4, s6
    s_lshr_b32 s5, s5, 2
    v_and_b32 v2, 31, v1
    v_lshrrev_b32 v3, 5, v1
    v_lshrrev_b32 v4, 3, v1
    v_and_b32 v5, 7, v1
    v_lshrrev_b32 v6, 4, v1
    """)
    k(f"""
    s_lshl_b32 s6, s4, 6
    s_lshl_b32 s7, s3, 4
    s_add_u32 s6, s6, s7
    v_add_u32 v7, s6, v4
    v_mul_u32_u24 v7, 896, v7
    v_xor_b32 v8, v5, v6
    v_lshl_add_u32 v8, v8, 4, v7
    v_xor_b32 v9, v5, v6
    v_xor_b32 v9, 4, v9
    v_lshl_add_u32 v9, v9, 4, v7
    v_add_u32 v9, {8*896}, v9
    """)
    k(f"""
    s_mul_i32 s6, s5, 112
    s_mul_i32 s7, s3, {8*896}
    s_add_u32 s6, s6, s7
    v_mul_u32_u24 v10, 896, v4
    v_lshl_add_u32 v10, v5, 4, v10
    v_add_u32 v10, s6, v10
    """)
    k(f"""
    s_lshl_b32 s6, s3, 6
    v_add_u32 v11, s6, v1
    v_lshlrev_b32 v12, 7, v11
    v_add_u32 v12, {WB+112}, v12
    v_mul_u32_u24 v11, 56, v11
    s_and_b32 s7, s5, 3
    s_lshl_b32 s7, s7, 4
    v_add_u32 v11, s7, v11
    s_mov_b32 s8, {256*56}
    s_lshl_b32 s9, s3, 11
    s_lshl_b32 s10, s3, 10
    s_add_u32 s10, s10, {WB}
    """)
    wait_ptrs(k)
    stamp_mid(k, 0)
    vm = VM(k)
    srd(k, 44, P_X, XBYTES)
    srd(k, 48, P_WQ, D * D * 2)
    k(f"""
    s_cmp_lt_u32 s5, 4
    s_cselect_b32 s52, s{P_WK}, s{P_WV}
    s_cselect_b32 s53, s{P_WK+1}, s{P_WV+1}
    s_and_b32 s53, s53, 0xffff
    s_mov_b32 s54, {D*DH*2}
    s_mov_b32 s55, 0x20000
    """)
    for c in range(7):
        k(f"s_add_u32 m0, s9, {c*8192}\ns_mov_b32 s11, {c*128}")
        vm.issue("buffer_load_dwordx4 v8, s[44:47], s11 offen lds", "x")
        k(f"s_add_u32 m0, s9, {c*8192+1024}\ns_nop 0")
        vm.issue("buffer_load_dwordx4 v9, s[44:47], s11 offen lds", "x")
    vm.issue("buffer_load_dwordx4 v[16:19], v11, s[52:55], 0 offen", "kv")
    vm.issue("buffer_load_dwordx4 v[20:23], v11, s[52:55], s8 offen", "kv")
    k("s_mov_b32 exec_lo, 0x7f7f7f7f\ns_mov_b32 exec_hi, 0x7f7f7f7f")
    for t in range(14):
        k(f"s_add_u32 m0, s10, {t*4096}\ns_mov_b32 s11, {t*32*896}")
        vm.issue("buffer_load_dwordx4 v10, s[48:51], s11 offen lds", ("w", t // 2))
    k("s_mov_b64 exec, -1")
    stamp_mid(k, 1)
    LN = k.name
    k(f"""
    s_and_b32 s6, s2, 7
    s_lshr_b32 s7, s2, 3
    s_mul_i32 s7, s7, 7
    s_add_u32 s7, s7, s6
    s_sub_u32 s66, s7, 1
    s_cmp_eq_u32 s6, 0
    s_cselect_b32 s66, 255, s66
    s_mov_b32 s59, 0x20000
    s_cmp_ge_u32 s66, 112
    s_cbranch_scc1 {LN}_u1
    s_mov_b32 s63, 0
    s_cmp_lt_u32 s3, 2
    s_cselect_b32 s56, s{P_WG}, s{P_WU}
    s_cselect_b32 s57, s{P_WG+1}, s{P_WU+1}
    s_mov_b32 s58, {D*F*2}
    s_mov_b32 s65, {F*2}
    s_and_b32 s6, s66, 3
    s_mul_i32 s6, s6, 112
    s_and_b32 s7, s3, 1
    s_mul_i32 s7, s7, 56
    s_add_u32 s6, s6, s7
    s_mul_i32 s64, s6, {F*2}
    s_lshr_b32 s67, s66, 2
    s_and_b32 s68, s66, 3
    s_branch {LN}_u9
    {LN}_u1:
    s_mov_b32 s65, {D*2}
    s_cmp_ge_u32 s66, 168
    s_cbranch_scc1 {LN}_u2
    s_mov_b32 s63, 1
    s_mov_b32 s56, s{P_WD}
    s_mov_b32 s57, s{P_WD+1}
    s_mov_b32 s58, {D*F*2}
    s_sub_u32 s6, s66, 112
    s_branch {LN}_u3
    {LN}_u2:
    s_mov_b32 s63, 2
    s_mov_b32 s56, s{P_WO}
    s_mov_b32 s57, s{P_WO+1}
    s_mov_b32 s58, {D*D*2}
    s_sub_u32 s6, s66, 168
    s_cmp_lt_u32 s66, 182
    s_cbranch_scc1 {LN}_u3
    s_mov_b32 s63, 3
    s_mov_b32 s58, 0
    s_mov_b32 s6, 0
    {LN}_u3:
    s_mul_i32 s68, s6, 9363
    s_lshr_b32 s68, s68, 16
    s_mul_i32 s7, s68, 7
    s_sub_u32 s67, s6, s7
    s_mul_i32 s6, s68, 224
    s_mul_i32 s7, s3, 56
    s_add_u32 s6, s6, s7
    s_mul_i32 s64, s6, {D*2}
    {LN}_u9:
    s_and_b32 s57, s57, 0xffff
    s_lshl_b32 s6, s67, 7
    s_add_u32 s64, s64, s6
    v_mul_lo_u32 v13, v4, s65
    v_lshl_add_u32 v13, v5, 4, v13
    s_lshl_b32 s65, s65, 3
    s_mul_i32 s6, s3, {7*1024}
    s_add_u32 s6, s6, {PB}
    """)
    for i in range(7):
        k(f"s_add_u32 m0, s6, {i*1024}\ns_nop 0")
        vm.issue("buffer_load_dwordx4 v13, s[56:59], s64 offen lds", "pre")
        k("s_add_u32 s64, s64, s65")
    SR = 64
    k(f"""
    v_and_b32 v13, 15, v1
    v_lshrrev_b32 v14, 3, v13
    v_lshlrev_b32 v14, 10, v14
    v_and_b32 v15, 7, v13
    v_lshl_add_u32 v14, v15, 7, v14
    v_bfe_u32 v15, v13, 1, 2
    v_xor_b32 v15, v15, v6
    v_lshl_add_u32 v14, v15, 5, v14
    v_add_u32 v14, s9, v14
    s_mov_b32 s14, 0x3f803f80
    v_mov_b32 v30, 0
    v_mov_b32 v31, 0
    """)
    vm.wait("x")
    for c in range(7):
        for h in range(2):
            r = SR + 8 * c + 4 * h
            k(f"ds_read_b128 v[{r}:{r+3}], v14 offset:{c*8192+16*h}")
    k(f"""
    s_lshr_b32 s12, s3, 1
    s_and_b32 s13, s3, 1
    s_lshl_b32 s6, s12, 5
    v_add_u32 v32, s6, v2
    v_lshlrev_b32 v53, 3, v32
    v_add_u32 v53, {STB}, v53
    v_lshrrev_b32 v33, 3, v32
    v_lshlrev_b32 v33, 10, v33
    v_and_b32 v34, 7, v32
    v_lshl_add_u32 v33, v34, 7, v33
    v_bfe_u32 v34, v32, 1, 3
    """)
    for q in range(4):
        k(f"""
        v_add_u32 v32, {2*q}, v3
        v_xor_b32 v32, v32, v34
        v_lshl_add_u32 v{24+q}, v32, 4, v33
        """)
    k(f"""
    v_bfe_u32 v32, v1, 2, 2
    v_bfe_u32 v33, v1, 4, 1
    v_and_b32 v34, 3, v1
    v_lshl_add_u32 v33, v33, 2, v34
    v_lshlrev_b32 v34, 3, v33
    s_mul_i32 s6, s13, 56
    v_add_u32 v34, s6, v34
    s_lshl_b32 s7, s13, 3
    s_add_u32 s7, s7, 112
    v_mov_b32 v29, s7
    v_cmp_eq_u32 vcc, 7, v33
    v_cndmask_b32 v34, v34, v29, vcc
    v_add_u32 v34, {WB}, v34
    v_lshl_add_u32 v29, v3, 2, v32
    v_lshl_add_u32 v29, v29, 7, v34
    v_lshl_add_u32 v28, v3, 3, v32
    v_lshl_add_u32 v28, v28, 7, v34
    """)
    qkv_setup(k)
    for c in range(7):
        k(f"s_waitcnt lgkmcnt({12-2*c})")
        for d in range(8):
            r = SR + 8 * c + d
            k(f"v_dot2_f32_bf16 v30, v{r}, s14, v30")
            k(f"v_dot2_f32_bf16 v31, v{r}, v{r}, v31")
    vm.wait("kv")
    k(f"""
    ds_write_b128 v12, v[16:19]
    ds_write_b128 v12, v[20:23] offset:32768
    v_mov_b32 v36, v30
    v_mov_b32 v37, v31
    s_nop 0
    v_permlane32_swap_b32 v30, v36
    v_permlane32_swap_b32 v31, v37
    v_add_f32 v30, v30, v36
    v_add_f32 v31, v31, v37
    v_mov_b32 v36, v30
    v_mov_b32 v37, v31
    s_nop 0
    v_permlane16_swap_b32 v30, v36
    v_permlane16_swap_b32 v31, v37
    v_add_f32 v30, v30, v36
    v_add_f32 v31, v31, v37
    """)
    stats_finish(k, 30, 31)
    k(f"""
    s_lshl_b32 s6, s3, 7
    s_add_u32 s6, s6, {STB}
    v_lshl_add_u32 v13, v13, 3, s6
    ds_write_b64 v13, v[30:31]
    v_mov_b32 v32, s14
    v_mov_b32 v33, s14
    v_mov_b32 v34, s14
    v_mov_b32 v35, s14
    """)
    stamp_mid(k, 2)
    ACC, CS, RING = 64, 80, 96
    stages = [(0, 8, 1), (8, 16, 3), (16, 28, 6)]

    def reads(kb):
        r = RING + 8 * (kb % 4)
        return [f"ds_read_b64_tr_b16 v[{r}:{r+1}], v28 offset:{kb*2048}",
                f"ds_read_b64_tr_b16 v[{r+2}:{r+3}], v28 offset:{kb*2048+512}",
                f"ds_read_b128 v[{r+4}:{r+7}], v{24+(kb&3)} offset:{(kb>>2)*8192}"]
    for (k0, k1, wg) in stages:
        vm.wait(("w", wg), "lgkmcnt(0)")
        k("s_barrier")
        if k0 == 0: stamp_mid(k, 3)
        for kb in range(k0, min(k0 + 3, k1)):
            for r in reads(kb): k(r)
        for kb in range(k0, k1):
            if kb + 3 < k1:
                for r in reads(kb + 3): k(r)
            out = min(3, k1 - 1 - kb) * 3
            k(f"s_waitcnt lgkmcnt({out})")
            r = RING + 8 * (kb % 4)
            c0 = "0" if kb == 0 else f"v[{ACC}:{ACC+15}]"
            c1 = "0" if kb == 0 else f"v[{CS}:{CS+15}]"
            k(f"{MF} v[{ACC}:{ACC+15}], v[{r}:{r+3}], v[{r+4}:{r+7}], {c0}")
            k(f"{MF} v[{CS}:{CS+15}], v[{r}:{r+3}], v[32:35], {c1}")
    k("ds_read_b64 v[30:31], v53")
    stamp_mid(k, 4)
    vm.wait("pre", "lgkmcnt(0)")
    k("s_barrier")
    qkv_epilogue(k, ACC, CS)
    stamp_mid(k, 5)
    T = 96
    k(f"""
    v_bfe_u32 v13, v1, 2, 2
    v_and_b32 v14, 3, v1
    v_lshlrev_b32 v14, 3, v14
    v_bfe_u32 v15, v1, 4, 1
    s_cmp_eq_u32 s63, 3
    s_cbranch_scc1 {LN}_t3
    s_cmp_eq_u32 s63, 2
    s_cbranch_scc1 {LN}_t2
    s_cmp_eq_u32 s63, 1
    s_cbranch_scc1 {LN}_t1
    """)

    def tr(addr, jstride, ehstride):
        for j in range(7):
            for eh in range(2):
                k(f"ds_read_b64_tr_b16 v[{T+4*j+2*eh}:{T+4*j+2*eh+1}], v{addr} offset:{j*jstride+eh*ehstride}")
    k(f"""
    v_lshl_add_u32 v13, v3, 2, v13
    v_lshl_add_u32 v13, v13, 7, v14
    v_mul_u32_u24 v15, 14336, v15
    s_lshl_b32 s6, s3, 5
    s_add_u32 s6, s6, {PB}
    v_add3_u32 v13, v13, v15, s6
    """)
    tr(13, 2048, 1024)
    k(f"""
    s_lshl_b32 s6, s67, 2
    s_add_u32 s6, s6, s3
    s_mul_i32 s8, s6, 9363
    s_lshr_b32 s8, s8, 16
    s_mul_i32 s9, s8, 7
    s_sub_u32 s9, s6, s9
    s_mul_i32 s8, s8, {196*1024}
    s_add_u32 s8, s8, {WGUF}
    s_mul_i32 s12, s68, 7
    """)
    for j in range(7):
        k(f"""
        s_add_u32 s14, s12, {j}
        s_mul_i32 s10, s14, 7
        s_add_u32 s10, s10, s9
        s_mul_i32 s11, s9, {28-KA}
        s_add_u32 s11, s11, s14
        s_add_u32 s11, s11, {KA*7-KA}
        s_cmp_lt_u32 s14, {KA}
        s_cselect_b32 s10, s10, s11
        s_lshl_b32 s10, s10, 10
        s_add_u32 s10, s10, s8
        s_waitcnt lgkmcnt({12-2*j})
        buffer_store_dwordx4 v[{T+4*j}:{T+4*j+3}], v50, s[40:43], s10 offen
        """)
    k("s_endpgm")

    def lin_store(stride):
        for j in range(7):
            k(f"""
            s_waitcnt lgkmcnt({12-2*j})
            buffer_store_dwordx4 v[{T+4*j}:{T+4*j+3}], v50, s[40:43], s10 offen
            s_add_u32 s10, s10, {stride}
            """)
        k("s_endpgm")
    k(f"""
    {LN}_t1:
    v_lshl_add_u32 v13, v3, 2, v13
    v_lshl_add_u32 v13, v13, 7, v14
    v_lshl_add_u32 v13, v15, 5, v13
    s_mul_i32 s6, s12, {7*2048}
    s_lshl_b32 s7, s13, 6
    s_add_u32 s6, s6, s7
    s_add_u32 s6, s6, {PB}
    v_add_u32 v13, s6, v13
    """)
    tr(13, 2048, 1024)
    k(f"""
    s_lshl_b32 s6, s67, 1
    s_add_u32 s6, s6, s13
    s_mul_i32 s10, s6, 112
    s_mul_i32 s6, s68, 14
    s_add_u32 s10, s10, s6
    s_mul_i32 s6, s12, 7
    s_add_u32 s10, s10, s6
    s_lshl_b32 s10, s10, 10
    s_add_u32 s10, s10, {WDF}
    """)
    lin_store(1024)
    k(f"""
    {LN}_t2:
    v_lshl_add_u32 v13, v6, 3, v13
    v_lshl_add_u32 v13, v13, 7, v14
    s_lshl_b32 s6, s3, 5
    s_add_u32 s6, s6, {PB}
    v_add_u32 v13, s6, v13
    """)
    tr(13, 4096, 512)
    k(f"""
    s_lshl_b32 s6, s67, 2
    s_add_u32 s6, s6, s3
    s_mul_i32 s8, s6, 9363
    s_lshr_b32 s8, s8, 16
    s_mul_i32 s9, s8, 7
    s_sub_u32 s9, s6, s9
    s_mul_i32 s10, s8, 98
    s_add_u32 s10, s10, s9
    s_mul_i32 s6, s68, 49
    s_add_u32 s10, s10, s6
    s_lshl_b32 s10, s10, 10
    s_add_u32 s10, s10, {WO16}
    """)
    lin_store(7 * 1024)
    k(f"""
    {LN}_t3:
    s_cmp_ge_u32 s4, 4
    s_cbranch_scc1 {LN}_fin
    s_cmp_lg_u32 s12, 0
    s_cbranch_scc1 {LN}_fin
    s_mul_i32 s6, s4, {7*2048}
    v_add_u32 v29, s6, v29
    """)
    tr(29, 2048, 1024)
    k(f"""
    s_mul_i32 s10, s62, 28
    s_mul_i32 s6, s4, 7
    s_add_u32 s10, s10, s6
    s_lshl_b32 s10, s10, 10
    s_add_u32 s10, s10, {WQF}
    s_lshl_b32 s6, s62, 7
    s_add_u32 s6, s6, {CSQ}
    v_lshlrev_b32 v13, 4, v3
    """)
    for q in range(4):
        k(f"buffer_store_dwordx4 v[{CS+4*q}:{CS+4*q+3}], v13, s[40:43], s6 offen offset:{q*32}")
    lin_store(1024)
    k(f"{LN}_fin:\ns_endpgm")
    epilogue(k)
    return k, dict(grid=256, block=256, lds=LDS)
```

```python
from common import *
from k_p1 import f2h

MF = "v_mfma_f32_32x32x16_bf16"
MF16 = "v_mfma_f32_16x16x32_bf16"


def gen_p2(name, layer):
    k = Kernel(name)
    prologue(k, 256)
    Q, O, SA, SB, P = 16, 48, 112, 128, 144
    WV0, NWV = 152, 26
    WA0, NWA = 64, 48
    NWL = 98 - NWV - NWA
    RED = 0
    WL = 48 * 1024
    OB = WL + 4 * NWL * 1024
    OSTR = 912
    STB = OB + 8 * OSTR
    LDS = STB + 256
    k(f"""
    s_and_b32 s4, s2, 7
    s_lshl_b32 s4, s4, 5
    s_lshr_b32 s5, s2, 3
    s_add_u32 s4, s4, s5
    s_lshr_b32 s5, s4, 2
    s_and_b32 s6, s4, 3
    s_lshl_b32 s6, s6, 3
    v_lshlrev_b32 v4, 4, v1
    v_and_b32 v2, 31, v1
    v_lshrrev_b32 v3, 5, v1
    s_lshl_b32 s8, s3, 16
    s_add_u32 s8, s8, {KVF}
    v_lshrrev_b32 v5, 3, v2
    v_lshlrev_b32 v5, 11, v5
    v_and_b32 v6, 7, v1
    v_add_u32 v6, s6, v6
    v_lshl_add_u32 v6, v3, 5, v6
    v_lshl_add_u32 v9, v6, 4, v5
    s_lshl_b32 s7, s5, 15
    s_add_u32 s7, s7, {QF}
    s_mul_i32 s46, s3, {98*1024}
    s_add_u32 s46, s46, {WO16}
    s_mul_i32 s47, s3, {NWL*1024}
    s_add_u32 s47, s47, {WL}
    """)
    for jj in range(4):
        k(f"""
        s_add_u32 s9, s3, {jj}
        s_and_b32 s9, s9, 3
        s_lshl_b32 s9, s9, 13
        s_add_u32 s{10+jj}, s7, s9
        """)
    wait_ptrs(k)
    stamp_mid(k, 0)
    vm = VM(k)
    order = [1, 2, 3, 0]
    NRING = 4

    def ab(t):
        return 16 * (t % NRING)

    def ld_kv(t, parts=(0, 1, 2, 3)):
        if parts[0] == 0:
            k(f"s_add_u32 s9, s8, {t*4096}")
        for f in parts:
            vm.issue(f"buffer_load_dwordx4 a[{ab(t)+4*f}:{ab(t)+4*f+3}], v4, s[40:43], s9 offen offset:{f*1024}", ("k" if f < 2 else "v", t))

    def ld_q(jj):
        for h in range(2):
            vm.issue(f"buffer_load_dwordx4 v[{Q+8*jj+4*h}:{Q+8*jj+4*h+3}], v9, s[40:43], s{10+jj} offen offset:{h*1024}", ("q", jj))

    def wo_reg(fi):
        if fi < NWA:
            return f"a[{WA0+4*fi}:{WA0+4*fi+3}]"
        if fi < NWA + NWV:
            return f"v[{WV0+4*(fi-NWA)}:{WV0+4*(fi-NWA)+3}]"
        return None

    wo_list = list(range(NWA + NWV, 98)) + list(range(NWA + NWV))
    wo_state = {"last": None}

    def ld_wo():
        if not wo_list:
            return
        fi = wo_list.pop(0)
        r = wo_reg(fi)
        if r is None:
            li = fi - (NWA + NWV)
            if li % 4 == 0:
                k(f"s_add_u32 m0, s47, {li*1024}\ns_add_u32 s48, s46, {fi*1024}")
            vm.issue(f"buffer_load_dwordx4 v4, s[40:43], s48 offen offset:{(li%4)*1024} lds", "wo")
        else:
            if fi % 4 == 0 or fi == NWA:
                k(f"s_add_u32 s48, s46, {(fi//4)*4096}")
            vm.issue(f"buffer_load_dwordx4 {r}, v4, s[40:43], s48 offen offset:{(fi%4)*1024}", "wo")

    ld_kv(0, (0, 1))
    ld_q(1)
    ld_q(2)
    vm.issue(f"buffer_load_dwordx4 a[8:11], v4, s[40:43], s9 offen offset:2048", ("v", 0))
    vm.issue(f"buffer_load_dwordx4 a[12:15], v4, s[40:43], s9 offen offset:3072", ("v", 0))
    ld_q(3)
    ld_q(0)
    ld_kv(1)
    steps = [(t, jj) for t in range(16) for jj in order]
    Sb = [SA, SB]

    def qk(s, half):
        t, jj = steps[s]
        S = Sb[s & 1]
        c = "0" if half == 0 else f"v[{S}:{S+15}]"
        return f"{MF} v[{S}:{S+15}], a[{ab(t)+4*half}:{ab(t)+4*half+3}], v[{Q+8*jj+4*half}:{Q+8*jj+4*half+3}], {c}"

    def pv(s, half):
        t, jj = steps[s]
        o = O + 16 * jj
        c = "0" if (t == 0 and half == 0) else f"v[{o}:{o+15}]"
        return f"{MF} v[{o}:{o+15}], a[{ab(t)+8+4*half}:{ab(t)+8+4*half+3}], v[{P+4*half}:{P+4*half+3}], {c}"

    def need_qk(s):
        t, jj = steps[s]
        if t >= 1:
            vm.wait(("v", t))
        vm.wait(("k", t)); vm.wait(("q", jj))

    for jj in range(1, 4):
        k(f"""
        s_add_u32 s14, s3, {jj}
        s_and_b32 s14, s14, 3
        s_mul_i32 s14, s14, {3*4096}
        s_add_u32 s14, s14, {RED + (jj-1)*4096}
        v_add_u32 v{5+jj}, s14, v4
        """)
    k(f"""
    s_mul_i32 s14, s3, {3*4096}
    s_add_u32 s14, s14, {RED}
    v_add_u32 v5, s14, v4
    """)

    def lds_wr(jj):
        o = O + 16 * jj
        return [f"ds_write_b128 v{5+jj}, v[{o+4*q}:{o+4*q+3}] offset:{q*1024}" for q in range(4)]

    need_qk(0)
    stamp_mid(k, 1)
    k(qk(0, 0)); k(qk(0, 1))
    ld_wo(); ld_wo()
    k("s_nop 5")
    n = len(steps)
    for s in range(n):
        t, jj = steps[s]
        S = Sb[s & 1]
        e = lambda i: f"v_exp_f32 v{S+i}, v{S+i}"
        c = lambda d: f"v_cvt_pk_bf16_f32 v{P+d}, v{S+2*d}, v{S+2*d+1}"
        if s == 32: stamp_mid(k, 2)
        if s + 1 < n:
            need_qk(s + 1)
            k(qk(s + 1, 0))
        if t + 2 < 16:
            ld_kv(t + 2, ((s & 3),))
        else:
            ld_wo()
        for i in range(4): k(e(i))
        if s > 0:
            k(pv(s - 1, 1))
        ld_wo()
        for i in range(4, 8): k(e(i))
        if s + 1 < n:
            k(qk(s + 1, 1))
        for d in range(4): k(c(d))
        for i in range(8, 11): k(e(i))
        vm.wait(("v", t))
        k(pv(s, 0))
        if s & 1:
            ld_wo()
        extra = []
        if t == 15 and s & 3 >= 2:
            extra = lds_wr(order[(s & 3) - 2])
        for i in range(11, 16):
            k(e(i))
            if extra: k(extra.pop(0))
        for d in range(4, 8): k(c(d))
    assert not wo_list
    stamp_mid(k, 3)
    k("s_nop 0")
    k(pv(n - 1, 1))
    for w in lds_wr(3): k(w)
    if layer == 0:
        srd(k, 52, P_X, XBYTES)
        k(f"""
        v_and_b32 v10, 7, v1
        s_lshl_b32 s14, s4, 3
        v_add_u32 v10, s14, v10
        v_mul_u32_u24 v10, 896, v10
        v_lshrrev_b32 v14, 4, v1
        v_lshl_add_u32 v10, v14, 3, v10
        s_mul_i32 s49, s3, {7*32}
        """)
    k(f"""
    v_and_b32 v15, 7, v1
    v_add_u32 v15, s6, v15
    v_bfe_u32 v14, v1, 4, 1
    v_lshl_add_u32 v15, v14, 5, v15
    v_lshlrev_b32 v15, 4, v15
    v_lshl_add_u32 v15, v3, 3, v15
    s_mul_i32 s50, s5, 28
    s_mul_i32 s14, s3, 7
    s_add_u32 s50, s50, s14
    s_lshl_b32 s50, s50, 10
    v_and_b32 v11, 7, v1
    v_mul_u32_u24 v12, {OSTR}, v11
    v_lshrrev_b32 v14, 3, v2
    s_lshl_b32 s14, s3, 2
    v_add_u32 v14, s14, v14
    v_mul_u32_u24 v14, 56, v14
    v_add_u32 v11, v12, v14
    v_lshl_add_u32 v11, v3, 3, v11
    v_add_u32 v11, {OB}, v11
    v_lshrrev_b32 v14, 4, v1
    v_lshl_add_u32 v12, v14, 4, v12
    v_add_u32 v12, {OB}, v12
    v_add_u32 v13, s47, v4
    """)
    R = 112
    stamp_mid(k, 4)
    k("s_waitcnt lgkmcnt(0)\ns_barrier")
    stamp_mid(k, 5)
    for j in range(3):
        for q in range(4):
            r = (64 if j == 0 else R + 16 * (j - 1)) + 4 * q
            k(f"ds_read_b128 v[{r}:{r+3}], v5 offset:{j*4096+q*1024}")
    RES = 80
    for nt in range(7):
        if layer == 0:
            vm.issue(f"buffer_load_dwordx2 v[{RES+2*nt}:{RES+2*nt+1}], v10, s[52:55], s49 offen offset:{nt*32}", "res")
        else:
            if nt % 4 == 0:
                k(f"s_add_u32 s49, s50, {X2F + nt*1024}")
            vm.issue(f"buffer_load_dwordx2 v[{RES+2*nt}:{RES+2*nt+1}], v15, s[40:43], s49 offen offset:{(nt%4)*1024}", "res")
    for j in range(3):
        k(f"s_waitcnt lgkmcnt({8-4*j})")
        for r in range(16):
            b = (64 if j == 0 else R + 16 * (j - 1))
            k(f"v_add_f32 v{O+r}, v{O+r}, v{b+r}")
    FB, NORM = k.name + "_fb", k.name + "_norm"
    k(f"""
    v_mov_b32 v8, v{O+12}
    v_mov_b32 v9, v{O+12}
    s_mov_b32 s14, {f2h(2.0**-60)}
    s_mov_b32 s15, {f2h(2.0**60)}
    v_permlane32_swap_b32 v8, v9
    v_cmp_nle_f32 vcc, s14, v9
    v_cmp_nge_f32 s[44:45], s15, v9
    s_or_b64 vcc, vcc, s[44:45]
    s_cbranch_vccnz {FB}
    {NORM}:
    v_rcp_f32 v9, v9
    s_nop 0
    """)
    for r in range(16):
        k(f"v_mul_f32 v{O+r}, v9, v{O+r}")
    for d in range(8):
        k(f"v_cvt_pk_bf16_f32 v{P+d}, v{O+2*d}, v{O+2*d+1}")
    for q in range(3):
        k(f"ds_write_b64 v11, v[{P+2*q}:{P+2*q+1}] offset:{16*q}")
    k(f"""
    s_mov_b32 exec_hi, 0
    ds_write_b64 v11, v[{P+6}:{P+7}] offset:48
    s_mov_b32 exec_hi, -1
    """)
    ACC = 16
    BF = [44 + 4 * i for i in range(9)] + [96 + 4 * i for i in range(4)] + [144]
    LR = 112
    lg = LG()
    stamp_mid(k, 6)
    vm.wait("wo", "lgkmcnt(0)")
    k("s_barrier")
    stamp_mid(k, 7)
    for ks in range(14):
        lg.issue(("b", ks))
        k(f"ds_read_b128 v[{BF[ks]}:{BF[ks]+3}], v12 offset:{ks*64}")

    def rd_wl(li):
        r = LR + 4 * (li % 8)
        lg.issue(("wl", li))
        k(f"ds_read_b128 v[{r}:{r+3}], v13 offset:{li*1024}")
    nxt_wl = 0
    for fi in range(98):
        ks, nt = fi // 7, fi % 7
        if fi >= 14 and nxt_wl < NWL and (nxt_wl < 8 or fi - (NWA + NWV) > nxt_wl - 8):
            rd_wl(nxt_wl); nxt_wl += 1
        w = lg.waitstr(("b", ks))
        if w: k(w)
        a = wo_reg(fi)
        if a is None:
            li = fi - (NWA + NWV)
            w = lg.waitstr(("wl", li))
            if w: k(w)
            a = f"v[{LR+4*(li%8)}:{LR+4*(li%8)+3}]"
        acc = f"v[{ACC+4*nt}:{ACC+4*nt+3}]"
        k(f"{MF16} {acc}, {a}, v[{BF[ks]}:{BF[ks]+3}], {'0' if ks == 0 else acc}")
    stamp_mid(k, 8)
    vm.wait("res")
    U = 44
    k("s_mov_b32 s14, 0xffff0000")
    for d in range(14):
        k(f"v_lshlrev_b32 v{U+2*d}, 16, v{RES+d}")
        k(f"v_and_b32 v{U+2*d+1}, s14, v{RES+d}")
    for r in range(28):
        k(f"v_add_f32 v{ACC+r}, v{ACC+r}, v{U+r}")
    X1P = 96
    for d in range(14):
        k(f"v_cvt_pk_bf16_f32 v{X1P+d}, v{ACC+2*d}, v{ACC+2*d+1}")
    k(f"s_add_u32 s49, s50, {X1F}\ns_mov_b32 exec_lo, 0x00ff00ff\ns_mov_b32 exec_hi, 0x00ff00ff")
    for nt in range(7):
        if nt == 4:
            k("s_add_u32 s49, s49, 4096")
        k(f"buffer_store_dwordx2 v[{X1P+2*nt}:{X1P+2*nt+1}], v15, s[40:43], s49 offen offset:{(nt%4)*1024}")
    k("s_mov_b64 exec, -1")
    for d in range(14):
        k(f"v_lshlrev_b32 v{ACC+2*d}, 16, v{X1P+d}")
        k(f"v_and_b32 v{ACC+2*d+1}, s14, v{X1P+d}")
    k(f"v_add_f32 v6, v{ACC}, v{ACC+1}\nv_mul_f32 v7, v{ACC}, v{ACC}\nv_fmac_f32 v7, v{ACC+1}, v{ACC+1}")
    for r in range(2, 28):
        k(f"v_add_f32 v6, v6, v{ACC+r}")
        k(f"v_fmac_f32 v7, v{ACC+r}, v{ACC+r}")
    stamp_mid(k, 9)
    k(f"""
    v_mov_b32 v8, v6
    v_mov_b32 v9, v7
    s_nop 0
    v_permlane32_swap_b32 v6, v8
    v_permlane32_swap_b32 v7, v9
    v_add_f32 v6, v6, v8
    v_add_f32 v7, v7, v9
    v_mov_b32 v8, v6
    v_mov_b32 v9, v7
    s_nop 0
    v_permlane16_swap_b32 v6, v8
    v_permlane16_swap_b32 v7, v9
    v_add_f32 v6, v6, v8
    v_add_f32 v7, v7, v9
    v_and_b32 v10, 7, v1
    v_lshlrev_b32 v10, 3, v10
    v_add_u32 v10, {STB}, v10
    s_lshl_b32 s15, s3, 6
    v_add_u32 v14, s15, v10
    ds_write_b64 v14, v[6:7]
    s_waitcnt lgkmcnt(0)
    s_barrier
    ds_read_b64 v[44:45], v10
    ds_read_b64 v[46:47], v10 offset:64
    ds_read_b64 v[48:49], v10 offset:128
    ds_read_b64 v[50:51], v10 offset:192
    s_waitcnt lgkmcnt(0)
    v_add_f32 v44, v44, v46
    v_add_f32 v45, v45, v47
    v_add_f32 v48, v48, v50
    v_add_f32 v49, v49, v51
    v_add_f32 v6, v44, v48
    v_add_f32 v7, v45, v49
    v_mul_f32 v6, {f2h(1.0/448)}, v6
    v_mul_f32 v7, {f2h(1.0/448)}, v7
    v_fma_f32 v7, -v6, v6, v7
    v_max_f32 v7, 0, v7
    v_add_f32 v7, {f2h(1e-5)}, v7
    v_rsq_f32 v7, v7
    s_nop 0
    v_mul_f32 v6, v6, v7
    """)
    stamp_mid(k, 10)
    for r in range(28):
        k(f"v_fma_f32 v{ACC+r}, v{ACC+r}, v7, -v6")
    for d in range(14):
        k(f"v_cvt_pk_bf16_f32 v{U+d}, v{ACC+2*d}, v{ACC+2*d+1}")
    k(f"s_add_u32 s49, s50, {XNF}\ns_mov_b32 exec_lo, 0x00ff00ff\ns_mov_b32 exec_hi, 0x00ff00ff")
    for nt in range(7):
        if nt == 4:
            k("s_add_u32 s49, s49, 4096")
        k(f"buffer_store_dwordx2 v[{U+2*nt}:{U+2*nt+1}], v15, s[40:43], s49 offen offset:{(nt%4)*1024}")
    stamp_mid(k, 11)
    k("s_endpgm")
    KR = 112
    S = SB
    k(f"""
    {FB}:
    v_mov_b32 v14, 0xff800000
    s_mov_b32 s9, {KVF}
    {FB}_l1:
    buffer_load_dwordx4 v[{KR}:{KR+3}], v4, s[40:43], s9 offen
    buffer_load_dwordx4 v[{KR+4}:{KR+7}], v4, s[40:43], s9 offen offset:1024
    s_waitcnt vmcnt(0)
    {MF} v[{S}:{S+15}], v[{KR}:{KR+3}], v[{Q}:{Q+3}], 0
    {MF} v[{S}:{S+15}], v[{KR+4}:{KR+7}], v[{Q+4}:{Q+7}], v[{S}:{S+15}]
    """)
    for r in range(0, 16, 2):
        k(f"v_max3_f32 v14, v{S+r}, v{S+r+1}, v14")
    k(f"""
    s_add_u32 s9, s9, 4096
    s_cmp_lt_u32 s9, {KVF + 64*4096}
    s_cbranch_scc1 {FB}_l1
    v_mov_b32 v8, v14
    s_nop 1
    v_permlane32_swap_b32 v14, v8
    v_max_f32 v14, v14, v8
    """)
    for r in range(16):
        k(f"v_mov_b32 v{O+r}, 0")
    k(f"""
    s_mov_b32 s9, {KVF}
    {FB}_l2:
    buffer_load_dwordx4 v[{KR}:{KR+3}], v4, s[40:43], s9 offen
    buffer_load_dwordx4 v[{KR+4}:{KR+7}], v4, s[40:43], s9 offen offset:1024
    buffer_load_dwordx4 v[{KR+8}:{KR+11}], v4, s[40:43], s9 offen offset:2048
    buffer_load_dwordx4 v[{KR+12}:{KR+15}], v4, s[40:43], s9 offen offset:3072
    s_waitcnt vmcnt(0)
    {MF} v[{S}:{S+15}], v[{KR}:{KR+3}], v[{Q}:{Q+3}], 0
    {MF} v[{S}:{S+15}], v[{KR+4}:{KR+7}], v[{Q+4}:{Q+7}], v[{S}:{S+15}]
    """)
    for r in range(16):
        k(f"v_sub_f32 v{S+r}, v{S+r}, v14")
    for r in range(16):
        k(f"v_exp_f32 v{S+r}, v{S+r}")
    for d in range(8):
        k(f"v_cvt_pk_bf16_f32 v{P+d}, v{S+2*d}, v{S+2*d+1}")
    k(f"""
    {MF} v[{O}:{O+15}], v[{KR+8}:{KR+11}], v[{P}:{P+3}], v[{O}:{O+15}]
    {MF} v[{O}:{O+15}], v[{KR+12}:{KR+15}], v[{P+4}:{P+7}], v[{O}:{O+15}]
    s_add_u32 s9, s9, 4096
    s_cmp_lt_u32 s9, {KVF + 64*4096}
    s_nop 7
    s_cbranch_scc1 {FB}_l2
    s_nop 7
    v_mov_b32 v8, v{O+12}
    v_mov_b32 v9, v{O+12}
    s_nop 1
    v_permlane32_swap_b32 v8, v9
    s_nop 1
    s_branch {NORM}
    """)
    epilogue(k)
    return k, dict(grid=256, block=256, lds=LDS)
```

```python
from common import *
from k_p1 import f2h
MF = "v_mfma_f32_32x32x16_bf16"


def gen_p4(name="p4_kernel", BURST=14, PACE=(2,), FILL=4, mapping="B"):
    k = Kernel(name)
    prologue(k, 256)
    NS = 156
    if mapping == "B":
        k(f"""
        s_and_b32 s6, s2, 7
        s_lshr_b32 s7, s2, 3
        s_and_b32 s4, s6, 1
        s_lshl_b32 s4, s4, 3
        s_and_b32 s8, s7, 7
        s_add_u32 s4, s4, s8
        s_lshr_b32 s5, s6, 1
        s_lshl_b32 s5, s5, 2
        s_lshr_b32 s8, s7, 3
        s_add_u32 s5, s5, s8
        """)
    else:
        k(f"""
        s_and_b32 s6, s2, 7
        s_lshr_b32 s7, s2, 3
        s_lshl_b32 s4, s6, 1
        s_and_b32 s8, s7, 1
        s_add_u32 s4, s4, s8
        s_lshr_b32 s5, s7, 1
        """)
    k(f"""
    s_lshl_b32 s12, s4, 2
    s_add_u32 s12, s12, s3
    v_lshlrev_b32 v4, 4, v1
    s_mul_i32 s8, s12, {28*1024}
    s_add_u32 s8, s8, {XNF}
    s_mul_i32 s9, s5, {196*1024}
    s_add_u32 s9, s9, {WGUF}
    s_lshl_b32 s10, s3, 10
    v_add_u32 v5, 0x10000, v4
    v_add_u32 v6, 0x20000, v4
    v_add_u32 v9, s10, v4
    s_mul_i32 s14, s12, 112
    s_mul_i32 s15, s5, 7
    s_add_u32 s14, s14, s15
    s_lshl_b32 s14, s14, 10
    s_add_u32 s14, s14, {HF}
    """)
    wait_ptrs(k)
    stamp_mid(k, 0)
    vm = VM(k)
    lg = LG()
    ACC, WR, HP = 16, 128, 152
    NR = 6
    RA = 4
    gsz = [8, 12, 16, 20, 28, 28, 28, 24, 16, 8, 8]
    assert sum(gsz) == 196
    gstart = [sum(gsz[:i]) for i in range(len(gsz))]

    def grp(f):
        return max(i for i, s in enumerate(gstart) if s <= f)

    def L_x(kb):
        def f():
            k(f"s_add_u32 s44, s8, {kb*1024}")
            vm.issue(f"buffer_load_dwordx4 a[{4*kb}:{4*kb+3}], v4, s[40:43], s44 offen", ("x", kb))
        return f

    def L_w(i):
        def f():
            k(f"s_add_u32 m0, s10, {((4*i) % NS)*1024}\ns_add_u32 s45, s9, {4*i*1024}")
            vm.issue(f"buffer_load_dwordx4 v9, s[40:43], s45 offen lds", ("g", grp(4 * i)))
        return f

    items = []
    first_use = {}
    for n in range(196):
        ct, kb = p4_fk(n)
        first_use.setdefault(kb, n)
    for kb in range(28):
        items.append((first_use[kb], -1, L_x(kb)))
    for i in range(49):
        g = grp(4 * i)
        need = gstart[g] - RA
        mi = -1
        if 4 * i >= NS:
            last_old = 4 * i + 3 - NS
            gb = min(gg for gg in range(len(gsz)) if gstart[gg] - RA > last_old)
            mi = gstart[gb] - RA
        items.append((need, mi, L_w(i)))
    items.sort(key=lambda t: t[0])
    queue = list(items)

    def issue_next(n):
        for idx, (need, mi, f) in enumerate(queue):
            if mi <= n:
                queue.pop(idx); f(); return True
        return False

    def force(n):
        while queue and queue[0][0] <= n:
            assert queue[0][1] <= n
            queue.pop(0)[2]()

    def rd(f):
        slot = (f % NS) * 1024
        base = [4, 5, 6][slot >> 16]
        r = WR + 4 * (f % NR)
        lg.issue(("w", f))
        k(f"ds_read_b128 v[{r}:{r+3}], v{base} offset:{slot & 0xffff}")

    def group_sync(G):
        vm.wait(("g", G))
        k("s_barrier")

    fill = []

    def epi_ops(ct):
        a = ACC + 16 * ct
        hp = HP + 4 * (ct & 1)
        o = ["GAP", "GAP", "GAP"]
        for r in range(8):
            o.append(f"v_mul_f32 v{a+r}, v{a+r}, v{a+8+r}")
        for d in range(4):
            o.append(f"v_cvt_pk_bf16_f32 v{hp+d}, v{a+2*d}, v{a+2*d+1}")

        def st():
            if ct == 4:
                k("s_add_u32 s14, s14, 4096")
            vm.issue(f"buffer_store_dwordx4 v[{hp}:{hp+3}], v4, s[40:43], s14 offen offset:{(ct%4)*1024}", "hst")
        o.append(st)
        return o

    def run_fill(n):
        cnt = 0
        while fill and cnt < n:
            f = fill.pop(0)
            if f == "GAP":
                break
            if callable(f): f()
            else: k(f)
            cnt += 1

    for _ in range(BURST):
        issue_next(-1)
    group_sync(0)
    stamp_mid(k, 1)
    for f in range(RA): rd(f)
    nxt = 0; pi = 0
    KBn = 28 - KA
    for n in range(196):
        ct, kb = p4_fk(n)
        f = n + RA
        force(n)
        if f < 196:
            if f in gstart:
                group_sync(gstart.index(f))
            rd(f)
        vm.wait(("x", kb))
        w = lg.waitstr(("w", n))
        if w: k(w)
        r = WR + 4 * (n % NR)
        a = ACC + 16 * ct
        c = "0" if kb == 0 else f"v[{a}:{a+15}]"
        k(f"{MF} v[{a}:{a+15}], v[{r}:{r+3}], a[{4*kb}:{4*kb+3}], {c}")
        if n == 97: stamp_mid(k, 2)
        if n == 195: stamp_mid(k, 3)
        if n >= nxt and queue:
            if issue_next(n):
                nxt = n + PACE[pi % len(PACE)]; pi += 1
        if n >= KA * 7 and (n - KA * 7) % KBn == KBn - 1:
            fill.extend(epi_ops(ct))
        run_fill(FILL)
    while fill:
        run_fill(100)
    epilogue(k)
    return k, dict(grid=256, block=256, lds=NS * 1024)
```

```python
S, D, H, DH, F = 2048, 448, 16, 28, 1792
def al(x, a=4096): return (x + a - 1) // a * a
off = 0
def alloc(n):
    global off
    o = off; off = al(off + n); return o
QF  = alloc(64 * 16 * 2 * 1024)
KVF = alloc(64 * 4096)
X1F = alloc(64 * 28 * 1024)
XNF = alloc(64 * 28 * 1024)
HF  = alloc(64 * 112 * 1024)
X2F = alloc(64 * 28 * 1024)
ST2 = alloc(64 * 14 * 512)
WO16= alloc(4 * 98 * 1024)
WGUF= alloc(16 * 196 * 1024)
WDF = alloc(14 * 112 * 1024)
WQF = alloc(16 * 28 * 1024)
CSQ = alloc(16 * 128)
WS_USED = off
XBYTES = S * D * 2

KA = 20
def p4_f(ctl, kb):
    return kb * 7 + ctl if kb < KA else KA * 7 + ctl * (28 - KA) + (kb - KA)
def p4_fk(n):
    if n < KA * 7:
        return n % 7, n // 7
    return (n - KA * 7) // (28 - KA), KA + (n - KA * 7) % (28 - KA)

if __name__ == "__main__":
    for k in "QF KVF X1F XNF HF X2F ST2 WO16 WGUF WDF WQF CSQ WS_USED".split():
        print(k, hex(globals()[k]))
```

```python
import sys
import common
if len(sys.argv) > 2 and sys.argv[2] == 'stamp': common.STAMP = True
from build import *
from k_p1 import gen_p1a
from k_p2 import gen_p2
from k_g22 import gen_g22
from k_p4 import gen_p4
p4 = gen_p4()
L = [gen_p1a("p1a_kernel"), gen_p2("p2a_kernel", 0), p4, gen_g22("p5a_kernel", "p5", 0),
     gen_g22("p1b_kernel", "p1", 1), gen_p2("p2b_kernel", 1), p4, gen_g22("p5b_kernel", "p5", 1)]
assemble(L, sys.argv[1] if len(sys.argv) > 1 else "out.s")
```

```python
import re

TRANS = ("v_exp_f32", "v_log_f32", "v_rcp_f32", "v_rsq_f32", "v_sqrt_f32", "v_sin_f32", "v_cos_f32",
         "v_exp_f16", "v_rcp_iflag_f32")

_reg_re = re.compile(r"^(-?)(?:abs\()?([vas])(?:(\d+)|\[(\d+):(\d+)\])\)?$")


def parse_reg(tok):
    tok = tok.strip()
    if tok in ("vcc",):
        return [("s", "vcc_lo"), ("s", "vcc_hi")]
    if tok in ("vcc_lo", "vcc_hi", "m0", "exec_lo", "exec_hi"):
        return [("s", tok)]
    if tok == "exec":
        return [("s", "exec_lo"), ("s", "exec_hi")]
    m = _reg_re.match(tok)
    if not m:
        return []
    k = m.group(2)
    if m.group(3) is not None:
        return [(k, int(m.group(3)))]
    return [(k, i) for i in range(int(m.group(4)), int(m.group(5)) + 1)]


class Ins:
    __slots__ = ("text", "op", "ops", "mods", "cls", "dst", "src", "srcC", "srcAB", "passes", "label", "target", "nop")

    def __init__(self, text):
        self.text = text
        self.label = None
        self.target = None
        self.nop = 0
        self.srcC = []
        self.srcAB = []
        self.passes = 0
        t = text.split(";")[0].strip()
        if t.endswith(":"):
            self.label = t[:-1]
            self.op = "label"; self.cls = "label"; self.dst = []; self.src = []; self.ops = []; self.mods = ""
            return
        if t.startswith("."):
            self.op = "directive"; self.cls = "label"; self.dst = []; self.src = []; self.ops = []; self.mods = ""
            return
        sp = t.split(None, 1)
        op = sp[0]
        rest = sp[1] if len(sp) > 1 else ""
        parts = []
        depth = 0; cur = ""
        for ch in rest:
            if ch in "[(":
                depth += 1
            if ch in "])":
                depth -= 1
            if ch == "," and depth == 0:
                parts.append(cur.strip()); cur = ""
            else:
                cur += ch
        if cur.strip():
            parts.append(cur.strip())
        mods = ""
        if parts:
            last = parts[-1].split(None, 1)
            if len(last) > 1 and not op.startswith("s_waitcnt"):
                parts[-1] = last[0]; mods = last[1]
        self.op = op; self.ops = parts; self.mods = mods
        base = op
        for suf in ("_e32", "_e64", "_dpp", "_sdwa"):
            if base.endswith(suf):
                base = base[: -len(suf)]
        R = [parse_reg(p) for p in parts]
        dst = []; src = []
        if op.startswith("v_mfma"):
            self.cls = "mfma"
            dst = R[0]; self.srcAB = R[1] + R[2]; self.srcC = R[3]; src = R[1] + R[2] + R[3]
            self.passes = 8 if "32x32x16" in op else 4
        elif op.startswith("v_"):
            self.cls = "trans" if base in TRANS else "valu"
            if base.startswith("v_cmp"):
                dst = R[0]; src = sum(R[1:], [])
                if base.startswith("v_cmpx"):
                    dst = dst + parse_reg("exec")
            elif base in ("v_permlane32_swap_b32", "v_permlane16_swap_b32", "v_swap_b32"):
                dst = R[0] + R[1]; src = R[0] + R[1]
            elif base in ("v_fmac_f32", "v_dot2c_f32_bf16", "v_pk_fmac_f16", "v_writelane_b32"):
                dst = R[0]; src = sum(R, [])
            elif base in ("v_add_co_u32", "v_sub_co_u32", "v_addc_co_u32", "v_subb_co_u32", "v_subrev_co_u32", "v_div_scale_f32", "v_mad_u64_u32"):
                dst = R[0] + R[1]; src = sum(R[2:], [])
            elif base == "v_nop":
                pass
            else:
                dst = R[0]; src = sum(R[1:], [])
                if "UNUSED_PRESERVE" in mods or op.endswith("_dpp"):
                    src = src + R[0]
                if base == "v_cndmask_b32" and len(parts) == 3:
                    src = src + parse_reg("vcc")
        elif op.startswith("buffer_") or op.startswith("global_"):
            self.cls = "vmem"
            if op in ("buffer_wbl2", "buffer_inv"):
                pass
            elif op.startswith("buffer_load"):
                if re.search(r"\blds\b", mods):
                    src = sum(R, []) + parse_reg("m0")
                    self.cls = "vmem_lds"
                else:
                    dst = R[0]; src = sum(R[1:], [])
                    if "d16" in op:
                        src = src + R[0]
            elif op.startswith("buffer_store"):
                src = sum(R, []); self.cls = "vmem_st"
            elif op.startswith("buffer_atomic"):
                src = sum(R, [])
                if "sc0" in mods:
                    dst = R[0]
                else:
                    self.cls = "vmem_st"
            elif op.startswith("global_load_lds"):
                src = sum(R, []) + parse_reg("m0"); self.cls = "vmem_lds"
            elif op.startswith("global_load"):
                dst = R[0]; src = sum(R[1:], [])
            elif op.startswith("global_store"):
                src = sum(R, []); self.cls = "vmem_st"
            elif op.startswith("global_atomic"):
                if "sc0" in mods:
                    dst = R[0]; src = sum(R[1:], [])
                else:
                    src = sum(R, []); self.cls = "vmem_st"
            else:
                raise ValueError(op)
        elif op.startswith("ds_"):
            self.cls = "ds"
            if op.startswith("ds_read") or op.startswith("ds_bpermute") or op.startswith("ds_permute") or op.startswith("ds_swizzle"):
                dst = R[0]; src = sum(R[1:], [])
            else:
                src = sum(R, [])
        elif op.startswith("s_"):
            self.cls = "salu"
            if op.startswith("s_load") or op.startswith("s_buffer_load") or op in ("s_memtime", "s_memrealtime"):
                self.cls = "smem"; dst = R[0]; src = sum(R[1:], [])
            elif op == "s_nop":
                self.nop = int(parts[0], 0) + 1
            elif op.startswith("s_cbranch") or op == "s_branch":
                self.target = parts[0]
                if "vcc" in op: src = parse_reg("vcc")
                if "exec" in op: src = parse_reg("exec")
            elif op.startswith("s_cmp") or op.startswith("s_bitcmp"):
                src = sum(R, [])
            elif op in ("s_waitcnt", "s_barrier", "s_endpgm", "s_setprio", "s_sleep", "s_setreg_b32", "s_setreg_imm32_b32"):
                pass
            elif "saveexec" in op:
                dst = R[0] + parse_reg("exec"); src = sum(R[1:], []) + parse_reg("exec")
            else:
                dst = R[0]; src = sum(R[1:], [])
                if op in ("s_addk_i32", "s_mulk_i32"):
                    src = src + R[0]
        else:
            raise ValueError("unknown op " + text)
        self.dst = dst; self.src = src

    def ws(self):
        if self.cls == "label":
            return 0
        return self.nop if self.nop else 1


def is_valu(i):
    return i.cls in ("valu", "trans")


def required_gap(p, c):
    need = 0
    pd = set(p.dst); cs = set(c.src); cd = set(c.dst)
    if is_valu(p):
        vd = {r for r in pd if r[0] in "va"}
        sd = {r for r in pd if r[0] == "s"}
        if c.cls == "mfma" and vd & cs:
            need = max(need, 2)
        if p.op.startswith("v_dot"):
            if c.op == p.op:
                ab = set(parse_reg(c.ops[1]) + parse_reg(c.ops[2]))
                if vd & ab:
                    need = max(need, 3)
            elif vd & (cs | cd):
                need = max(need, 3)
        if p.cls == "trans" and is_valu(c) and c.cls != "trans" and vd & (cs | cd):
            need = max(need, 1)
        if p.cls == "trans" and c.cls == "trans" and vd & cs:
            need = max(need, 1)
        if p.cls == "trans" and c.cls in ("vmem", "vmem_st", "vmem_lds", "ds") and vd & cs:
            need = max(need, 1)
        if is_valu(c):
            if (c.op.startswith("v_readlane") or c.op.startswith("v_readfirstlane")) and vd & cs:
                need = max(need, 1)
            if c.op.startswith("v_permlane") and vd & cs:
                need = max(need, 2)
            if c.op.endswith("_dpp") and vd & cs:
                need = max(need, 2)
            if sd & cs:
                need = max(need, 4 if c.op.startswith(("v_readlane", "v_writelane")) else 2)
            if ("sdwa" in p.op or ("op_sel" in p.mods and not p.op.startswith("v_pk_"))) and vd & (cs | cd):
                need = max(need, 1)
            if any(r[1] in ("exec_lo", "exec_hi") for r in sd):
                if c.op.endswith("_dpp"): need = max(need, 5)
                if c.op.startswith(("v_readlane", "v_readfirstlane", "v_writelane", "v_permlane")): need = max(need, 4)
        if c.cls in ("vmem", "vmem_st", "vmem_lds") and sd & cs:
            need = max(need, 5)
        if c.cls == "mfma" and any(r[1] in ("exec_lo", "exec_hi") for r in sd):
            need = max(need, 4)
        if c.cls == "salu" and sd & cs:
            need = max(need, 1)
        if c.op.startswith("s_cbranch_vcc") and any(r[1] in ("vcc_lo", "vcc_hi") for r in sd):
            need = max(need, 5)
    if p.cls == "mfma":
        P = p.passes
        big = {8: 12, 4: 8}[P]
        ovl = {8: 10, 4: 6}[P]
        if c.cls == "mfma":
            if pd & set(c.srcAB):
                need = max(need, big)
            if pd & set(c.srcC):
                if not (p.dst == c.srcC and p.passes == c.passes):
                    need = max(need, ovl)
            elif pd & cd:
                need = max(need, ovl)
        elif is_valu(c):
            if pd & (cs | cd):
                need = max(need, big)
            if set(p.srcC) & cd:
                need = max(need, {8: 7, 4: 3}[P])
        elif c.cls in ("vmem", "vmem_st", "vmem_lds", "ds"):
            if pd & (cs | cd):
                need = max(need, big)
            if set(p.srcC) & cd:
                need = max(need, {8: 7, 4: 3}[P])
    if p.cls == "salu" and ("s", "m0") in pd and c.cls == "vmem_lds":
        need = max(need, 1)
    if p.cls == "vmem_st" and re.search(r"x[34]$", p.op):
        data = set(parse_reg(p.ops[0] if p.op.startswith("buffer") else p.ops[1]))
        if data & cd:
            need = max(need, 2 if is_valu(c) else 1)
    if p.cls == "ds" and p.op.startswith("ds_write") and ("b128" in p.op or "b96" in p.op):
        pass
    return need


MAXW = 20


def insert_nops(ins):
    out = []
    for c in ins:
        if c.cls != "label":
            dist = 0
            need_extra = 0
            for p in reversed(out):
                if dist >= MAXW:
                    break
                if p.cls == "label":
                    continue
                g = required_gap(p, c)
                if g > dist:
                    need_extra = max(need_extra, g - dist)
                dist += p.ws()
            while need_extra > 0:
                n = min(need_extra, 16)
                out.append(Ins(f"s_nop {n-1}"))
                need_extra -= n
        out.append(c)
    return out


def check_branch_hazards(ins):
    labels = {i.label: n for n, i in enumerate(ins) if i.label}
    errs = []
    for n, b in enumerate(ins):
        if b.target and b.target in labels:
            pre = [i for i in ins[max(0, n - 40): n + 1] if i.cls != "label"]
            t = labels[b.target]
            post = [i for i in ins[t: t + 40] if i.cls != "label"]
            seq = pre + post
            for ci in range(len(pre), len(seq)):
                dist = 0
                for pi in range(ci - 1, -1, -1):
                    if dist >= MAXW:
                        break
                    if pi < len(pre):
                        g = required_gap(seq[pi], seq[ci])
                        if g > dist:
                            errs.append(f"branch hazard: {seq[pi].text} -> {seq[ci].text} need {g} have {dist} via {b.text}")
                    dist += seq[pi].ws()
    return errs


def check_waitcnt(ins, name=""):
    labels = {i.label: n for n, i in enumerate(ins) if i.label}
    errs = []

    def sim(seq, vm, lg):
        for i in seq:
            if i.cls == "label" or "; retry" in i.text:
                continue
            if i.op == "s_waitcnt":
                txt = " ".join(i.ops) + " " + i.mods
                m = re.search(r"vmcnt\((\d+)\)", txt)
                if m:
                    n = int(m.group(1))
                    while len(vm) > n:
                        vm.pop(0)
                m = re.search(r"lgkmcnt\((\d+)\)", txt)
                if m:
                    n = int(m.group(1))
                    if n == 0:
                        lg.clear()
                    else:
                        if any(k == "smem" for k, _ in lg):
                            pass
                        else:
                            while len(lg) > n:
                                lg.pop(0)
                continue
            touched = set(i.src) | set(i.dst)
            for k, d in vm:
                tv = set(i.src) if i.cls == "vmem" else touched
                if d & tv:
                    errs.append(f"{name}: vmcnt hazard: {i.text} touches pending load regs {sorted(d & touched)[:4]}")
            for k, d in lg:
                if d & touched:
                    errs.append(f"{name}: lgkmcnt hazard: {i.text} touches pending regs {sorted(d & touched)[:4]}")
            if i.cls in ("vmem", "vmem_st", "vmem_lds"):
                vm.append(("d16" if "d16" in i.op else "v", set(i.dst)))
            elif i.cls == "ds":
                lg.append(("ds", set(i.dst)))
            elif i.cls == "smem":
                lg.append(("smem", set(i.dst)))
    vm = []; lg = []
    pos = 0
    for n, b in enumerate(ins):
        if "; retry" in b.text:
            continue
        if b.target and b.target in labels and labels[b.target] < n:
            sim(ins[pos:n + 1], vm, lg)
            pos = n + 1
            vm2 = list(vm); lg2 = list(lg)
            sim(ins[labels[b.target]: n + 1], vm2, lg2)
        elif b.op in ("s_endpgm", "s_branch"):
            sim(ins[pos:n + 1], vm, lg)
            pos = n + 1
            vm = []; lg = []
    sim(ins[pos:], vm, lg)
    return errs


class Kernel:
    def __init__(self, name, vgpr=256, agpr=0, sgpr=102):
        self.name = name
        self.lines = []
        self.vgpr = vgpr; self.agpr = agpr; self.sgpr = sgpr
        self._lab = 0

    def __call__(self, s):
        for l in s.strip().split("\n"):
            l = l.strip()
            if l and not l.startswith(";"):
                self.lines.append(l)

    def newlabel(self, base="L"):
        self._lab += 1
        return f"{self.name}_{base}{self._lab}"

    def finish(self):
        ins = [Ins(l) for l in self.lines]
        ins = insert_nops(ins)
        errs = check_branch_hazards(ins) + check_waitcnt(ins, self.name)
        maxv = max([r[1] for i in ins for r in i.dst + i.src if r[0] == "v"] + [0])
        maxa = max([r[1] for i in ins for r in i.dst + i.src if r[0] == "a"] + [-1])
        maxs = max([r[1] for i in ins for r in i.dst + i.src if r[0] == "s" and isinstance(r[1], int)] + [0])
        acc = (maxv + 1 + 3) // 4 * 4
        nfv = acc + maxa + 1 if maxa >= 0 else maxv + 1
        if errs:
            print("\n".join(errs[:30]))
            raise SystemExit(f"{self.name}: {len(errs)} hazard errors")
        body = "\n".join(("" if i.cls == "label" and i.label else "  ") + i.text for i in ins)
        txt = f""".text
.globl {self.name}
.p2align 8
.type {self.name},@function
{self.name}:
{body}
.section .rodata,"a"
.p2align 6
.amdhsa_kernel {self.name}
  .amdhsa_next_free_vgpr {nfv}
  .amdhsa_next_free_sgpr {max(maxs + 1, 16)}
  .amdhsa_accum_offset {acc}
  .amdhsa_group_segment_fixed_size 0
  .amdhsa_kernarg_size 96
  .amdhsa_user_sgpr_count 2
  .amdhsa_user_sgpr_kernarg_segment_ptr 1
  .amdhsa_system_sgpr_workgroup_id_x 1
.end_amdhsa_kernel
"""
        self.stats = dict(nins=sum(1 for i in ins if i.cls != "label"), vgpr=maxv + 1, agpr=maxa + 1, sgpr=maxs + 1,
                          nops=sum(1 for i in ins if i.op == "s_nop"))
        return txt


def vr(b, n=1):
    return f"v{b}" if n == 1 else f"v[{b}:{b+n-1}]"


def ar(b, n=1):
    return f"a{b}" if n == 1 else f"a[{b}:{b+n-1}]"


def sr(b, n=1):
    return f"s{b}" if n == 1 else f"s[{b}:{b+n-1}]"


def interleave(main, fill, start=0, per=None):
    out = []
    fi = 0
    for n, m in enumerate(main):
        out.append(m)
        if n >= start:
            k = per[n - start] if isinstance(per, (list, tuple)) else per
            for _ in range(k):
                if fi < len(fill):
                    out.append(fill[fi]); fi += 1
    out.extend(fill[fi:])
    return out
```

```python
from asmlib import *
from layout import *

P_X, P_WQ, P_WK, P_WV, P_WO, P_BX, P_WG, P_WU, P_WD, P_OUT, P_DBG, P_WS = [16 + 2 * i for i in range(12)]
S_WS = 40
S_WAVE = 3


STAMP = False
STAMP_BASE = 0x2000000
_stamp_slot = [0]


NMID = 20
def stamp_mid(k, idx):
    if STAMP:
        k(f"s_memtime s[96:97]\ns_waitcnt lgkmcnt(0)\ns_mov_b32 s{72+idx}, s96")


def prologue(k, nwg):
    if STAMP:
        k("s_memtime s[92:93]\ns_memrealtime s[94:95]")
        for i in range(NMID): k(f"s_mov_b32 s{72+i}, 0")
    k(f"""
    s_cmp_ge_u32 s2, {nwg}
    s_cbranch_scc1 {k.name}_end
    s_load_dwordx16 s[16:31], s[0:1], 0
    s_load_dwordx8 s[32:39], s[0:1], 64
    v_and_b32 v1, 63, v0
    v_lshrrev_b32 v2, 6, v0
    s_nop 0
    v_readfirstlane_b32 s3, v2
    """)


def wait_ptrs(k):
    k("s_waitcnt lgkmcnt(0)")
    srd(k, S_WS, P_WS, WS_USED)


def srd(k, s, ptr, size):
    k(f"""
    s_mov_b32 s{s}, s{ptr}
    s_and_b32 s{s+1}, s{ptr+1}, 0xffff
    s_mov_b32 s{s+2}, {size}
    s_mov_b32 s{s+3}, 0x20000
    """)


def epilogue(k):
    if STAMP:
        k.lines = [(f"s_branch {k.name}_stamp" if l == "s_endpgm" else l) for l in k.lines]
        k(f"""
        {k.name}_stamp:
        s_mov_b64 exec, -1
        s_waitcnt vmcnt(0) lgkmcnt(0)
        s_memtime s[96:97]
        s_memrealtime s[98:99]
        s_load_dwordx2 s[8:9], s[0:1], 80
        s_waitcnt lgkmcnt(0)
        s_mov_b32 s4, s{P_WS}
        s_and_b32 s5, s{P_WS+1}, 0xffff
        s_mov_b32 s6, 0x4000000
        s_mov_b32 s7, 0x20000
        s_lshr_b32 s8, s8, 9
        s_and_b32 s8, s8, 31
        s_lshl_b32 s8, s8, 8
        s_add_u32 s8, s8, s2
        s_lshl_b32 s8, s8, 2
        s_add_u32 s8, s8, s3
        s_lshl_b32 s8, s8, 7
        s_add_u32 s8, s8, {STAMP_BASE}
        v_mov_b32 v0, s92
        v_mov_b32 v1, s96
        v_mov_b32 v2, s94
        v_mov_b32 v3, s98
        """)
        for i in range(NMID): k(f"v_mov_b32 v{4+i}, s{72+i}")
        k("v_mov_b32 v24, 0\ns_mov_b64 exec, 1")
        for q in range(6):
            k(f"buffer_store_dwordx4 v[{4*q}:{4*q+3}], v24, s[4:7], s8 offen offset:{16*q}")
        k("s_endpgm")
    k(f"""
    {k.name}_end:
    s_endpgm
    """)


class VM:
    def __init__(self, k):
        self.k = k; self.tags = []; self.done = 0

    def issue(self, text, tag=None):
        self.k(text); self.tags.append(tag)

    def count_after(self, tag):
        idx = max(i for i, t in enumerate(self.tags) if t == tag)
        return len(self.tags) - 1 - idx, idx

    def wait(self, tag, extra=""):
        n, idx = self.count_after(tag)
        if idx < self.done and not extra:
            return
        n = min(n, 63)
        self.done = max(self.done, idx + 1)
        self.k(f"s_waitcnt vmcnt({n}) {extra}".strip())

    def waitstr(self, tag):
        n, idx = self.count_after(tag)
        if idx < self.done:
            return None
        n = min(n, 63)
        self.done = max(self.done, idx + 1)
        return f"s_waitcnt vmcnt({n})"


class LG:
    def __init__(self):
        self.tags = []; self.done = 0

    def issue(self, tag):
        self.tags.append(tag)

    def waitstr(self, tag):
        idx = max(i for i, t in enumerate(self.tags) if t == tag)
        if idx < self.done:
            return None
        n = len(self.tags) - 1 - idx
        n = min(n, 15)
        self.done = idx + 1
        return f"s_waitcnt lgkmcnt({n})"

    def all_done(self):
        self.done = len(self.tags)


def ws_sub_srd(k, s, off, size):
    k(f"""
    s_add_u32 s{s}, s{P_WS}, {off}
    s_addc_u32 s{s+1}, s{P_WS+1}, 0
    s_and_b32 s{s+1}, s{s+1}, 0xffff
    s_mov_b32 s{s+2}, {size}
    s_mov_b32 s{s+3}, 0x20000
    """)
```

```python
from common import *
from k_p1 import f2h, stats_finish, qkv_setup, qkv_epilogue

MF = "v_mfma_f32_32x32x16_bf16"
MF16 = "v_mfma_f32_16x16x32_bf16"
SC = " sc1"
BUDGET = 200000

DEF = dict(
    WD_TAIL=16,
    G_EVERY=4,
    G_W=12, G_WD=8,
    W_ACK=14,
    X_BURST=8,
    PACE=(2,), BARS=(44, 100),
    NOWT=0, T_X1=0, T_ST=0, FPRO=0, FPLAIN=0, ROT=1, FE=4, F0=0, FTAIL=False, STN=0, ST0=1, ST1=58, STSKIP=0, TPRO=0,
    SS=(), TL=0, TE=4, T0=8, TN=99,
    HT=(140, 190, 240),
)


def gen_mega(name, layer, **over):
    C = dict(DEF); C.update(over)
    k = Kernel(name)
    import common
    SS = C["SS"]

    def stamp_mid(k, idx):
        if SS and idx not in (0, 8): return
        common.stamp_mid(k, idx)
    prologue(k, 256)
    kvf = KVF if layer == 0 else KVF1
    Q, O, SA, SB, P = 16, 48, 112, 128, 144
    WV0, NWV = 152, 26
    WA0, NWA = 64, 48
    NWL = 98 - NWV - NWA
    RED = 0
    WL = 48 * 1024
    OB = WL + 4 * NWL * 1024
    OSTR = 1824
    STB = OB + 8 * OSTR
    NS = 156
    LDS = max(NS * 1024, STB + 256)
    assert LDS <= 163840
    x1f, xnf, hf = (X1F, XNF, HF) if layer == 0 else (X1F1, XNF1, HF1)
    k(f"""
    s_bfe_u32 s4, s2, 0x20001
    s_lshl_b32 s4, s4, 6
    s_lshr_b32 s5, s2, 6
    s_lshl_b32 s5, s5, 4
    s_add_u32 s4, s4, s5
    s_and_b32 s5, s2, 1
    s_lshl_b32 s5, s5, 3
    s_add_u32 s4, s4, s5
    s_bfe_u32 s5, s2, 0x30003
    s_add_u32 s4, s4, s5
    s_lshr_b32 s5, s4, 2
    s_and_b32 s6, s4, 3
    s_lshl_b32 s6, s6, 3
    v_lshlrev_b32 v4, 4, v1
    v_and_b32 v2, 31, v1
    v_lshrrev_b32 v3, 5, v1
    s_lshl_b32 s8, s3, 16
    s_add_u32 s8, s8, {kvf}
    v_lshrrev_b32 v5, 3, v2
    v_lshlrev_b32 v5, 11, v5
    v_and_b32 v6, 7, v1
    v_add_u32 v6, s6, v6
    v_lshl_add_u32 v6, v3, 5, v6
    v_lshl_add_u32 v9, v6, 4, v5
    s_lshl_b32 s7, s5, 15
    s_add_u32 s7, s7, {QF}
    s_mul_i32 s46, s3, {196*1024}
    s_add_u32 s46, s46, {WO16}
    s_mul_i32 s47, s3, {NWL*1024}
    s_add_u32 s47, s47, {WL}
    s_lshr_b32 s14, s2, 3
    s_and_b32 s45, s14, {15 if C["ROT"] else 0}
    s_lshl_b32 s45, s45, 12
    s_sub_u32 s15, s14, 14
    s_cmp_ge_u32 s14, 14
    s_cselect_b32 s14, s15, s14
    s_sub_u32 s15, s14, 14
    s_cmp_ge_u32 s14, 14
    s_cselect_b32 s14, s15, s14
    s_mul_i32 s61, s14, {64 if C["ROT"] else 0}
    s_mul_i32 s14, s14, {7168 if C["ROT"] else 0}
    s_add_u32 s46, s46, s14
    s_add_u32 s9, s8, s45
    """)
    for jj in range(4):
        k(f"""
        s_add_u32 s14, s3, {jj}
        s_and_b32 s14, s14, 3
        s_lshl_b32 s14, s14, 13
        s_add_u32 s{10+jj}, s7, s14
        """)
    wait_ptrs(k)
    stamp_mid(k, 0)
    vm = VM(k)
    if C["NOWT"]:
        _w = vm.wait
        vm.wait = lambda tag, extra="": (_w(tag, extra) if tag in vm.tags else (k("s_waitcnt " + extra) if extra else None))
    order = [1, 2, 3, 0]
    NRING = 4

    def ab(t):
        return 16 * (t % NRING)

    def ld_kv(t, parts=(0, 1, 2, 3)):
        if parts[0] == 0:
            if t: k(f"s_add_u32 s9, s9, 4096\ns_pack_lh_b32_b16 s9, s9, s8")
        for f in parts:
            vm.issue(f"buffer_load_dwordx4 a[{ab(t)+4*f}:{ab(t)+4*f+3}], v4, s[40:43], s9 offen offset:{f*1024}", ("k" if f < 2 else "v", t))

    def ld_q(jj):
        for h in range(2):
            vm.issue(f"buffer_load_dwordx4 v[{Q+8*jj+4*h}:{Q+8*jj+4*h+3}], v9, s[40:43], s{10+jj} offen offset:{h*1024}", ("q", jj))

    def wo_reg(fi):
        if fi < NWA:
            return f"a[{WA0+4*fi}:{WA0+4*fi+3}]"
        if fi < NWA + NWV:
            return f"v[{WV0+4*(fi-NWA)}:{WV0+4*(fi-NWA)+3}]"
        return None

    wo_list = list(range(98))

    def ld_wo():
        if not wo_list:
            return
        fi = wo_list.pop(0)
        r = wo_reg(fi)
        if r is None:
            li = fi - (NWA + NWV)
            if li % 4 == 0:
                k(f"s_add_u32 m0, s47, {li*1024}\ns_add_u32 s48, s46, {fi*1024}")
            vm.issue(f"buffer_load_dwordx4 v4, s[40:43], s48 offen offset:{(li%4)*1024} lds", ("wl", li))
        else:
            if fi % 4 == 0:
                k(f"s_add_u32 s48, s46, {(fi//4)*4096}")
            vm.issue(f"buffer_load_dwordx4 {r}, v4, s[40:43], s48 offen offset:{(fi%4)*1024}", "wo")

    wd_next = [0]
    w_next = [0]

    def ld_wd(V=None):
        u = wd_next[0]; wd_next[0] += 1
        if C["NOWT"]: return
        a, kbl = divmod(u, 28)
        k(f"s_add_u32 s9, s{62 if a == 0 else 65}, {kbl*1024}")
        (V or vm).issue(f"buffer_load_dwordx4 a[{4*u}:{4*u+3}], v4, s[68:71], s9 offen", ("wd", u))

    def ld_w():
        i = w_next[0]; w_next[0] += 1
        if C["NOWT"] and i < 28: return
        k(f"s_add_u32 m0, s63, {((4*i) % NS)*1024}\ns_add_u32 s48, s64, {4*i*1024}")
        vm.issue(f"buffer_load_dwordx4 v4, s[40:43], s48 offen lds", ("w", i))

    ld_kv(0, (0, 1))
    ld_q(1)
    ld_q(2)
    vm.issue(f"buffer_load_dwordx4 a[8:11], v4, s[40:43], s9 offen offset:2048", ("v", 0))
    vm.issue(f"buffer_load_dwordx4 a[12:15], v4, s[40:43], s9 offen offset:3072", ("v", 0))
    ld_q(3)
    ld_q(0)
    ld_kv(1)
    steps = [(t, jj) for t in range(16) for jj in order]
    Sb = [SA, SB]

    def qk(s, half):
        t, jj = steps[s]
        S = Sb[s & 1]
        c = "0" if half == 0 else f"v[{S}:{S+15}]"
        return f"{MF} v[{S}:{S+15}], a[{ab(t)+4*half}:{ab(t)+4*half+3}], v[{Q+8*jj+4*half}:{Q+8*jj+4*half+3}], {c}"

    def pv(s, half):
        t, jj = steps[s]
        o = O + 16 * jj
        c = "0" if (t == 0 and half == 0) else f"v[{o}:{o+15}]"
        return f"{MF} v[{o}:{o+15}], a[{ab(t)+8+4*half}:{ab(t)+8+4*half+3}], v[{P+4*half}:{P+4*half+3}], {c}"

    def need_qk(s):
        t, jj = steps[s]
        if t >= 1:
            vm.wait(("v", t))
        vm.wait(("k", t)); vm.wait(("q", jj))

    for jj in range(1, 4):
        k(f"""
        s_add_u32 s14, s3, {jj}
        s_and_b32 s14, s14, 3
        s_mul_i32 s14, s14, {3*4096}
        s_add_u32 s14, s14, {RED + (jj-1)*4096}
        v_add_u32 v{5+jj}, s14, v4
        """)
    k(f"""
    s_mul_i32 s14, s3, {3*4096}
    s_add_u32 s14, s14, {RED}
    v_add_u32 v5, s14, v4
    """)
    if layer == 0:
        srd(k, 52, P_X, XBYTES)
        k(f"""
        v_and_b32 v10, 7, v1
        s_lshl_b32 s14, s4, 3
        v_add_u32 v10, s14, v10
        v_mul_u32_u24 v10, 896, v10
        v_lshrrev_b32 v14, 4, v1
        v_lshl_add_u32 v10, v14, 3, v10
        s_mul_i32 s49, s3, {7*32}
        """)
    k(f"""
    v_and_b32 v15, 7, v1
    v_add_u32 v15, s6, v15
    v_bfe_u32 v14, v1, 4, 1
    v_lshl_add_u32 v15, v14, 5, v15
    v_lshlrev_b32 v15, 4, v15
    v_lshl_add_u32 v15, v3, 3, v15
    s_mul_i32 s50, s5, 28
    s_mul_i32 s14, s3, 7
    s_add_u32 s50, s50, s14
    s_lshl_b32 s50, s50, 10
    v_and_b32 v11, 7, v1
    v_mul_u32_u24 v12, {OSTR}, v11
    v_lshrrev_b32 v14, 3, v2
    s_lshl_b32 s14, s3, 2
    v_add_u32 v14, s14, v14
    v_mul_u32_u24 v14, 56, v14
    v_add_u32 v11, v12, v14
    v_lshl_add_u32 v11, v3, 3, v11
    v_add_u32 v11, {OB}, v11
    v_lshrrev_b32 v14, 4, v1
    v_lshl_add_u32 v12, v14, 4, v12
    v_add_u32 v12, {OB}, v12
    v_add_u32 v12, s61, v12
    v_add_u32 v13, s47, v4
    v_and_b32 v2, 7, v1
    v_lshlrev_b32 v2, 3, v2
    v_add_u32 v2, {STB}, v2
    s_lshl_b32 s15, s3, 6
    v_add_u32 v3, s15, v2
    s_add_u32 s51, s50, {x1f}
    s_add_u32 s56, s50, {x1f+4096}
    s_add_u32 s57, s50, {xnf}
    s_add_u32 s58, s50, {xnf+4096}
    s_add_u32 s59, s50, {X2F}
    s_add_u32 s60, s50, {X2F+4096}
    s_mov_b32 s61, 0xffff0000
    """)
    srd(k, 68, P_WS, WS_USED)
    k(f"""
    s_and_b32 s14, s4, 15
    s_lshl_b32 s63, s3, 10
    s_mul_i32 s64, s14, {196*1024}
    s_add_u32 s64, s64, s63
    s_add_u32 s64, s64, {WGUF}
    s_and_b32 s15, s14, 7
    s_cmp_lt_u32 s15, 7
    s_cselect_b32 s70, s70, 0
    s_lshl_b32 s15, s15, 1
    s_and_b32 s67, s3, 1
    s_add_u32 s67, s67, s15
    s_xor_b32 s65, s67, 1
    s_mul_i32 s62, s67, {112*1024}
    s_mul_i32 s65, s65, {112*1024}
    s_mul_i32 s15, s3, {28*1024}
    s_add_u32 s7, s15, {WDF}
    s_add_u32 s62, s62, s7
    s_add_u32 s65, s65, s7
    s_lshr_b32 s7, s4, 4
    s_lshl_b32 s7, s7, 2
    s_add_u32 s6, s7, s3
    s_mul_i32 s5, s6, {28*1024}
    s_add_u32 s5, s5, {xnf}
    s_mul_i32 s6, s6, 112
    s_mul_i32 s13, s14, 7
    s_add_u32 s6, s6, s13
    s_lshl_b32 s6, s6, 10
    s_add_u32 s6, s6, {hf}
    s_lshr_b32 s13, s14, 3
    s_lshl_b32 s13, s13, 1
    s_add_u32 s7, s7, s13
    s_lshr_b32 s13, s3, 1
    s_add_u32 s66, s7, s13
    s_xor_b32 s11, s66, 1
    s_mul_i32 s10, s66, {112*1024}
    s_mul_i32 s11, s11, {112*1024}
    s_add_u32 s15, s15, {hf}
    s_add_u32 s10, s10, s15
    s_add_u32 s11, s11, s15
    s_mul_i32 s12, s66, 28
    s_lshl_b32 s13, s67, 1
    s_add_u32 s12, s12, s13
    s_lshl_b32 s12, s12, 10
    s_mov_b32 s13, {BUDGET}
    s_lshr_b32 s15, s2, 3
    s_lshl_b32 s15, s15, 2
    s_add_u32 s15, s15, s3
    s_mul_i32 s15, s15, {98*128}
    s_and_b32 s7, s2, 1
    s_mul_i32 s7, s7, {8*196*1024}
    s_add_u32 s50, s15, s7
    s_add_u32 s50, s50, {WGUF}
    s_add_u32 s100, s15, {WDF}
    v_min_u32 v14, {max(C["TL"], 1) - 1}, v1
    v_lshlrev_b32 v14, 7, v14
    v_mov_b32 v252, -1
    v_mov_b32 v253, -1
    v_mov_b32 v254, -1
    v_mov_b32 v255, -1
    s_mov_b32 s14, {f2h(2.0**-60)}
    s_mov_b32 s15, {f2h(2.0**60)}
    """)
    fills = []
    for ct in range(7):
        fills.append((f"s_add_u32 s44, s6, {ct*1024}", f"buffer_store_dwordx4 v[252:255], v4, s[40:43], s44 offen{SC}", ""))
    if layer == 0:
        for h in range(2):
            fills.append((f"s_add_u32 s44, s12, {X2F + h*1024}", f"buffer_store_dwordx4 v[252:255], v4, s[68:71], s44 offen{SC}", ""))
    if C["FPLAIN"]:
        fills = [(a, b.replace(SC, ""), c) for a, b, c in fills]
    touches = []
    if C["TL"]:
        for sb in (50, 100):
            for i in range(0, 98, C["TL"]):
                touches.append((f"s_add_u32 s44, s{sb}, {i*128}", f"buffer_load_dword v0, v14, s[40:43], s44 offen", ""))

    touches = touches[:C["TN"]]
    st_next = [C["STSKIP"]]

    def stouch(s, pos):
        if s < C["ST0"] or pos >= C["STN"] or st_next[0] >= 392 or s > C["ST1"]:
            return
        i = st_next[0]; st_next[0] += 1
        k(f"s_load_dword s{59 if layer == 0 else 49}, s[{P_WS}:{P_WS+1}], s{100 if i < 196 else 50} offset:{(i % 196) * 64} ; retry")

    def side(lst, tag):
        p, ins, q = lst.pop(0)
        k(p); vm.issue(ins, tag); k(q)

    def lds_wr(jj):
        o = O + 16 * jj
        return [f"ds_write_b128 v{5+jj}, v[{o+4*q}:{o+4*q+3}] offset:{q*1024}" for q in range(4)]

    RES = SA

    def ld_res(nt):
        if layer == 0:
            vm.issue(f"buffer_load_dwordx2 v[{RES+2*nt}:{RES+2*nt+1}], v10, s[52:55], s49 offen offset:{nt*32}", "res")
        else:
            vm.issue(f"buffer_load_dwordx2 v[{RES+2*nt}:{RES+2*nt+1}], v15, s[40:43], s{59 if nt < 4 else 60} offen offset:{(nt%4)*1024}", "res")

    for _ in range(min(C["FPRO"], len(fills))): side(fills, "fill")
    for _ in range(C["TPRO"]): side(touches, "touch")
    need_qk(0)
    stamp_mid(k, 1)
    k(qk(0, 0))
    ld_kv(2, (0, 1))
    k(qk(0, 1))
    vm.issue(f"buffer_load_dwordx4 a[40:43], v4, s[40:43], s9 offen offset:2048", ("v", 2))
    vm.issue(f"buffer_load_dwordx4 a[44:47], v4, s[40:43], s9 offen offset:3072", ("v", 2))
    k("s_nop 7")
    n = len(steps)
    for s in range(n):
        t, jj = steps[s]
        S = Sb[s & 1]
        e = lambda i: f"v_exp_f32 v{S+i}, v{S+i}"
        c = lambda d: f"v_cvt_pk_bf16_f32 v{P+d}, v{S+2*d}, v{S+2*d+1}"
        if s + 1 < n:
            need_qk(s + 1)
            k(qk(s + 1, 0))
        stouch(s, 3)
        if t + 3 < 16:
            ld_kv(t + 3, ((s & 3),))
        else:
            ld_wo()
        for i in range(4): k(e(i))
        if s > 0:
            k(pv(s - 1, 1))
        stouch(s, 2)
        ld_wo()
        for i in range(4, 8): k(e(i))
        if s + 1 < n:
            k(qk(s + 1, 1))
        stouch(s, 0)
        for d in range(4): k(c(d))
        for i in range(8, 11): k(e(i))
        vm.wait(("v", t))
        k(pv(s, 0))
        stouch(s, 1)
        if s & 1:
            ld_wo()
        elif touches and s >= C["T0"] and (s - C["T0"]) % C["TE"] == 0:
            side(touches, "touch")
        elif fills and not C["FTAIL"] and s >= C["F0"] and (s - C["F0"]) % C["FE"] == 0:
            side(fills, "fill")
        extra = []
        if t == 15 and s & 3 >= 2:
            extra = lds_wr(order[(s & 3) - 2])
        if s == n - 1:
            extra = extra + lds_wr(3)
        for i in range(11, 16):
            k(e(i))
            if extra: k(extra.pop(0))
        for d in range(4, 8):
            k(c(d))
            if extra: k(extra.pop(0))
    assert not wo_list and (C['FTAIL'] or not fills) and not touches, (len(fills), len(touches))
    stamp_mid(k, 2)
    tail_wd = [C["WD_TAIL"]]

    def twd(cnt=1):
        for _ in range(cnt):
            if tail_wd[0] > 0:
                tail_wd[0] -= 1; ld_wd()
    for nt in range(2): ld_res(nt)
    k(pv(n - 1, 1))
    for nt in range(2, 7): ld_res(nt)
    twd(2)
    k("s_waitcnt lgkmcnt(0)\ns_barrier")
    stamp_mid(k, 3)
    R = 64
    for j in range(3):
        for q in range(4):
            r = R + 16 * j + 4 * q
            k(f"ds_read_b128 v[{r}:{r+3}], v5 offset:{j*4096+q*1024}")
    twd(3)
    for j in range(3):
        k(f"s_waitcnt lgkmcnt({8-4*j})")
        for r in range(0, 16, 2):
            k(f"v_pk_add_f32 v[{O+r}:{O+r+1}], v[{O+r}:{O+r+1}], v[{R+16*j+r}:{R+16*j+r+1}]")
        twd(1)
    FB, NORM = k.name + "_fb", k.name + "_norm"
    k(f"""
    v_mov_b32 v9, v{O+12}
    v_mov_b32 v8, v{O+12}
    s_nop 1
    v_permlane32_swap_b32 v9, v8
    v_rcp_f32 v9, v8
    v_cmp_nle_f32 vcc, s14, v8
    v_cmp_nge_f32 s[44:45], s15, v8
    s_or_b64 vcc, vcc, s[44:45]
    s_cbranch_vccnz {FB}
    {NORM}:
    """)
    for r in range(0, 16, 2):
        k(f"v_pk_mul_f32 v[{O+r}:{O+r+1}], v[{O+r}:{O+r+1}], v[8:9] op_sel:[0,1] op_sel_hi:[1,1]")
    for q in range(4):
        k(f"v_cvt_pk_bf16_f32 v{P+2*q}, v{O+4*q}, v{O+4*q+1}")
        k(f"v_cvt_pk_bf16_f32 v{P+2*q+1}, v{O+4*q+2}, v{O+4*q+3}")
        if q == 3:
            k("s_mov_b32 exec_hi, 0")
        k(f"ds_write_b64 v11, v[{P+2*q}:{P+2*q+1}] offset:{16*q}")
        k(f"ds_write_b64 v11, v[{P+2*q}:{P+2*q+1}] offset:{16*q+896}")
    k("s_mov_b32 exec_hi, -1")
    twd(2)
    ACC = 16
    vm.wait("res")
    for d in range(14):
        k(f"v_lshlrev_b32 v{ACC+2*d}, 16, v{RES+d}")
        k(f"v_and_b32 v{ACC+2*d+1}, s61, v{RES+d}")
        if d in (4, 9): twd(1)
    BF = [44 + 4 * i for i in range(14)]
    LR = 112
    lg = LG()
    k("s_waitcnt lgkmcnt(0)\ns_barrier")
    stamp_mid(k, 4)
    for ks in range(14):
        lg.issue(("b", ks))
        k(f"ds_read_b128 v[{BF[ks]}:{BF[ks]+3}], v12 offset:{ks*64}")
    twd(100)

    def rd_wl(li):
        r = LR + 4 * (li % 8)
        vm.wait(("wl", li))
        lg.issue(("wl", li))
        k(f"ds_read_b128 v[{r}:{r+3}], v13 offset:{li*1024}")
    nxt_wl = 0
    gl = ["w"] * C["G_W"] + ["wd"] * C["G_WD"]
    for fi in range(98):
        ks, nt = fi // 7, fi % 7
        if fi >= 60 and nxt_wl < NWL and (nxt_wl < 8 or fi - (NWA + NWV) > nxt_wl - 8):
            rd_wl(nxt_wl); nxt_wl += 1
        w = lg.waitstr(("b", ks))
        if w: k(w)
        a = wo_reg(fi)
        if a is None:
            li = fi - (NWA + NWV)
            w = lg.waitstr(("wl", li))
            if w: k(w)
            a = f"v[{LR+4*(li%8)}:{LR+4*(li%8)+3}]"
        acc = f"v[{ACC+4*nt}:{ACC+4*nt+3}]"
        k(f"{MF16} {acc}, {a}, v[{BF[ks]}:{BF[ks]+3}], {acc}")
        if gl and fi % C["G_EVERY"] == 0:
            x = gl.pop(0)
            if x == "w":
                assert w_next[0] < 12
                ld_w()
            else:
                assert wd_next[0] - 16 <= fi
                ld_wd()
    assert not gl
    stamp_mid(k, 5)
    X1P = 44
    pr = lambda i: f"v[{ACC+2*i}:{ACC+2*i+1}]"
    k("s_mov_b32 exec_lo, 0x00ff00ff\ns_mov_b32 exec_hi, 0x00ff00ff")
    for nt in range(7):
        k(f"v_cvt_pk_bf16_f32 v{X1P+2*nt}, v{ACC+4*nt}, v{ACC+4*nt+1}")
        k(f"v_cvt_pk_bf16_f32 v{X1P+2*nt+1}, v{ACC+4*nt+2}, v{ACC+4*nt+3}")
        if nt == 0:
            k(f"v_pk_add_f32 v[6:7], {pr(0)}, {pr(1)}")
            k(f"v_pk_mul_f32 v[8:9], {pr(0)}, {pr(0)}")
            k(f"v_pk_fma_f32 v[8:9], {pr(1)}, {pr(1)}, v[8:9]")
        else:
            for i in (2 * nt, 2 * nt + 1):
                k(f"v_pk_add_f32 v[6:7], v[6:7], {pr(i)}")
                k(f"v_pk_fma_f32 v[8:9], {pr(i)}, {pr(i)}, v[8:9]")
        vm.issue(f"buffer_store_dwordx2 v[{X1P+2*nt}:{X1P+2*nt+1}], v15, s[40:43], s{51 if nt < 4 else 56} offen offset:{(nt%4)*1024}{SC}", "xst")
        if nt < C["T_X1"] and wd_next[0] < 56:
            k("s_mov_b64 exec, -1")
            ld_wd()
            k("s_mov_b32 exec_lo, 0x00ff00ff\ns_mov_b32 exec_hi, 0x00ff00ff")
    k(f"""
    v_add_f32 v6, v6, v7
    v_add_f32 v7, v8, v9
    s_mov_b64 exec, -1
    v_mov_b32 v8, v6
    v_mov_b32 v9, v7
    s_nop 0
    v_permlane32_swap_b32 v6, v8
    v_permlane32_swap_b32 v7, v9
    v_pk_add_f32 v[6:7], v[6:7], v[8:9]
    s_nop 0
    v_mov_b32 v8, v6
    v_mov_b32 v9, v7
    s_nop 0
    v_permlane16_swap_b32 v6, v8
    v_permlane16_swap_b32 v7, v9
    s_mov_b32 exec_lo, 0x00ff00ff
    s_mov_b32 exec_hi, 0x00ff00ff
    v_pk_add_f32 v[6:7], v[6:7], v[8:9]
    ds_write_b64 v3, v[6:7]
    """)
    W0 = w_next[0]
    vm.wait(("w", W0 - 1), "lgkmcnt(0)")
    k(f"""
    s_barrier
    ds_read_b64 v[64:65], v2
    ds_read_b64 v[66:67], v2 offset:64
    ds_read_b64 v[68:69], v2 offset:128
    ds_read_b64 v[70:71], v2 offset:192
    """)
    if C["T_ST"]:
        k("s_mov_b64 exec, -1")
        for _ in range(C["T_ST"]): ld_w()
        k("s_mov_b32 exec_lo, 0x00ff00ff\ns_mov_b32 exec_hi, 0x00ff00ff")
    k(f"""
    s_waitcnt lgkmcnt(2)
    v_pk_add_f32 v[64:65], v[64:65], v[66:67]
    s_waitcnt lgkmcnt(0)
    v_pk_add_f32 v[68:69], v[68:69], v[70:71]
    v_pk_add_f32 v[6:7], v[64:65], v[68:69]
    """)
    stats_finish(k, 6, 7)
    k("s_nop 0\nv_mul_f32 v6, -v6, v7")
    U = 64
    for nt in range(7):
        for i in (2 * nt, 2 * nt + 1):
            k(f"v_pk_fma_f32 {pr(i)}, {pr(i)}, v[6:7], v[6:7] op_sel:[0,1,0] op_sel_hi:[1,1,0]")
        k(f"v_cvt_pk_bf16_f32 v{U+2*nt}, v{ACC+4*nt}, v{ACC+4*nt+1}")
        k(f"v_cvt_pk_bf16_f32 v{U+2*nt+1}, v{ACC+4*nt+2}, v{ACC+4*nt+3}")
        vm.issue(f"buffer_store_dwordx2 v[{U+2*nt}:{U+2*nt+1}], v15, s[40:43], s{57 if nt < 4 else 58} offen offset:{(nt%4)*1024}{SC}", "xst")
    k("s_mov_b64 exec, -1")
    stamp_mid(k, 6)
    for _ in range(C["W_ACK"]): ld_w()
    WPRE = w_next[0]
    assert WPRE <= 39
    k(f"""
    v_add_u32 v5, 0x10000, v4
    v_add_u32 v6, 0x20000, v4
    """)
    if layer == 0:
        k(f"""
        s_mul_i32 s58, s67, {28*1024}
        s_xor_b32 s59, s67, 1
        s_mul_i32 s59, s59, {28*1024}
        s_mul_i32 s9, s3, {7*1024}
        s_add_u32 s9, s9, {WQF}
        s_add_u32 s58, s58, s9
        s_add_u32 s59, s59, s9
        s_lshl_b32 s60, s67, 7
        s_add_u32 s60, s60, {CSQ}
        """)
    stubs = []

    def chk_ops(regs):
        o = []
        for i, r in enumerate(regs):
            kind, b = r[0], int(r[2:r.index(":")])
            if kind == "a":
                o += [f"v_accvgpr_read_b32 v2, a{b}", f"v_accvgpr_read_b32 v7, a{b+2}"]
                p, q = "v2", "v7"
            else:
                p, q = f"v{b}", f"v{b+2}"
            o.append(f"v_max_u32 v3, {p}, {q}" if i == 0 else f"v_max3_u32 v3, {p}, {q}, v3")
        o.append("v_cmp_eq_u32 vcc, -1, v3")
        return o

    def spin(lb, loads, regs, back, inline=False):
        mk = "" if inline else " ; retry"
        k(f"{lb}:")
        for pre, ins in loads:
            k(pre); k(ins + mk)
        k(f"s_sub_i32 s13, s13, 1\ns_cmp_lt_i32 s13, 0\ns_waitcnt vmcnt(0){mk}")
        for o in chk_ops(regs): k(o + mk)
        k(f"s_cbranch_scc1 {back}{mk}\ns_cbranch_vccnz {lb}{mk}")

    def chk_branch(loads, regs):
        lb = k.newlabel("st")
        k(f"s_cbranch_vccnz {lb}\n{lb}_b:")
        stubs.append((lb, loads, regs))

    lg = LG()
    A4, WR, HP = 16, 128, 152
    NR, RA = 6, 4
    A5 = [64, 96, 80, 112]
    RS5 = 8

    def xreg(kb):
        i = KO.index(kb)
        return f"v[{176+4*i}:{179+4*i}]" if i < 20 else f"a[{224+4*(i-20)}:{227+4*(i-20)}]"

    def x_ld(kb):
        return (f"s_add_u32 s44, s5, {kb*1024}", f"buffer_load_dwordx4 {xreg(kb)}, v4, s[40:43], s44 offen{SC}")

    kbo = [7 * g + c for g in range(4) for c in range(3)] + [7 * g + c for g in range(4) for c in (3, 4)] + [7 * g + c for g in range(4) for c in (5, 6)]
    p5 = []
    for i in range(4): p5 += [(0, i), (2, i)]
    for i in range(4): p5 += [(1, i), (3, i)]
    for i in range(4, 25):
        p5 += [(0, i), (2, i), (1, i), (3, i)]
    for i in (25, 26, 27):
        p5 += [(1, i), (2, i), (3, i)]
    p5 += [(0, 25), (0, 26), (0, 27)]
    assert len(p5) == 112
    N4 = 196
    NT = N4 + 112
    land = [(f"v[{16+4*i}:{19+4*i}]", 100) for i in range(12)] + [(f"v[{160+4*i}:{163+4*i}]", 0) for i in range(4)] \
        + [(xreg(kb), 141 + 2 * kb) for kb in range(28)] + [(f"v[{128+4*i}:{131+4*i}]", N4 + 8) for i in range(8)] \
        + [(f"v[{16+4*i}:{19+4*i}]", N4 + 16) for i in range(4)]
    assert len(land) == 56
    h_use = {}; wd_use = {}
    for s, (slot, i) in enumerate(p5):
        h_use.setdefault(i, N4 + s)
        wd_use.setdefault((slot & 1) * 28 + kbo[i], N4 + s)

    def h_ld(hi):
        i, b = hi >> 1, hi & 1
        return (f"s_add_u32 s44, s{10+b}, {kbo[i]*1024}", f"buffer_load_dwordx4 {land[hi][0]}, v4, s[68:71], s44 offen{SC}")

    res_ld = [(f"s_add_u32 s44, s12, {x1f + h*1024}", f"buffer_load_dwordx4 v[{RS5+4*h}:{RS5+4*h+3}], v4, s[68:71], s44 offen{SC}") for h in range(2)]

    def item(ld, tag):
        def f():
            k(ld[0]); vm.issue(ld[1], tag)
        return f

    items = []
    for i in range(4, 28):
        items.append((3 * i - 3, -1, item(x_ld(KO[i]), ("x", i))))
    bars = sorted(C["BARS"])
    assert bars[0] <= 4 * W0 - RA and bars[0] >= 40
    cover = {i: max(b for b in bars if b <= 4 * i - RA) for i in range(W0, 49)}
    for i in range(WPRE, 49):
        items.append((max(cover[i] - 20, 0) + (i - WPRE) * 0.01, bars[0] if 4 * i >= NS else -1, ld_w))
    for u in range(wd_next[0], 56):
        items.append((N4 - 20, -1, ld_wd))
    for h in range(2):
        items.append((150, -1, item(res_ld[h], "res5")))
    for hi in range(56):
        part = 0 if hi < 24 else (1 if hi < 40 else 2)
        items.append((h_use[hi >> 1] - 3, max(C["HT"][part], land[hi][1]), item(h_ld(hi), ("h", hi >> 1))))
    wq_regs = [a * 28 + kbo[i] for i in range(7) for a in range(2)]
    CS = 32

    def p1b_prefetch(V):
        o = []
        for a in range(2):
            for kbl in range(7):
                def f(a=a, kbl=kbl):
                    u = wq_regs[a * 7 + kbl]
                    k(f"s_add_u32 s44, s{58+a}, {kbl*1024}")
                    V.issue(f"buffer_load_dwordx4 a[{4*u}:{4*u+3}], v4, s[40:43], s44 offen", "wq")
                o.append(f)

        def g():
            k(f"v_lshrrev_b32 v0, 5, v1\nv_lshlrev_b32 v0, 4, v0")
            for q in range(4):
                V.issue(f"buffer_load_dwordx4 v[{160+4*q}:{160+4*q+3}], v0, s[40:43], s60 offen offset:{q*32}", "wq")
        o.append(g)
        return o
    CS = 160
    if layer == 0:
        for f in p1b_prefetch(vm):
            items.append((NT + 10, N4 + 36, f))
    items.sort(key=lambda t: t[0])
    queue = list(items)

    def issue_next(n):
        for idx, (use, mi, f) in enumerate(queue):
            if mi <= n:
                queue.pop(idx); f(); return True
        return False

    def force(n):
        while queue and queue[0][0] <= n:
            assert queue[0][1] <= n, (n, queue[0])
            queue.pop(0)[2]()

    def rd(f):
        slot = (f % NS) * 1024
        base = [4, 5, 6][slot >> 16]
        r = WR + 4 * (f % NR)
        lg.issue(("w", f))
        k(f"ds_read_b128 v[{r}:{r+3}], v{base} offset:{slot & 0xffff}")

    fill = []

    def epi_ops(ct, V, gaps=3):
        a = A4 + 16 * ct
        hp = HP + 4 * (ct & 1)
        o = ["GAP"] * gaps
        for r in range(0, 8, 2):
            o.append(f"v_pk_mul_f32 v[{a+r}:{a+r+1}], v[{a+r}:{a+r+1}], v[{a+8+r}:{a+9+r}]")
        for d in range(4):
            o.append(f"v_cvt_pk_bf16_f32 v{hp+d}, v{a+2*d}, v{a+2*d+1}")

        def st():
            k(f"s_add_u32 s45, s6, {ct*1024}")
            V.issue(f"buffer_store_dwordx4 v[{hp}:{hp+3}], v4, s[40:43], s45 offen{SC}", ("hst", ct))
        o.append(st)
        return o

    def run_fill(n):
        cnt = 0
        while fill and cnt < n:
            f = fill.pop(0)
            if f == "GAP":
                break
            if callable(f): f()
            else: k(f)
            cnt += 1

    stamp_mid(k, 7)
    pl = k.newlabel("pr")
    for f in range(RA): rd(f)
    spin(pl, [x_ld(kb) for kb in KO[:4]], [xreg(kb) for kb in KO[:4]], pl + "_b", True)
    k(f"{pl}_b:")
    vm.done = len(vm.tags)
    stamp_mid(k, 8)
    for _ in range(C["X_BURST"]):
        issue_next(-1)
    nxt = 0; pi = [0]
    NOROLE = k.name + "_norole"
    P1B = k.name + "_p1b"
    val = {}
    for i in range(4, 28, 2):
        val[3 * i - 2] = (("x", i + 1), [x_ld(KO[i]), x_ld(KO[i + 1])], [xreg(KO[i]), xreg(KO[i + 1])])
    for i in range(28):
        c = h_use[i] - 2
        while c in val: c -= 1
        val[c] = (("h", i), [h_ld(2 * i), h_ld(2 * i + 1)], [land[2 * i][0], land[2 * i + 1][0]])
    val[156] = ("res5", res_ld, [f"v[{RS5}:{RS5+3}]", f"v[{RS5+4}:{RS5+7}]"])
    pend = None
    for n in range(NT):
        if n in SS: common.stamp_mid(k, [i for i in range(1, 20) if i != 8][list(SS).index(n)])
        force(n)
        if n in bars:
            cv = [i for i in cover if cover[i] == n]
            if cv: vm.wait(("w", max(cv)))
            k("s_barrier")
        if n < N4 and n + RA < N4: rd(n + RA)
        if pend:
            chk_branch(pend[1], pend[2]); pend = None
        if n in val:
            pend = val[n]
            while pend[0] not in vm.tags:
                assert issue_next(n), (n, pend[0])
            if pend[0][0] == "h":
                while vm.tags.count(pend[0]) < 2: assert issue_next(n)
            vm.wait(pend[0])
            for o in chk_ops(pend[2]): k(o)
        if n < N4:
            ct, kb = p4_fk(n)
            w = lg.waitstr(("w", n))
            if w: k(w)
            r = WR + 4 * (n % NR)
            a = A4 + 16 * ct
            first = (kb == KO[0]) if ct < 3 else (kb == 0)
            last = (kb == KO[27]) if ct < 3 else (kb == 27)
            c = "0" if first else f"v[{a}:{a+15}]"
            k(f"{MF} v[{a}:{a+15}], v[{r}:{r+3}], {xreg(kb)}, {c}")
            if n == 0: stamp_mid(k, 9)
            if n == 83: stamp_mid(k, 10)
            if n == 139: stamp_mid(k, 11)
            if last and ct != 5:
                if ct == 6:
                    fill.extend(epi_ops(5, vm, gaps=1) + epi_ops(6, vm, gaps=0))
                else:
                    fill.extend(epi_ops(ct, vm, gaps=3 if ct in (0, 3) else 0))
            if n == 158:
                for d in range(8):
                    fill.append(f"v_lshlrev_b32 v{A5[0]+2*d}, 16, v{RS5+d}")
                    fill.append(f"v_and_b32 v{A5[0]+2*d+1}, s61, v{RS5+d}")
        else:
            slot, i = p5[n - N4]
            hi = 2 * i + (slot >> 1)
            u = (slot & 1) * 28 + kbo[i]
            vm.wait(("wd", u))
            a = A5[slot]
            c = "0" if (i == 0 and slot != 0) else f"v[{a}:{a+15}]"
            if n - N4 == 8:
                assert not fill
            k(f"{MF} v[{a}:{a+15}], a[{4*u}:{4*u+3}], {land[hi][0]}, {c}")
            if n == N4 + 48: stamp_mid(k, 13)
            if n == N4 + 80: stamp_mid(k, 14)
            if n == NT - 8:
                for s in range(1, 4):
                    k(f"""
                    s_xor_b32 s9, s3, {s}
                    s_mul_i32 s9, s9, {3*4096}
                    s_add_u32 s9, s9, {(s-1)*4096}
                    v_add_u32 v{4+s}, s9, v4
                    """)
                k(f"s_mul_i32 s9, s3, {3*4096}\nv_add_u32 v2, s9, v4")
            if n >= NT - 3:
                s = n - (NT - 3) + 1
                for q in range(4):
                    k(f"ds_write_b128 v{4+s}, v[{A5[s]+4*q}:{A5[s]+4*q+3}] offset:{q*1024}")
        if n == N4 - 1:
            stamp_mid(k, 12)
            if pend:
                chk_branch(pend[1], pend[2]); pend = None
            k(f"s_cmp_eq_u32 s70, 0\ns_cbranch_scc1 {NOROLE}")
        if n >= nxt and queue:
            if issue_next(n):
                nxt = n + C["PACE"][pi[0] % len(C["PACE"])]; pi[0] += 1
        run_fill(8 if n >= N4 - 1 else 4)
    assert not fill and not pend
    while queue: issue_next(NT)
    stamp_mid(k, 16)

    def reduce3(A, R, stride=4096, extra=None):
        k("s_waitcnt lgkmcnt(0)\ns_barrier")
        if extra: extra(0)
        for j in range(3):
            for q in range(4):
                r = R + 16 * j + 4 * q
                k(f"ds_read_b128 v[{r}:{r+3}], v2 offset:{j*stride+q*1024}")
        if extra: extra(1)
        for j in range(3):
            k(f"s_waitcnt lgkmcnt({8-4*j})")
            for r in range(0, 16, 2):
                k(f"v_pk_add_f32 v[{A+r}:{A+r+1}], v[{A+r}:{A+r+1}], v[{R+16*j+r}:{R+16*j+r+1}]")
    if layer == 1:
        srd(k, 44, P_OUT, XBYTES)
        k(f"""
        v_and_b32 v7, 31, v1
        s_lshl_b32 s9, s66, 5
        v_add_u32 v7, s9, v7
        v_mul_u32_u24 v7, 896, v7
        v_lshrrev_b32 v3, 5, v1
        v_lshl_add_u32 v7, v3, 4, v7
        s_lshl_b32 s9, s67, 6
        """)
    reduce3(A5[0], 16)
    PK = 8
    for d in range(8):
        k(f"v_cvt_pk_bf16_f32 v{PK+d}, v{A5[0]+2*d}, v{A5[0]+2*d+1}")
    dbg = f"s_sub_u32 s91, {BUDGET + 1}, s13\ns_add_u32 s91, s91, s92" if common.STAMP else ""
    if layer == 1:
        k(f"""
        v_permlane32_swap_b32 v{PK}, v{PK+2}
        v_permlane32_swap_b32 v{PK+1}, v{PK+3}
        v_permlane32_swap_b32 v{PK+4}, v{PK+6}
        v_permlane32_swap_b32 v{PK+5}, v{PK+7}
        buffer_store_dwordx4 v[{PK}:{PK+3}], v7, s[44:47], s9 offen
        buffer_store_dwordx4 v[{PK+4}:{PK+7}], v7, s[44:47], s9 offen offset:32
        {dbg}
        s_endpgm
        """)
    else:
        k(f"""
        s_add_u32 s9, s12, {X2F}
        buffer_store_dwordx4 v[{PK}:{PK+3}], v4, s[40:43], s9 offen{SC}
        buffer_store_dwordx4 v[{PK+4}:{PK+7}], v4, s[40:43], s9 offen offset:1024{SC}
        """)
        stamp_mid(k, 17)
        RB, RSTR = 49152, 4608
        k(f"""
        {P1B}:
        s_mul_i32 s10, s66, {28*1024}
        s_xor_b32 s11, s66, 1
        s_mul_i32 s11, s11, {28*1024}
        s_mul_i32 s9, s3, {7*1024}
        s_add_u32 s9, s9, {X2F}
        s_add_u32 s10, s10, s9
        s_add_u32 s11, s11, s9
        s_lshr_b32 s4, s66, 1
        s_and_b32 s12, s66, 1
        s_lshr_b32 s5, s67, 1
        s_mov_b32 s48, s13
        s_and_b32 s13, s67, 1
        v_and_b32 v2, 31, v1
        s_mov_b32 s14, 0x3f803f80
        """)
        qkv_setup(k, KVF1)
        k("s_mov_b32 s13, s48")
        for s in range(1, 4):
            k(f"""
            s_xor_b32 s9, s3, {s}
            s_mul_i32 s9, s9, {3*RSTR}
            s_add_u32 s9, s9, {RB + (s-1)*RSTR}
            v_add_u32 v{4+s}, s9, v4
            v_lshl_add_u32 v{8+s}, v1, 3, s9
            """)
        k(f"s_mul_i32 s9, s3, {3*RSTR}\ns_add_u32 s9, s9, {RB}\nv_add_u32 v12, s9, v4\nv_lshl_add_u32 v8, v1, 3, s9")
        ko2 = [0, 2, 4, 6, 1, 3, 5]

        def x2reg(b, kbl):
            i = 2 * kbl + b
            return f"v[{176+4*i}:{179+4*i}]"

        def x2_ld(b, kbl):
            return (f"s_add_u32 s44, s{10+b}, {kbl*1024}", f"buffer_load_dwordx4 {x2reg(b, kbl)}, v4, s[40:43], s44 offen{SC}")
        pl = k.newlabel("pr")
        pr8 = [(b, kbl) for kbl in ko2[:4] for b in range(2)]
        spin(pl, [x2_ld(*x) for x in pr8], [x2reg(*x) for x in pr8], pl + "_b", True)
        k(f"{pl}_b:")
        stamp_mid(k, 18)
        V2 = VM(k)
        for kbl in ko2[4:]:
            for b in range(2):
                p, ins = x2_ld(b, kbl)
                k(p); V2.issue(ins, ("x2", kbl))
        k("v_mov_b32 v2, v12\nv_lshrrev_b32 v13, 5, v1")
        SS1 = 24
        dots = []
        for kbl in ko2:
            for b in range(2):
                r0 = 176 + 4 * (2 * kbl + b)
                for d in range(4):
                    fst = kbl == 0 and d == 0
                    dots.append((kbl, f"v_dot2_f32_bf16 v{SS1+2*b}, v{r0+d}, s14, {'0' if fst else 'v%d' % (SS1+2*b)}"))
                    dots.append((kbl, f"v_dot2_f32_bf16 v{SS1+2*b+1}, v{r0+d}, v{r0+d}, {'0' if fst else 'v%d' % (SS1+2*b+1)}"))
        seq = []
        for kbl in ko2[:4]:
            seq += [(s, kbl) for s in (0, 1, 2, 3)]
        for kbl in ko2[4:]:
            seq += [(s, kbl) for s in (1, 2, 3)]
        seq += [(0, kbl) for kbl in ko2[4:]]
        ok = set(ko2[:4])
        for idx, (slot, kbl) in enumerate(seq):
            if idx == 14:
                V2.wait(("x2", ko2[6]))
                for o in chk_ops([x2reg(b, kk) for kk in ko2[4:] for b in range(2)]): k(o)
            if idx == 16:
                chk_branch([x2_ld(b, kk) for kk in ko2[4:] for b in range(2)], [x2reg(b, kk) for kk in ko2[4:] for b in range(2)])
                ok |= set(ko2[4:])
            u = wq_regs[(slot & 1) * 7 + kbl]
            a = A5[slot]
            c = "0" if kbl == 0 else f"v[{a}:{a+15}]"
            k(f"{MF} v[{a}:{a+15}], a[{4*u}:{4*u+3}], {x2reg(slot >> 1, kbl)}, {c}")
            for _ in range(5 if idx < 25 else 0):
                if dots and dots[0][0] in ok: k(dots.pop(0)[1])
            if idx == 24:
                while dots: k(dots.pop(0)[1])
            if idx >= 25:
                s = idx - 24
                for q in range(4):
                    k(f"ds_write_b128 v{4+s}, v[{A5[s]+4*q}:{A5[s]+4*q+3}] offset:{q*1024}")
                k(f"ds_write_b64 v{8+s}, v[{SS1+2*(s>>1)}:{SS1+2*(s>>1)+1}] offset:4096")
        stamp_mid(k, 15)

        def st_extra(ph):
            if ph == 0:
                for j in range(3):
                    k(f"ds_read_b64 v[{16+2*j}:{17+2*j}], v8 offset:{j*RSTR+4096}")
            else:
                k(f"""
                s_waitcnt lgkmcnt(12)
                v_pk_add_f32 v[16:17], v[16:17], v[18:19]
                v_pk_add_f32 v[{SS1}:{SS1+1}], v[{SS1}:{SS1+1}], v[20:21]
                v_pk_add_f32 v[30:31], v[16:17], v[{SS1}:{SS1+1}]
                v_mov_b32 v3, v13
                v_mov_b32 v16, v30
                v_mov_b32 v17, v31
                s_nop 0
                v_permlane32_swap_b32 v30, v16
                v_permlane32_swap_b32 v31, v17
                v_pk_add_f32 v[30:31], v[30:31], v[16:17]
                """)
                stats_finish(k, 30, 31)
        reduce3(A5[0], 176, RSTR, st_extra)
        qkv_epilogue(k, A5[0], CS)
        k(dbg)
        k("s_endpgm")
    k(f"{NOROLE}:\ns_nop 15")
    V3 = VM(k)
    for f in epi_ops(5, V3, gaps=0) + epi_ops(6, V3, gaps=0):
        if callable(f): f()
        else: k(f)
    if layer == 0:
        k("s_waitcnt vmcnt(0)")
        for f in p1b_prefetch(V3): f()
        k(f"""
        s_lshr_b32 s9, s4, 3
        s_lshl_b32 s9, s9, 2
        s_add_u32 s9, s9, s3
        s_mul_i32 s9, s9, {28*1024}
        s_add_u32 s9, s9, {X1F1}
        v_mov_b32 v16, -1
        v_mov_b32 v17, -1
        v_mov_b32 v18, -1
        v_mov_b32 v19, -1
        """)
        for i in range(28):
            if i and i % 4 == 0: k("s_add_u32 s9, s9, 4096")
            k(f"buffer_store_dwordx4 v[16:19], v4, s[40:43], s9 offen offset:{(i%4)*1024}{SC}")
        k(f"s_branch {P1B}")
    else:
        k("s_endpgm")
    for lb, loads, regs in stubs:
        spin(lb, loads, regs, lb + "_b")
        k(f"s_branch {lb}_b ; retry")
    KR = 64
    S = 80
    k(f"""
    {FB}:
    v_mov_b32 v14, 0xff800000
    s_mov_b32 s9, {kvf}
    {FB}_l1:
    buffer_load_dwordx4 v[{KR}:{KR+3}], v4, s[40:43], s9 offen
    buffer_load_dwordx4 v[{KR+4}:{KR+7}], v4, s[40:43], s9 offen offset:1024
    s_waitcnt vmcnt(0)
    {MF} v[{S}:{S+15}], v[{KR}:{KR+3}], v[{Q}:{Q+3}], 0
    {MF} v[{S}:{S+15}], v[{KR+4}:{KR+7}], v[{Q+4}:{Q+7}], v[{S}:{S+15}]
    """)
    for r in range(0, 16, 2):
        k(f"v_max3_f32 v14, v{S+r}, v{S+r+1}, v14")
    k(f"""
    s_add_u32 s9, s9, 4096
    s_cmp_lt_u32 s9, {kvf + 64*4096}
    s_cbranch_scc1 {FB}_l1
    v_mov_b32 v8, v14
    s_nop 1
    v_permlane32_swap_b32 v14, v8
    v_max_f32 v14, v14, v8
    """)
    for r in range(16):
        k(f"v_mov_b32 v{O+r}, 0")
    k(f"""
    s_mov_b32 s9, {kvf}
    {FB}_l2:
    buffer_load_dwordx4 v[{KR}:{KR+3}], v4, s[40:43], s9 offen
    buffer_load_dwordx4 v[{KR+4}:{KR+7}], v4, s[40:43], s9 offen offset:1024
    buffer_load_dwordx4 v[{KR+8}:{KR+11}], v4, s[40:43], s9 offen offset:2048
    buffer_load_dwordx4 v[{KR+12}:{KR+15}], v4, s[40:43], s9 offen offset:3072
    s_waitcnt vmcnt(0)
    {MF} v[{S}:{S+15}], v[{KR}:{KR+3}], v[{Q}:{Q+3}], 0
    {MF} v[{S}:{S+15}], v[{KR+4}:{KR+7}], v[{Q+4}:{Q+7}], v[{S}:{S+15}]
    """)
    for r in range(16):
        k(f"v_sub_f32 v{S+r}, v{S+r}, v14")
    for r in range(16):
        k(f"v_exp_f32 v{S+r}, v{S+r}")
    for d in range(8):
        k(f"v_cvt_pk_bf16_f32 v{P+d}, v{S+2*d}, v{S+2*d+1}")
    k(f"""
    {MF} v[{O}:{O+15}], v[{KR+8}:{KR+11}], v[{P}:{P+3}], v[{O}:{O+15}]
    {MF} v[{O}:{O+15}], v[{KR+12}:{KR+15}], v[{P+4}:{P+7}], v[{O}:{O+15}]
    s_add_u32 s9, s9, 4096
    s_cmp_lt_u32 s9, {kvf + 64*4096}
    s_nop 7
    s_cbranch_scc1 {FB}_l2
    s_nop 7
    v_mov_b32 v9, v{O+12}
    v_mov_b32 v8, v{O+12}
    s_nop 1
    v_permlane32_swap_b32 v9, v8
    v_rcp_f32 v9, v8
    s_nop 1
    s_branch {NORM}
    """)
    epilogue(k)
    return k, dict(grid=256, block=256, lds=LDS)
```

```python
from common import *
import struct, math


def f2h(x):
    return "0x%08x" % struct.unpack("<I", struct.pack("<f", x))[0]


QSCALE = (28 ** -0.5) * math.log2(math.e)
MF = "v_mfma_f32_32x32x16_bf16"


def stats_finish(k, s1, s2):
    k(f"""
    v_mul_f32 v{s1}, {f2h(1.0/448)}, v{s1}
    v_mul_f32 v{s2}, {f2h(1.0/448)}, v{s2}
    v_fma_f32 v{s2}, -v{s1}, v{s1}, v{s2}
    v_max_f32 v{s2}, 0, v{s2}
    v_add_f32 v{s2}, {f2h(1e-5)}, v{s2}
    v_rsq_f32 v{s2}, v{s2}
    """)


def qkv_setup(k, kvf=KVF):
    k(f"""
    s_lshl_b32 s6, s4, 1
    s_add_u32 s6, s6, s12
    s_lshl_b32 s7, s5, 1
    s_add_u32 s62, s7, s13
    s_lshl_b32 s8, s6, 4
    s_add_u32 s8, s8, s62
    s_lshl_b32 s8, s8, 11
    s_add_u32 s60, s8, {QF}
    v_lshlrev_b32 v50, 4, v1
    s_lshl_b32 s9, s6, 12
    s_add_u32 s9, s9, {kvf}
    s_and_b32 s6, s62, 7
    s_lshr_b32 s7, s6, 2
    s_lshl_b32 s7, s7, 10
    s_and_b32 s8, s6, 1
    s_lshl_b32 s8, s8, 9
    s_add_u32 s7, s7, s8
    s_and_b32 s8, s6, 2
    s_lshl_b32 s8, s8, 2
    s_add_u32 s7, s7, s8
    s_lshl_b32 s8, s6, 6
    s_add_u32 s8, s8, 2048
    s_cmp_ge_u32 s62, 8
    s_cselect_b32 s7, s8, s7
    s_cselect_b64 vcc, -1, 0
    s_add_u32 s61, s9, s7
    v_lshrrev_b32 v51, 4, v2
    v_lshlrev_b32 v51, 10, v51
    v_bfe_u32 v52, v2, 2, 1
    v_lshl_add_u32 v51, v52, 9, v51
    v_and_b32 v52, 3, v2
    v_lshl_add_u32 v51, v52, 1, v51
    v_bfe_u32 v52, v2, 3, 1
    v_lshl_add_u32 v51, v52, 3, v51
    v_lshlrev_b32 v52, 4, v2
    v_cndmask_b32 v51, v52, v51, vcc
    """)


def qkv_epilogue(k, ACC, CS):
    k(f"""
    v_mul_f32 v36, {f2h(QSCALE)}, v31
    v_cmp_eq_u32 vcc, 1, v3
    v_sub_f32 v30, 0, v30
    v_cndmask_b32 v37, v36, v31, vcc
    """)
    for r in range(16):
        k(f"v_fmac_f32 v{ACC+r}, v30, v{CS+r}")
    for r in range(16):
        k(f"v_mul_f32 v{ACC+r}, v{36 if r < 12 else 37}, v{ACC+r}")
    PKD = 40
    for d in range(8):
        k(f"v_cvt_pk_bf16_f32 v{PKD+d}, v{ACC+2*d}, v{ACC+2*d+1}")
    k(f"""
    buffer_store_dwordx4 v[{PKD}:{PKD+3}], v50, s[40:43], s60 offen
    buffer_store_dwordx4 v[{PKD+4}:{PKD+7}], v50, s[40:43], s60 offen offset:1024
    s_and_b32 s10, s62, 7
    v_mov_b32 v48, v{PKD+6}
    v_mov_b32 v49, v{PKD+7}
    s_mov_b32 exec_lo, 0
    s_cmp_lg_u32 s10, 7
    s_cbranch_scc1 {k.name}_kv1
    s_cmp_ge_u32 s62, 8
    s_cselect_b32 s10, 0x3f80, 0
    v_mov_b32 v48, s10
    v_mov_b32 v49, 0
    {k.name}_kv1:
    s_cmp_ge_u32 s62, 8
    s_cbranch_scc1 {k.name}_v
    buffer_store_dwordx2 v[48:49], v51, s[40:43], s61 offen
    s_branch {k.name}_kvd
    {k.name}_v:
    buffer_store_short v48, v51, s[40:43], s61 offen
    buffer_store_short_d16_hi v48, v51, s[40:43], s61 offen offset:16
    buffer_store_short v49, v51, s[40:43], s61 offen offset:32
    buffer_store_short_d16_hi v49, v51, s[40:43], s61 offen offset:48
    {k.name}_kvd:
    s_mov_b64 exec, -1
    """)


def gen_p1a(name):
    k = Kernel(name)
    prologue(k, 256)
    WB = 57344
    PB = WB + 512 * 128
    STB = PB + 28 * 1024
    LDS = STB + 512
    k(f"""
    s_bfe_u32 s4, s2, 0x20001
    s_lshl_b32 s4, s4, 3
    s_and_b32 s5, s2, 1
    s_add_u32 s4, s4, s5
    s_lshr_b32 s5, s2, 3
    s_and_b32 s6, s5, 3
    s_lshl_b32 s6, s6, 1
    s_add_u32 s4, s4, s6
    s_lshr_b32 s5, s5, 2
    v_and_b32 v2, 31, v1
    v_lshrrev_b32 v3, 5, v1
    v_lshrrev_b32 v4, 3, v1
    v_and_b32 v5, 7, v1
    v_lshrrev_b32 v6, 4, v1
    """)
    k(f"""
    s_lshl_b32 s6, s4, 6
    s_lshl_b32 s7, s3, 4
    s_add_u32 s6, s6, s7
    v_add_u32 v7, s6, v4
    v_mul_u32_u24 v7, 896, v7
    v_xor_b32 v8, v5, v6
    v_lshl_add_u32 v8, v8, 4, v7
    v_xor_b32 v9, v5, v6
    v_xor_b32 v9, 4, v9
    v_lshl_add_u32 v9, v9, 4, v7
    v_add_u32 v9, {8*896}, v9
    """)
    k(f"""
    s_mul_i32 s6, s5, 112
    s_mul_i32 s7, s3, {8*896}
    s_add_u32 s6, s6, s7
    v_mul_u32_u24 v10, 896, v4
    v_lshl_add_u32 v10, v5, 4, v10
    v_add_u32 v10, s6, v10
    """)
    k(f"""
    s_lshl_b32 s6, s3, 6
    v_add_u32 v11, s6, v1
    v_lshlrev_b32 v12, 7, v11
    v_add_u32 v12, {WB+112}, v12
    v_mul_u32_u24 v11, 56, v11
    s_and_b32 s7, s5, 3
    s_lshl_b32 s7, s7, 4
    v_add_u32 v11, s7, v11
    s_mov_b32 s8, {256*56}
    s_lshl_b32 s9, s3, 11
    s_lshl_b32 s10, s3, 10
    s_add_u32 s10, s10, {WB}
    """)
    wait_ptrs(k)
    stamp_mid(k, 0)
    vm = VM(k)
    srd(k, 44, P_X, XBYTES)
    srd(k, 48, P_WQ, D * D * 2)
    k(f"""
    s_cmp_lt_u32 s5, 4
    s_cselect_b32 s52, s{P_WK}, s{P_WV}
    s_cselect_b32 s53, s{P_WK+1}, s{P_WV+1}
    s_and_b32 s53, s53, 0xffff
    s_mov_b32 s54, {D*DH*2}
    s_mov_b32 s55, 0x20000
    """)
    for c in range(7):
        k(f"s_add_u32 m0, s9, {c*8192}\ns_mov_b32 s11, {c*128}")
        vm.issue("buffer_load_dwordx4 v8, s[44:47], s11 offen lds", "x")
        k(f"s_add_u32 m0, s9, {c*8192+1024}\ns_nop 0")
        vm.issue("buffer_load_dwordx4 v9, s[44:47], s11 offen lds", "x")
    vm.issue("buffer_load_dwordx4 v[16:19], v11, s[52:55], 0 offen", "kv")
    vm.issue("buffer_load_dwordx4 v[20:23], v11, s[52:55], s8 offen", "kv")
    k("s_mov_b32 exec_lo, 0x7f7f7f7f\ns_mov_b32 exec_hi, 0x7f7f7f7f")
    for t in range(14):
        k(f"s_add_u32 m0, s10, {t*4096}\ns_mov_b32 s11, {t*32*896}")
        vm.issue("buffer_load_dwordx4 v10, s[48:51], s11 offen lds", ("w", t // 2))
    k("s_mov_b64 exec, -1")
    stamp_mid(k, 1)
    LN = k.name
    k(f"""
    s_and_b32 s6, s2, 7
    s_lshr_b32 s7, s2, 3
    s_mul_i32 s7, s7, 7
    s_add_u32 s7, s7, s6
    s_sub_u32 s66, s7, 1
    s_cmp_eq_u32 s6, 0
    s_cselect_b32 s66, 255, s66
    s_mov_b32 s59, 0x20000
    s_cmp_ge_u32 s66, 112
    s_cbranch_scc1 {LN}_u1
    s_mov_b32 s63, 0
    s_cmp_lt_u32 s3, 2
    s_cselect_b32 s56, s{P_WG}, s{P_WU}
    s_cselect_b32 s57, s{P_WG+1}, s{P_WU+1}
    s_mov_b32 s58, {D*F*2}
    s_mov_b32 s65, {F*2}
    s_and_b32 s6, s66, 3
    s_mul_i32 s6, s6, 112
    s_and_b32 s7, s3, 1
    s_mul_i32 s7, s7, 56
    s_add_u32 s6, s6, s7
    s_mul_i32 s64, s6, {F*2}
    s_lshr_b32 s67, s66, 2
    s_and_b32 s68, s66, 3
    s_branch {LN}_u9
    {LN}_u1:
    s_mov_b32 s65, {D*2}
    s_cmp_ge_u32 s66, 168
    s_cbranch_scc1 {LN}_u2
    s_mov_b32 s63, 1
    s_mov_b32 s56, s{P_WD}
    s_mov_b32 s57, s{P_WD+1}
    s_mov_b32 s58, {D*F*2}
    s_sub_u32 s6, s66, 112
    s_branch {LN}_u3
    {LN}_u2:
    s_mov_b32 s63, 2
    s_mov_b32 s56, s{P_WO}
    s_mov_b32 s57, s{P_WO+1}
    s_mov_b32 s58, {D*D*2}
    s_sub_u32 s6, s66, 168
    s_cmp_lt_u32 s66, 182
    s_cbranch_scc1 {LN}_u3
    s_mov_b32 s63, 3
    s_mov_b32 s58, 0
    s_mov_b32 s6, 0
    {LN}_u3:
    s_mul_i32 s68, s6, 9363
    s_lshr_b32 s68, s68, 16
    s_mul_i32 s7, s68, 7
    s_sub_u32 s67, s6, s7
    s_mul_i32 s6, s68, 224
    s_mul_i32 s7, s3, 56
    s_add_u32 s6, s6, s7
    s_mul_i32 s64, s6, {D*2}
    {LN}_u9:
    s_and_b32 s57, s57, 0xffff
    s_lshl_b32 s6, s67, 7
    s_add_u32 s64, s64, s6
    v_mul_lo_u32 v13, v4, s65
    v_lshl_add_u32 v13, v5, 4, v13
    s_lshl_b32 s65, s65, 3
    s_mul_i32 s6, s3, {7*1024}
    s_add_u32 s6, s6, {PB}
    """)
    for i in range(7):
        k(f"s_add_u32 m0, s6, {i*1024}\ns_nop 0")
        vm.issue("buffer_load_dwordx4 v13, s[56:59], s64 offen lds", "pre")
        k("s_add_u32 s64, s64, s65")
    k(f"""
    s_lshl_b32 s6, s2, 2
    s_add_u32 s6, s6, s3
    s_mul_i32 s6, s6, 3584
    s_add_u32 s6, s6, {X1F}
    v_lshlrev_b32 v13, 4, v1
    v_mov_b32 v120, -1
    v_mov_b32 v121, -1
    v_mov_b32 v122, -1
    v_mov_b32 v123, -1
    """)
    for i in range(4):
        if i == 3: k("s_mov_b32 exec_hi, 0")
        vm.issue(f"buffer_store_dwordx4 v[120:123], v13, s[40:43], s6 offen offset:{i*1024} sc1", "z")
    k("s_mov_b64 exec, -1")
    SR = 64
    k(f"""
    v_and_b32 v13, 15, v1
    v_lshrrev_b32 v14, 3, v13
    v_lshlrev_b32 v14, 10, v14
    v_and_b32 v15, 7, v13
    v_lshl_add_u32 v14, v15, 7, v14
    v_bfe_u32 v15, v13, 1, 2
    v_xor_b32 v15, v15, v6
    v_lshl_add_u32 v14, v15, 5, v14
    v_add_u32 v14, s9, v14
    s_mov_b32 s14, 0x3f803f80
    v_mov_b32 v30, 0
    v_mov_b32 v31, 0
    """)
    vm.wait("x")
    for c in range(7):
        for h in range(2):
            r = SR + 8 * c + 4 * h
            k(f"ds_read_b128 v[{r}:{r+3}], v14 offset:{c*8192+16*h}")
    k(f"""
    s_lshr_b32 s12, s3, 1
    s_and_b32 s13, s3, 1
    s_lshl_b32 s6, s12, 5
    v_add_u32 v32, s6, v2
    v_lshlrev_b32 v53, 3, v32
    v_add_u32 v53, {STB}, v53
    v_lshrrev_b32 v33, 3, v32
    v_lshlrev_b32 v33, 10, v33
    v_and_b32 v34, 7, v32
    v_lshl_add_u32 v33, v34, 7, v33
    v_bfe_u32 v34, v32, 1, 3
    """)
    for q in range(4):
        k(f"""
        v_add_u32 v32, {2*q}, v3
        v_xor_b32 v32, v32, v34
        v_lshl_add_u32 v{24+q}, v32, 4, v33
        """)
    k(f"""
    v_bfe_u32 v32, v1, 2, 2
    v_bfe_u32 v33, v1, 4, 1
    v_and_b32 v34, 3, v1
    v_lshl_add_u32 v33, v33, 2, v34
    v_lshlrev_b32 v34, 3, v33
    s_mul_i32 s6, s13, 56
    v_add_u32 v34, s6, v34
    s_lshl_b32 s7, s13, 3
    s_add_u32 s7, s7, 112
    v_mov_b32 v29, s7
    v_cmp_eq_u32 vcc, 7, v33
    v_cndmask_b32 v34, v34, v29, vcc
    v_add_u32 v34, {WB}, v34
    v_lshl_add_u32 v29, v3, 2, v32
    v_lshl_add_u32 v29, v29, 7, v34
    v_lshl_add_u32 v28, v3, 3, v32
    v_lshl_add_u32 v28, v28, 7, v34
    """)
    qkv_setup(k)
    for c in range(7):
        k(f"s_waitcnt lgkmcnt({12-2*c})")
        for d in range(8):
            r = SR + 8 * c + d
            k(f"v_dot2_f32_bf16 v30, v{r}, s14, v30")
            k(f"v_dot2_f32_bf16 v31, v{r}, v{r}, v31")
    vm.wait("kv")
    k(f"""
    ds_write_b128 v12, v[16:19]
    ds_write_b128 v12, v[20:23] offset:32768
    v_mov_b32 v36, v30
    v_mov_b32 v37, v31
    s_nop 0
    v_permlane32_swap_b32 v30, v36
    v_permlane32_swap_b32 v31, v37
    v_add_f32 v30, v30, v36
    v_add_f32 v31, v31, v37
    v_mov_b32 v36, v30
    v_mov_b32 v37, v31
    s_nop 0
    v_permlane16_swap_b32 v30, v36
    v_permlane16_swap_b32 v31, v37
    v_add_f32 v30, v30, v36
    v_add_f32 v31, v31, v37
    """)
    stats_finish(k, 30, 31)
    k(f"""
    s_lshl_b32 s6, s3, 7
    s_add_u32 s6, s6, {STB}
    v_lshl_add_u32 v13, v13, 3, s6
    ds_write_b64 v13, v[30:31]
    v_mov_b32 v32, s14
    v_mov_b32 v33, s14
    v_mov_b32 v34, s14
    v_mov_b32 v35, s14
    """)
    stamp_mid(k, 2)
    ACC, CS, RING = 64, 80, 96
    stages = [(0, 8, 1), (8, 16, 3), (16, 28, 6)]

    def reads(kb):
        r = RING + 8 * (kb % 4)
        return [f"ds_read_b64_tr_b16 v[{r}:{r+1}], v28 offset:{kb*2048}",
                f"ds_read_b64_tr_b16 v[{r+2}:{r+3}], v28 offset:{kb*2048+512}",
                f"ds_read_b128 v[{r+4}:{r+7}], v{24+(kb&3)} offset:{(kb>>2)*8192}"]
    for (k0, k1, wg) in stages:
        vm.wait(("w", wg), "lgkmcnt(0)")
        k("s_barrier")
        if k0 == 0: stamp_mid(k, 3)
        for kb in range(k0, min(k0 + 3, k1)):
            for r in reads(kb): k(r)
        for kb in range(k0, k1):
            if kb + 3 < k1:
                for r in reads(kb + 3): k(r)
            out = min(3, k1 - 1 - kb) * 3
            k(f"s_waitcnt lgkmcnt({out})")
            r = RING + 8 * (kb % 4)
            c0 = "0" if kb == 0 else f"v[{ACC}:{ACC+15}]"
            c1 = "0" if kb == 0 else f"v[{CS}:{CS+15}]"
            k(f"{MF} v[{ACC}:{ACC+15}], v[{r}:{r+3}], v[{r+4}:{r+7}], {c0}")
            k(f"{MF} v[{CS}:{CS+15}], v[{r}:{r+3}], v[32:35], {c1}")
    k("ds_read_b64 v[30:31], v53")
    stamp_mid(k, 4)
    vm.wait("pre", "lgkmcnt(0)")
    k("s_barrier")
    qkv_epilogue(k, ACC, CS)
    stamp_mid(k, 5)
    T = 96
    k(f"""
    v_bfe_u32 v13, v1, 2, 2
    v_and_b32 v14, 3, v1
    v_lshlrev_b32 v14, 3, v14
    v_bfe_u32 v15, v1, 4, 1
    s_cmp_eq_u32 s63, 3
    s_cbranch_scc1 {LN}_t3
    s_cmp_eq_u32 s63, 2
    s_cbranch_scc1 {LN}_t2
    s_cmp_eq_u32 s63, 1
    s_cbranch_scc1 {LN}_t1
    """)

    def tr(addr, jstride, ehstride):
        for j in range(7):
            for eh in range(2):
                k(f"ds_read_b64_tr_b16 v[{T+4*j+2*eh}:{T+4*j+2*eh+1}], v{addr} offset:{j*jstride+eh*ehstride}")
    k(f"""
    v_lshl_add_u32 v13, v3, 2, v13
    v_lshl_add_u32 v13, v13, 7, v14
    v_mul_u32_u24 v15, 14336, v15
    s_lshl_b32 s6, s3, 5
    s_add_u32 s6, s6, {PB}
    v_add3_u32 v13, v13, v15, s6
    """)
    tr(13, 2048, 1024)
    k(f"""
    s_lshl_b32 s6, s67, 2
    s_add_u32 s6, s6, s3
    s_mul_i32 s8, s6, 9363
    s_lshr_b32 s8, s8, 16
    s_mul_i32 s9, s8, 7
    s_sub_u32 s9, s6, s9
    s_mul_i32 s8, s8, {196*1024}
    s_add_u32 s8, s8, {WGUF}
    s_mul_i32 s12, s68, 7
    s_sub_u32 s13, s9, 3
    s_lshr_b32 s14, s13, 1
    s_mul_i32 s14, s14, 56
    s_and_b32 s13, s13, 1
    s_add_u32 s13, s13, s14
    s_add_u32 s13, s13, 84
    """)
    for j in range(7):
        k(f"""
        s_add_u32 s14, s12, {j}
        s_mul_i32 s10, s68, {3 if j == 6 else 18}
        s_add_u32 s10, s10, {0 if j == 6 else 3 * (4 + j)}
        s_add_u32 s10, s10, s9
        s_lshl_b32 s11, s14, 1
        s_add_u32 s11, s11, s13
        s_cmp_lt_u32 s9, 3
        s_cselect_b32 s10, s10, s11
        s_lshl_b32 s10, s10, 10
        s_add_u32 s10, s10, s8
        s_waitcnt lgkmcnt({12-2*j})
        buffer_store_dwordx4 v[{T+4*j}:{T+4*j+3}], v50, s[40:43], s10 offen
        """)
    k("s_endpgm")

    def lin_store(stride, dup=0):
        for j in range(7):
            k(f"""
            s_waitcnt lgkmcnt({12-2*j})
            buffer_store_dwordx4 v[{T+4*j}:{T+4*j+3}], v50, s[40:43], s10 offen
            """)
            if dup:
                k(f"""
                s_add_u32 s11, s10, {dup}
                buffer_store_dwordx4 v[{T+4*j}:{T+4*j+3}], v50, s[40:43], s11 offen
                """)
            k(f"s_add_u32 s10, s10, {stride}")
        k("s_endpgm")
    k(f"""
    {LN}_t1:
    v_lshl_add_u32 v13, v3, 2, v13
    v_lshl_add_u32 v13, v13, 7, v14
    v_lshl_add_u32 v13, v15, 5, v13
    s_mul_i32 s6, s12, {7*2048}
    s_lshl_b32 s7, s13, 6
    s_add_u32 s6, s6, s7
    s_add_u32 s6, s6, {PB}
    v_add_u32 v13, s6, v13
    """)
    tr(13, 2048, 1024)
    k(f"""
    s_lshl_b32 s6, s67, 1
    s_add_u32 s6, s6, s13
    s_mul_i32 s10, s6, 112
    s_mul_i32 s6, s68, 14
    s_add_u32 s10, s10, s6
    s_mul_i32 s6, s12, 7
    s_add_u32 s10, s10, s6
    s_lshl_b32 s10, s10, 10
    s_add_u32 s10, s10, {WDF}
    """)
    lin_store(1024)
    k(f"""
    {LN}_t2:
    v_lshl_add_u32 v13, v6, 3, v13
    v_lshl_add_u32 v13, v13, 7, v14
    s_lshl_b32 s6, s3, 5
    s_add_u32 s6, s6, {PB}
    v_add_u32 v13, s6, v13
    """)
    tr(13, 4096, 512)
    k(f"""
    s_lshl_b32 s6, s67, 2
    s_add_u32 s6, s6, s3
    s_mul_i32 s8, s6, 9363
    s_lshr_b32 s8, s8, 16
    s_mul_i32 s9, s8, 7
    s_sub_u32 s9, s6, s9
    s_mul_i32 s10, s8, 196
    s_add_u32 s10, s10, s9
    s_mul_i32 s6, s68, 49
    s_add_u32 s10, s10, s6
    s_lshl_b32 s10, s10, 10
    s_add_u32 s10, s10, {WO16}
    """)
    lin_store(7 * 1024, 98 * 1024)
    k(f"""
    {LN}_t3:
    s_and_b32 s6, s2, 7
    s_cmp_lg_u32 s6, 0
    s_cbranch_scc1 {LN}_fin
    s_lshr_b32 s4, s4, 1
    s_cmp_lg_u32 s12, 0
    s_cbranch_scc1 {LN}_fin
    s_mul_i32 s6, s4, {7*2048}
    v_add_u32 v29, s6, v29
    """)
    tr(29, 2048, 1024)
    k(f"""
    s_mul_i32 s10, s62, 28
    s_mul_i32 s6, s4, 7
    s_add_u32 s10, s10, s6
    s_lshl_b32 s10, s10, 10
    s_add_u32 s10, s10, {WQF}
    s_lshl_b32 s6, s62, 7
    s_add_u32 s6, s6, {CSQ}
    v_lshlrev_b32 v13, 4, v3
    """)
    for q in range(4):
        k(f"buffer_store_dwordx4 v[{CS+4*q}:{CS+4*q+3}], v13, s[40:43], s6 offen offset:{q*32}")
    lin_store(1024)
    k(f"{LN}_fin:\ns_endpgm")
    epilogue(k)
    return k, dict(grid=256, block=256, lds=LDS)
```

```python
S, D, H, DH, F = 2048, 448, 16, 28, 1792
def al(x, a=4096): return (x + a - 1) // a * a
off = 0
def alloc(n):
    global off
    o = off; off = al(off + n); return o
QF  = alloc(64 * 16 * 2 * 1024)
KVF = alloc(64 * 4096)
KVF1 = alloc(64 * 4096)
XSZ = 64 * 28 * 1024
X1F = alloc(XSZ)
XNF = alloc(XSZ)
X1F1 = alloc(XSZ)
XNF1 = alloc(XSZ)
assert XNF == X1F + XSZ and XNF1 == X1F1 + XSZ
HF  = alloc(64 * 112 * 1024)
HF1 = alloc(64 * 112 * 1024)
X2F = alloc(64 * 28 * 1024)
WO16= alloc(4 * 196 * 1024)
WGUF= alloc(16 * 196 * 1024)
WDF = alloc(14 * 112 * 1024)
WQF = alloc(16 * 28 * 1024)
CSQ = alloc(16 * 128)
WS_USED = off
XBYTES = S * D * 2

KO = [6, 13, 20, 27] + [kb for kb in range(28) if kb % 7 != 6]
def p4_f(ctl, kb):
    if ctl < 3:
        return 3 * KO.index(kb) + ctl
    return 84 + 56 * ((ctl - 3) >> 1) + 2 * kb + ((ctl - 3) & 1)
def p4_fk(n):
    if n < 84:
        return n % 3, KO[n // 3]
    m = n - 84
    return 3 + 2 * (m // 56) + (m & 1), (m % 56) >> 1
assert all(p4_f(*p4_fk(n)) == n for n in range(196))

if __name__ == "__main__":
    for k in "QF KVF KVF1 X1F XNF X1F1 XNF1 HF X2F WO16 WGUF WDF WQF CSQ WS_USED".split():
        print(k, hex(globals()[k]))
```

```python
import sys
import common
if len(sys.argv) > 2 and sys.argv[2] == 'stamp': common.STAMP = True
from build import *
from k_p1 import gen_p1a
from k_mega3 import gen_mega
import json, os
over = json.loads(os.environ.get("OVER", "{}"))
L = [gen_p1a("p1a_kernel", over.get("MAP", "H2")), gen_mega("ma_kernel", 0, **over), gen_mega("mb_kernel", 1, **over)]
assemble(L, sys.argv[1] if len(sys.argv) > 1 else "out.s")
```

```python
from common import *
import common
from k_p1 import f2h, stats_finish, qkv_setup, qkv_epilogue

MF = "v_mfma_f32_32x32x16_bf16"
SC = " sc1"
BUDGET = 200000

DEF = dict(
    X_BURST=6, LEAD=28,
    PACE=(2, 3), BARS=(106, 106, 154), BUD=6,
    KVROT=0, ROT=0, FE=4, MAP='H2', DUAL=0, PACE5=(2,), W_PRE=0,
    SS=(),
    HT=(150, 200, 252),
)


def gen_mega(name, layer, **over):
    C = dict(DEF); C.update(over)
    k = Kernel(name)
    SS = C["SS"]

    def stamp_mid(k, idx):
        if SS and idx not in (0, 8): return
        common.stamp_mid(k, idx)
    prologue(k, 256)
    kvf = KVF if layer == 0 else KVF1
    mk, hf = (MK0, HF) if layer == 0 else (MK1, HF1)
    Q, O, SA, SB, P = 16, 48, 112, 128, 144
    NS = 160
    LDS = NS * 1024
    RES = 248
    if C["MAP"] == "H2":
        k("""
        s_bfe_u32 s4, s2, 0x20001
        s_lshl_b32 s4, s4, 6
        s_lshr_b32 s5, s2, 6
        s_lshl_b32 s5, s5, 4
        s_add_u32 s4, s4, s5
        s_and_b32 s5, s2, 1
        s_lshl_b32 s5, s5, 3
        s_add_u32 s4, s4, s5
        s_bfe_u32 s5, s2, 0x30003
        s_add_u32 s4, s4, s5
        """)
    else:
        k("""
        s_and_b32 s4, s2, 7
        s_lshl_b32 s4, s4, 5
        s_lshr_b32 s5, s2, 3
        s_add_u32 s4, s4, s5
        """)
    k(f"""
    s_lshr_b32 s5, s4, 2
    s_and_b32 s6, s4, 3
    s_lshl_b32 s6, s6, 3
    v_lshlrev_b32 v4, 4, v1
    v_and_b32 v2, 31, v1
    v_lshrrev_b32 v3, 5, v1
    s_lshl_b32 s8, s3, 16
    s_add_u32 s8, s8, {kvf}
    v_lshrrev_b32 v5, 3, v2
    v_lshlrev_b32 v5, 11, v5
    v_and_b32 v6, 7, v1
    v_add_u32 v6, s6, v6
    v_lshl_add_u32 v6, v3, 5, v6
    v_lshl_add_u32 v13, v6, 4, v5
    s_lshl_b32 s7, s5, 15
    s_lshl_b32 s14, s3, 13
    s_add_u32 s49, s7, s14
    s_add_u32 s49, s49, {mk + O_OFF}
    s_add_u32 s7, s7, {QF}
    s_lshr_b32 s14, s2, 3
    s_and_b32 s14, s14, {15 if C["KVROT"] else 0}
    s_lshl_b32 s14, s14, 12
    s_add_u32 s9, s8, s14
    """)
    for jj in range(4):
        k(f"""
        s_add_u32 s14, s3, {jj}
        s_and_b32 s14, s14, 3
        s_lshl_b32 s14, s14, 13
        s_add_u32 s{10+jj}, s7, s14
        """)
    wait_ptrs(k)
    stamp_mid(k, 0)
    vm = VM(k)
    order = [1, 2, 3, 0]
    NRING = 4

    def ab(t):
        return 16 * (t % NRING)

    def ld_kv(t, parts=(0, 1, 2, 3)):
        if parts[0] == 0:
            if t: k(f"s_add_u32 s9, s9, 4096\ns_pack_lh_b32_b16 s9, s9, s8")
        for f in parts:
            vm.issue(f"buffer_load_dwordx4 a[{ab(t)+4*f}:{ab(t)+4*f+3}], v4, s[40:43], s9 offen offset:{f*1024}", ("k" if f < 2 else "v", t))

    def ld_q(jj):
        for h in range(2):
            vm.issue(f"buffer_load_dwordx4 v[{Q+8*jj+4*h}:{Q+8*jj+4*h+3}], v13, s[40:43], s{10+jj} offen offset:{h*1024}", ("q", jj))

    ld_kv(0, (0, 1))
    ld_q(1)
    ld_q(2)
    vm.issue(f"buffer_load_dwordx4 a[8:11], v4, s[40:43], s9 offen offset:2048", ("v", 0))
    vm.issue(f"buffer_load_dwordx4 a[12:15], v4, s[40:43], s9 offen offset:3072", ("v", 0))
    ld_q(3)
    ld_q(0)
    ld_kv(1)
    steps = [(t, jj) for t in range(16) for jj in order]
    Sb = [SA, SB]

    def qk(s, half):
        t, jj = steps[s]
        S = Sb[s & 1]
        c = "0" if half == 0 else f"v[{S}:{S+15}]"
        return f"{MF} v[{S}:{S+15}], a[{ab(t)+4*half}:{ab(t)+4*half+3}], v[{Q+8*jj+4*half}:{Q+8*jj+4*half+3}], {c}"

    def pv(s, half):
        t, jj = steps[s]
        o = O + 16 * jj
        c = "0" if (t == 0 and half == 0) else f"v[{o}:{o+15}]"
        return f"{MF} v[{o}:{o+15}], a[{ab(t)+8+4*half}:{ab(t)+8+4*half+3}], v[{P+4*half}:{P+4*half+3}], {c}"

    def need_qk(s):
        t, jj = steps[s]
        if t >= 1:
            vm.wait(("v", t))
        vm.wait(("k", t)); vm.wait(("q", jj))

    for jj in range(1, 4):
        k(f"""
        s_add_u32 s14, s3, {jj}
        s_and_b32 s14, s14, 3
        s_mul_i32 s14, s14, {3*4096}
        s_add_u32 s14, s14, {(jj-1)*4096}
        v_add_u32 v{5+jj}, s14, v4
        s_xor_b32 s14, s3, {jj}
        s_mul_i32 s14, s14, {3*4096}
        s_add_u32 s14, s14, {(jj-1)*4096}
        v_add_u32 v{9+jj}, s14, v4
        """)
    k(f"""
    s_mul_i32 s14, s3, {3*4096}
    v_add_u32 v5, s14, v4
    """)
    srd(k, 68, P_WS, WS_USED)
    k(f"""
    s_and_b32 s14, s4, 15
    s_lshl_b32 s63, s3, 12
    s_mul_i32 s64, s14, {WGS*1024}
    s_add_u32 s64, s64, s63
    s_add_u32 s64, s64, {WGUF}
    s_add_u32 s63, s63, {48*1024}
    s_and_b32 s15, s14, 7
    s_cmp_lt_u32 s15, 7
    s_cselect_b32 s70, s70, 0
    s_lshr_b32 s44, s4, 4
    s_add_u32 s45, s44, s15
    s_and_b32 s44, s44, {3 if C["ROT"] else 0}
    s_lshl_b32 s57, s44, 15
    s_lshl_b32 s15, s15, 1
    s_and_b32 s67, s3, 1
    s_add_u32 s67, s67, s15
    s_xor_b32 s65, s67, 1
    s_lshl_b32 s46, s67, 15
    s_lshl_b32 s47, s65, 15
    s_lshl_b32 s15, s3, 13
    s_add_u32 s44, s15, {WOF}
    s_add_u32 s46, s46, s44
    s_add_u32 s47, s47, s44
    s_mul_i32 s62, s67, {112*1024}
    s_mul_i32 s65, s65, {112*1024}
    s_mul_i32 s48, s3, {28*1024}
    s_add_u32 s7, s48, {WDF}
    s_add_u32 s62, s62, s7
    s_add_u32 s65, s65, s7
    s_lshr_b32 s44, s4, 4
    s_lshl_b32 s44, s44, 2
    s_add_u32 s6, s44, s3
    s_mul_i32 s5, s6, {28*1024}
    s_add_u32 s5, s5, {mk + X1_OFF}
    s_lshl_b32 s7, s6, 12
    s_add_u32 s7, s7, {mk + ST_OFF}
    s_mul_i32 s6, s6, 112
    s_mul_i32 s13, s14, 7
    s_add_u32 s6, s6, s13
    s_lshl_b32 s6, s6, 10
    s_add_u32 s6, s6, {hf}
    s_lshr_b32 s13, s14, 3
    s_lshl_b32 s13, s13, 1
    s_add_u32 s44, s44, s13
    s_lshr_b32 s13, s3, 1
    s_add_u32 s66, s44, s13
    s_xor_b32 s11, s66, 1
    s_lshl_b32 s50, s66, 15
    s_lshl_b32 s51, s11, 15
    s_add_u32 s15, s15, {mk + O_OFF}
    s_add_u32 s50, s50, s15
    s_add_u32 s51, s51, s15
    s_mul_i32 s10, s66, {112*1024}
    s_mul_i32 s11, s11, {112*1024}
    s_add_u32 s48, s48, {hf}
    s_add_u32 s10, s10, s48
    s_add_u32 s11, s11, s48
    s_mul_i32 s12, s66, 28
    s_lshl_b32 s13, s67, 1
    s_add_u32 s12, s12, s13
    s_lshl_b32 s12, s12, 10
    s_lshl_b32 s56, s66, 12
    s_lshr_b32 s13, s67, 2
    s_lshl_b32 s13, s13, 10
    s_add_u32 s56, s56, s13
    s_bfe_u32 s13, s67, 0x10001
    s_lshl_b32 s13, s13, 9
    s_add_u32 s56, s56, s13
    s_and_b32 s13, s67, 1
    s_lshl_b32 s13, s13, 3
    s_add_u32 s56, s56, s13
    s_add_u32 s56, s56, {mk + ST_OFF}
    s_mov_b32 s13, {BUDGET}
    s_mov_b32 s61, 0xffff0000
    v_mov_b32 v{RES}, -1
    v_mov_b32 v{RES+1}, -1
    v_mov_b32 v{RES+2}, -1
    v_mov_b32 v{RES+3}, -1
    """)
    for g in range(4):
        k(f"""
        s_add_u32 s14, s45, {g}
        s_and_b32 s14, s14, 3
        s_mul_i32 s{52+g}, s14, {7168 if C["ROT"] else 0}
        """)
        if not C["ROT"]: k(f"s_mov_b32 s{52+g}, {7168*g}")
    if layer == 0:
        k(f"""
        s_lshl_b32 s14, s66, 5
        v_add_u32 v14, s14, v2
        v_mul_u32_u24 v14, 896, v14
        v_lshl_add_u32 v14, v3, 3, v14
        s_lshl_b32 s58, s67, 6
        """)
    k(f"""
    s_mov_b32 s14, {f2h(2.0**-60)}
    s_mov_b32 s15, {f2h(2.0**60)}
    """)

    def wdreg(u):
        return f"a[{64+4*u}:{67+4*u}]" if u < 48 else f"v[{216+4*(u-48)}:{219+4*(u-48)}]"

    def woreg(a, kk):
        i = a * 8 + kk
        return f"v[{152+4*i}:{155+4*i}]"

    pf = []
    for i in range(28):
        q = i & 3
        pre = ""
        if q == 0:
            pre = (f"s_add_u32 s57, s57, 16384\ns_cmp_eq_u32 s57, {7*16384}\ns_cselect_b32 s57, 0, s57\n" if i else "") \
                + "s_add_u32 m0, s63, s57\ns_add_u32 s48, s64, s57"
        pf.append((pre, f"buffer_load_dwordx4 v4, s[40:43], s48 offen offset:{q*1024} lds", ("w", 6)))
    for u in range(56):
        a, kbl = divmod(u, 28)
        g, c = divmod(kbl, 7)
        pre = f"s_add_u32 s48, s{62 if a == 0 else 65}, s{52+g}" if c == 0 else ("s_add_u32 s48, s48, 4096" if c == 4 else "")
        pf.append((pre, f"buffer_load_dwordx4 {wdreg(u)}, v4, s[68:71], s48 offen offset:{(c%4)*1024}", "wd"))
    for a in range(2):
        for kk in range(8):
            pre = f"s_add_u32 s48, s{46+a}, 4096" if kk == 4 else ""
            pf.append((pre, f"buffer_load_dwordx4 {woreg(a, kk)}, v4, s[68:71], s{46+a if kk < 4 else 48} offen offset:{(kk%4)*1024}", "wo"))
    fills = []
    for ct in range(7):
        fills.append((f"s_add_u32 s44, s6, {ct*1024}", f"buffer_store_dwordx4 v[{RES}:{RES+3}], v4, s[40:43], s44 offen{SC}", "fill"))
    if layer == 0:
        for h in range(2):
            fills.append((f"s_add_u32 s44, s12, {X2F + h*1024}", f"buffer_store_dwordx4 v[{RES}:{RES+3}], v4, s[68:71], s44 offen{SC}", "fill"))
        resl = [("", f"buffer_load_dwordx2 v[{RES+2*q}:{RES+2*q+1}], v14, s[52:55], s58 offen offset:{q*16}", "res") for q in range(4)]
    else:
        resl = [(f"s_add_u32 s44, s12, {X2F}" if h == 0 else "", f"buffer_load_dwordx4 v[{RES+4*h}:{RES+4*h+3}], v4, s[68:71], s44 offen offset:{h*1024}", "res") for h in range(2)]
    staged = [None]

    def hstore(V, text, tag, bit):
        if V: V.issue(text + SC, tag)
        else: k(text + SC)
        if C["DUAL"] >> bit & 1:
            if V: V.issue(text, tag)
            else: k(text)
            return 2
        return 0

    def prep():
        if pf and pf[0][0]:
            k(pf[0][0]); pf[0] = ("",) + pf[0][1:]

    def side(lst):
        if not lst: return
        p, ins, tag = lst.pop(0)
        k(p); vm.issue(ins, tag)

    def lds_wr(jj):
        o = O + 16 * jj
        return [f"ds_write_b128 v{5+jj}, v[{o+4*q}:{o+4*q+3}] offset:{q*1024}" for q in range(4)]

    prep()
    need_qk(0)
    stamp_mid(k, 1)
    k(qk(0, 0))
    ld_kv(2, (0, 1))
    k(qk(0, 1))
    vm.issue(f"buffer_load_dwordx4 a[40:43], v4, s[40:43], s9 offen offset:2048", ("v", 2))
    vm.issue(f"buffer_load_dwordx4 a[44:47], v4, s[40:43], s9 offen offset:3072", ("v", 2))
    k("s_nop 7")
    n = len(steps)
    for s in range(n):
        t, jj = steps[s]
        S = Sb[s & 1]
        e = lambda i: f"v_exp_f32 v{S+i}, v{S+i}"
        c = lambda d: f"v_cvt_pk_bf16_f32 v{P+d}, v{S+2*d}, v{S+2*d+1}"
        if s + 1 < n:
            need_qk(s + 1)
            k(qk(s + 1, 0))
        if t + 3 < 16:
            ld_kv(t + 3, ((s & 3),))
        else:
            side(pf)
        for i in range(4): k(e(i))
        if s > 0:
            k(pv(s - 1, 1))
        side(pf)
        for i in range(4, 8): k(e(i))
        if s + 1 < n:
            k(qk(s + 1, 1))
        prep()
        for d in range(4): k(c(d))
        for i in range(8, 11): k(e(i))
        vm.wait(("v", t))
        k(pv(s, 0))
        if fills and s % C["FE"] == 0:
            side(fills)
        elif s & 1:
            side(pf)
        extra = []
        if t == 15 and s & 3 >= 2:
            extra = lds_wr(order[(s & 3) - 2])
        if s == n - 1:
            extra = extra + lds_wr(3)
        for i in range(11, 16):
            k(e(i))
            if extra: k(extra.pop(0))
        for d in range(4, 8):
            k(c(d))
            if extra: k(extra.pop(0))
    assert not pf and not fills, (len(pf), len(fills))
    stamp_mid(k, 2)
    k(pv(n - 1, 1))
    if layer == 0:
        srd(k, 44, P_X, XBYTES)
        resl = [(p, i.replace("s[52:55]", "s[44:47]"), t) for p, i, t in resl]
    while resl: side(resl)
    k("s_waitcnt lgkmcnt(0)\ns_barrier")
    stamp_mid(k, 3)
    R = 64
    for j in range(3):
        for q in range(4):
            r = R + 16 * j + 4 * q
            k(f"ds_read_b128 v[{r}:{r+3}], v5 offset:{j*4096+q*1024}")
    for j in range(3):
        k(f"s_waitcnt lgkmcnt({8-4*j})")
        for r in ([12] + [x for x in range(0, 16, 2) if x != 12] if j == 2 else range(0, 16, 2)):
            k(f"v_pk_add_f32 v[{O+r}:{O+r+1}], v[{O+r}:{O+r+1}], v[{R+16*j+r}:{R+16*j+r+1}]")
            if j == 2 and r == 12:
                k(f"v_mov_b32 v9, v{O+12}\nv_mov_b32 v8, v{O+12}")
            if j == 2 and r == 2:
                k("v_permlane32_swap_b32 v9, v8")
            if j == 2 and r == 4:
                k("v_rcp_f32 v9, v8\nv_cmp_nle_f32 vcc, s14, v8\nv_cmp_nge_f32 s[46:47], s15, v8")
            if j == 2 and r == 10:
                k("s_or_b64 vcc, vcc, s[46:47]")
    FB, NORM = k.name + "_fb", k.name + "_norm"
    k(f"""
    s_cbranch_vccnz {FB}
    {NORM}:
    """)
    for h in range(2):
        for r in range(8 * h, 8 * h + 8, 2):
            k(f"v_pk_mul_f32 v[{O+r}:{O+r+1}], v[{O+r}:{O+r+1}], v[8:9] op_sel:[0,1] op_sel_hi:[1,1]")
        for d in range(4 * h, 4 * h + 4):
            k(f"v_cvt_pk_bf16_f32 v{P+d}, v{O+2*d}, v{O+2*d+1}")
        hstore(vm, f"buffer_store_dwordx4 v[{P+4*h}:{P+4*h+3}], v13, s[40:43], s49 offen offset:{h*1024}", "ost", 0)
    stamp_mid(k, 4)
    stubs = []

    def chk_ops(regs):
        o = []
        for i, r in enumerate(regs):
            kind, b = r[0], int(r[2:r.index(":")])
            if kind == "a":
                o += [f"v_accvgpr_read_b32 v2, a{b}", f"v_accvgpr_read_b32 v7, a{b+2}"]
                p, q = "v2", "v7"
            else:
                p, q = f"v{b}", f"v{b+2}"
            o.append(f"v_max_u32 v3, {p}, {q}" if i == 0 else f"v_max3_u32 v3, {p}, {q}, v3")
        o.append("v_cmp_eq_u32 vcc, -1, v3")
        return o

    def ld_text(d, sreg, imm):
        t = f"buffer_load_dwordx4 {d['reg']}, v4, s[{d['srd']}:{d['srd']+3}], s{sreg} offen offset:{imm}{SC}"
        return t

    def base_add(d, sreg):
        if d.get("blk") is None:
            return f"s_add_u32 s{sreg}, s{d['base']}, {d['off']}"
        t = f"s_add_u32 s{sreg}, s{d['base']}, s{52+d['blk']}"
        return t + (f"\ns_add_u32 s{sreg}, s{sreg}, {d['off']}" if d["off"] else "")

    def spin(lb, ds, back, inline=False, more=()):
        mk_ = "" if inline else " ; retry"
        k(f"{lb}:")
        prev = None
        for d in list(ds) + list(more):
            if prev and prev[0] == (d["base"], d.get("blk")) and prev[1] <= d["off"] <= prev[1] + 3072:
                imm = d["off"] - prev[1]
            else:
                k(base_add(d, 15)); prev = ((d["base"], d.get("blk")), d["off"]); imm = 0
            if d.get("lo"): k("s_mov_b32 exec_hi, 0")
            k(ld_text(d, 15, imm) + mk_)
            if d.get("lo"): k("s_mov_b32 exec_hi, -1")
        k(f"s_sub_i32 s13, s13, 1\ns_cmp_lt_i32 s13, 0\ns_waitcnt vmcnt({len(more)}){mk_}")
        for o in chk_ops([d["reg"] for d in ds]): k(o + mk_)
        k(f"s_cbranch_scc1 {back}{mk_}\ns_cbranch_vccnz {lb}{mk_}")

    def chk_branch(ds):
        lb = k.newlabel("st")
        k(f"s_cbranch_vccnz {lb}\n{lb}_b:")
        stubs.append((lb, ds))

    def reduce3(A, R, rb, extra=None):
        k("s_waitcnt lgkmcnt(0)\ns_barrier")
        if extra: extra(0)
        for j in range(3):
            for q in range(4):
                r = R + 16 * j + 4 * q
                k(f"ds_read_b128 v[{r}:{r+3}], v{rb} offset:{j*4096+q*1024}")
        if extra: extra(1)
        for j in range(3):
            k(f"s_waitcnt lgkmcnt({8-4*j})")
            for r in range(0, 16, 2):
                k(f"v_pk_add_f32 v[{A+r}:{A+r+1}], v[{A+r}:{A+r+1}], v[{R+16*j+r}:{R+16*j+r+1}]")

    def mark_next(first, cnt):
        k(f"""
        s_lshr_b32 s9, s4, 3
        s_lshl_b32 s9, s9, 2
        s_add_u32 s9, s9, s3
        s_lshl_b32 s9, s9, 15
        s_add_u32 s9, s9, {MK1 + first*1024}
        v_mov_b32 v16, -1
        v_mov_b32 v17, -1
        v_mov_b32 v18, -1
        v_mov_b32 v19, -1
        """)
        for i in range(cnt):
            if i and i % 4 == 0: k("s_add_u32 s9, s9, 4096")
            k(f"buffer_store_dwordx4 v[16:19], v4, s[40:43], s9 offen offset:{(i%4)*1024}{SC}")

    NOR1, XJOIN = k.name + "_nor1", k.name + "_xjoin"
    AO = [80, 96, 112, 128]
    k(f"s_barrier\ns_cmp_eq_u32 s70, 0\ns_cbranch_scc1 {NOR1}")
    vm.wait("res")
    for d in range(8):
        k(f"v_lshlrev_b32 v{AO[0]+2*d}, 16, v{RES+d}")
        k(f"v_and_b32 v{AO[0]+2*d+1}, s61, v{RES+d}")

    def o_d(b, kk):
        i = 2 * kk + b
        return dict(reg=f"v[{16+4*i}:{19+4*i}]", srd=40, base=50 + b, off=kk * 1024)
    vm.wait("ost")
    stamp_mid(k, 5)
    pl = k.newlabel("pr")
    od = [[o_d(b, kk) for b in range(2) for kk in range(4 * hh, 4 * hh + 4)] for hh in range(2)]
    spin(pl, od[0], pl + "_b", True, od[1])
    k(f"{pl}_b:")
    stamp_mid(k, 6)
    seq = []
    for kk in range(5): seq += [(s, kk) for s in (0, 1, 2, 3)]
    for kk in range(5, 8): seq += [(s, kk) for s in (1, 2, 3)]
    seq += [(0, kk) for kk in range(5, 8)]
    for idx, (slot, kk) in enumerate(seq):
        if idx == 11:
            k("s_waitcnt vmcnt(0)")
        if 11 <= idx <= 13:
            for o in chk_ops([d["reg"] for d in od[1]])[3 * (idx - 11): 3 * (idx - 11) + 3]: k(o)
        if idx == 16:
            chk_branch(od[1])
        a = AO[slot]
        c = "0" if (kk == 0 and slot) else f"v[{a}:{a+15}]"
        k(f"{MF} v[{a}:{a+15}], {woreg(slot & 1, kk)}, {o_d(slot >> 1, kk)['reg']}, {c}")
        if idx >= 29:
            s = idx - 28
            for q in range(4):
                k(f"ds_write_b128 v{9+s}, v[{AO[s]+4*q}:{AO[s]+4*q+3}] offset:{q*1024}")
    vm.done = len(vm.tags)
    k(f"s_add_u32 s9, s12, {mk + X1_OFF}")
    reduce3(AO[0], 16, 5)
    for h in range(2):
        for d in range(4 * h, 4 * h + 4):
            k(f"v_cvt_pk_bf16_f32 v{RES+d}, v{AO[0]+2*d}, v{AO[0]+2*d+1}")
        hstore(vm, f"buffer_store_dwordx4 v[{RES+4*h}:{RES+4*h+3}], v4, s[40:43], s9 offen offset:{h*1024}", "xst", 1)
    pr = lambda i: f"v[{AO[0]+2*i}:{AO[0]+2*i+1}]"
    k(f"v_pk_add_f32 v[6:7], {pr(0)}, {pr(1)}")
    k(f"v_pk_mul_f32 v[8:9], {pr(0)}, {pr(0)}")
    k(f"v_pk_fma_f32 v[8:9], {pr(1)}, {pr(1)}, v[8:9]")
    for i in range(2, 8):
        k(f"v_pk_add_f32 v[6:7], v[6:7], {pr(i)}")
        k(f"v_pk_fma_f32 v[8:9], {pr(i)}, {pr(i)}, v[8:9]")
    k(f"""
    v_add_f32 v6, v6, v7
    v_add_f32 v7, v8, v9
    v_mov_b32 v8, v6
    v_mov_b32 v9, v7
    s_nop 0
    v_permlane32_swap_b32 v6, v8
    v_permlane32_swap_b32 v7, v9
    s_mov_b32 exec_hi, 0
    v_pk_add_f32 v[6:7], v[6:7], v[8:9]
    """)
    vm.issue(f"buffer_store_dwordx2 v[6:7], v4, s[40:43], s56 offen{SC}", "sst")
    k(f"s_mov_b32 exec_hi, -1\n{XJOIN}:\ns_barrier")
    stamp_mid(k, 7)
    w_next = [28]

    def ld_w():
        i = w_next[0]; w_next[0] += 1
        G, q = i >> 2, i & 3
        if q == 0:
            off = (16 * G + 48) % NS - 48
            k(f"s_{'add' if off >= 0 else 'sub'}_u32 m0, s63, {abs(off)*1024}\ns_add_u32 s48, s64, {16*G*1024}")
        vm.issue(f"buffer_load_dwordx4 v4, s[40:43], s48 offen offset:{q*1024} lds", ("w", G))
        return 2 + 2 * (q == 0)
    for _ in range(C['W_PRE']): ld_w()
    A4, WR, HP, MB, R2 = 16, 128, 160, 168, 172
    k(f"""
    v_add_u32 v5, 0x10000, v4
    v_add_u32 v6, 0x20000, v4
    v_mov_b32 v{HP+12}, 0
    v_mov_b32 v{HP+13}, 0
    v_mov_b32 v{HP+14}, 0
    v_mov_b32 v{HP+15}, 0
    """)
    R5B = 96 * 1024
    if layer == 0:
        k(f"""
        s_mul_i32 s50, s67, {28*1024}
        s_xor_b32 s51, s67, 1
        s_mul_i32 s51, s51, {28*1024}
        s_mul_i32 s15, s3, {7*1024}
        s_add_u32 s15, s15, {WQF}
        s_add_u32 s50, s50, s15
        s_add_u32 s51, s51, s15
        s_lshl_b32 s60, s67, 7
        s_add_u32 s60, s60, {CSQ}
        s_mul_i32 s59, s3, {14*1024}
        s_cmp_eq_u32 s3, 3
        s_cselect_b32 s59, {144*1024}, s59
        """)
    cur = {}

    def stream_ld(d, tag):
        t = d["tmp"]
        c = cur.get(t)
        n = 2
        key = (d["base"], d.get("blk"))
        if not (c and c[0] == key and c[1] <= d["off"] <= c[1] + 3072):
            x = base_add(d, t)
            k(x); n += x.count("\n") + 1
            cur[t] = c = (key, d["off"])
        if d.get("lo"): k("s_mov_b32 exec_hi, 0")
        vm.issue(ld_text(d, t, d["off"] - c[1]), tag)
        if d.get("lo"): k("s_mov_b32 exec_hi, -1"); n += 2
        return n

    lg = LG()
    NR, RA = 8, 6
    A5 = [64, 96, 80, 112]

    def xreg(kb):
        if kb == 28: return f"v[{MB}:{MB+3}]"
        i = KO.index(kb)
        if i < 10: return f"v[{176+4*i}:{179+4*i}]"
        if i < 12: return f"v[{8+4*(i-10)}:{11+4*(i-10)}]"
        return f"a[{4*(i-12)}:{4*(i-12)+3}]"

    def x_d(kb):
        return dict(reg=xreg(kb), srd=40, base=5, off=kb * 1024, tmp=44)

    kbo = [7 * g + c for g in range(4) for c in range(3)] + [7 * g + c for g in range(4) for c in (3, 4)] + [7 * g + c for g in range(4) for c in (5, 6)]
    p5 = []
    for i in range(4): p5 += [(0, i), (2, i)]
    for i in range(4): p5 += [(1, i), (3, i)]
    for i in range(4, 25):
        p5 += [(0, i), (2, i), (1, i), (3, i)]
    for i in (25, 26, 27):
        p5 += [(1, i), (2, i), (3, i)]
    p5 += [(0, 25), (0, 26), (0, 27)]
    assert len(p5) == 112
    NT = N4 + 112
    land = [(f"v[{16+4*i}:{19+4*i}]", 110) for i in range(12)] \
        + [(xreg(kb), 146 + 2 * kb) for kb in range(28)] + [(f"v[{128+4*i}:{131+4*i}]", N4) for i in range(8)] \
        + [(f"v[{16+4*i}:{19+4*i}]", N4 + 16) for i in range(8)]
    assert len(land) == 56
    h_use = {}
    for s, (slot, i) in enumerate(p5):
        h_use.setdefault(i, N4 + s)

    def h_d(hi):
        i, b = hi >> 1, hi & 1
        g, c = divmod(kbo[i], 7)
        return dict(reg=land[hi][0], srd=68, base=10 + b, blk=g, off=c * 1024, tmp=44 + b)

    st_d = [dict(reg=f"v[{HP+4*q}:{HP+4*q+3}]", srd=40, base=7, off=q * 1024, tmp=14, lo=(q == 3)) for q in range(4)]

    items = []
    LEAD = C["LEAD"]
    XB = 4 + C["X_BURST"]
    for i in range(XB, 28):
        items.append((3 * i - LEAD, -1, 3 * (i & ~1) - 5, (lambda i=i: stream_ld(x_d(KO[i]), ("x", i)))))
    for q in range(4):
        items.append((60 - LEAD, -1, 57, (lambda q=q: stream_ld(st_d[q], "st"))))
    bars = sorted(C["BARS"])
    assert 48 <= bars[0] and 152 <= bars[-1] <= 160 - RA
    assert len(bars) == 3 and bars[1] <= 112 - RA
    for i in range(w_next[0], 40):
        items.append((bars[1] - LEAD + i * 0.01, -1, bars[1] - 4, ld_w))
    for i in range(40, 52):
        items.append((bars[-1] - LEAD - 10 + i * 0.01, bars[0], bars[-1] - 4, ld_w))
    for hi in range(56):
        part = 0 if hi < 24 else (1 if hi < 40 else 2)
        items.append((h_use[hi >> 1] - LEAD, max(C["HT"][part], land[hi][1]), h_use[hi >> 1] - 5, (lambda hi=hi: stream_ld(h_d(hi), ("h", hi >> 1)))))
    CS = 160

    def p1b_prefetch(V):
        o = []
        for a in range(2):
            for kbl in range(7):
                def f(a=a, kbl=kbl):
                    if kbl % 4 == 0:
                        k(f"s_add_u32 m0, s59, {(a*7+kbl)*1024}\ns_add_u32 s48, s{50+a}, {kbl*1024}")
                    V.issue(f"buffer_load_dwordx4 v4, s[40:43], s48 offen offset:{(kbl%4)*1024} lds", "wq")
                    return 2 + 2 * (kbl % 4 == 0)
                o.append(f)
        return o

    def cs_prefetch(V):
        k(f"v_lshrrev_b32 v0, 5, v1\nv_lshlrev_b32 v0, 4, v0")
        for q in range(4):
            V.issue(f"buffer_load_dwordx4 v[{CS+4*q}:{CS+4*q+3}], v0, s[40:43], s60 offen offset:{q*32}", "wq")
        return 10
    if layer == 0:
        for f in p1b_prefetch(vm):
            items.append((NT + 10, bars[-1], NT + 10, f))
        items.append((NT + 11, N4 + 10, NT + 11, lambda: cs_prefetch(vm)))
    items.sort(key=lambda t: t[0])
    queue = list(items)

    def issue_next(n):
        for idx, it in enumerate(queue):
            if it[1] <= n:
                queue.pop(idx); return it[3]()
        return 0

    def force(n):
        c = 0
        while any(it[2] <= n for it in queue):
            c += issue_next(n)
        return c

    def rd(f):
        slot = ((f + 48) % NS) * 1024
        base = [4, 5, 6][slot >> 16]
        r = WR + 4 * (f % NR)
        lg.issue(("w", f))
        k(f"ds_read_b128 v[{r}:{r+3}], v{base} offset:{slot & 0xffff}")

    fill = []
    vfill = []

    def epi_ops(ct, V, gaps=3):
        a = A4 + 16 * ct
        hp = HP + 4 * (ct & 1)
        o = ["GAP"] * gaps
        for r in range(0, 8, 2):
            o.append(f"v_pk_mul_f32 v[{a+r}:{a+r+1}], v[{a+r}:{a+r+1}], v[{a+8+r}:{a+9+r}]")
        for r in range(0, 8, 2):
            o.append(f"v_pk_mul_f32 v[{a+r}:{a+r+1}], v[{a+r}:{a+r+1}], v[{R2}:{R2+1}]")
        for d in range(4):
            o.append(f"v_cvt_pk_bf16_f32 v{hp+d}, v{a+2*d}, v{a+2*d+1}")

        def st():
            k(f"s_add_u32 s14, s6, {ct*1024}")
            cur.pop(14, None)
            return 3 + hstore(V, f"buffer_store_dwordx4 v[{hp}:{hp+3}], v4, s[40:43], s14 offen", ("hst", ct), 2)
        o.append(st)
        return o

    def run(lst, room):
        used = 0
        while lst and used < room:
            f = lst.pop(0)
            if f == "GAP":
                break
            if callable(f): used += f() or 0
            else:
                k(f); used += f.count("\n") + 1
        return used

    def add_val(tag, ds):
        def w():
            s_ = vm.waitstr(tag)
            if s_: k(s_)
            return 1 if s_ else 0

        def b():
            chk_branch(ds); done_val.add(tag); return 1
        vfill.extend([w] + chk_ops([d["reg"] for d in ds]) + ["GAP", b])

    T0 = HP + 4
    stat_ops = [f"v_pk_add_f32 v[{HP+4*q}:{HP+4*q+1}], v[{HP+4*q}:{HP+4*q+1}], v[{HP+4*q+2}:{HP+4*q+3}]" for q in range(4)] + [
        f"v_pk_add_f32 v[{HP}:{HP+1}], v[{HP}:{HP+1}], v[{HP+4}:{HP+5}]",
        f"v_pk_add_f32 v[{HP+8}:{HP+9}], v[{HP+8}:{HP+9}], v[{HP+12}:{HP+13}]",
        f"v_pk_add_f32 v[{HP}:{HP+1}], v[{HP}:{HP+1}], v[{HP+8}:{HP+9}]",
        f"v_mov_b32 v{T0}, v{HP}", f"v_mov_b32 v{T0+1}, v{HP+1}", "GAP",
        f"v_permlane32_swap_b32 v{HP}, v{T0}", f"v_permlane32_swap_b32 v{HP+1}, v{T0+1}",
        f"v_pk_add_f32 v[{HP}:{HP+1}], v[{HP}:{HP+1}], v[{T0}:{T0+1}]",
        f"v_mul_f32 v{HP}, {f2h(-1.0/448)}, v{HP}",
        f"v_mul_f32 v{HP+1}, {f2h(1.0/448)}, v{HP+1}",
        f"v_fma_f32 v{HP+1}, -v{HP}, v{HP}, v{HP+1}",
        f"v_max_f32 v{HP+1}, 0, v{HP+1}",
        f"v_add_f32 v{HP+1}, {f2h(1e-5)}, v{HP+1}",
        f"v_rcp_f32 v{R2}, v{HP+1}",
        f"v_cvt_pk_bf16_f32 v{MB}, v{HP}, v{HP}",
        f"v_lshlrev_b32 v{T0}, 16, v{MB}",
        f"v_sub_f32 v{T0}, v{HP}, v{T0}",
        f"v_mov_b32 v{R2+1}, v{R2}",
        f"s_mov_b32 exec_lo, 0\nv_cvt_pk_bf16_f32 v{MB}, v{T0}, v{T0}\ns_mov_b32 exec_lo, -1",
        f"v_mov_b32 v{MB+1}, v{MB}", f"v_mov_b32 v{MB+2}, v{MB}", f"v_mov_b32 v{MB+3}, v{MB}",
    ]

    vm.wait("xst")
    stamp_mid(k, 9)
    pl = k.newlabel("pr")
    for f in range(RA): rd(f)
    spin(pl, [x_d(kb) for kb in KO[:4]], pl + "_b", True, [x_d(kb) for kb in KO[4:XB]])
    k(f"{pl}_b:")
    vm.done = len(vm.tags)
    for i in range(4, XB): vm.tags.append(("x", i))
    stamp_mid(k, 8)
    nxt = 0; pi = [0]
    NOROLE = k.name + "_norole"
    P1B = k.name + "_p1b"
    val = {}
    for i in range(4, 28, 2):
        val.setdefault(3 * i - (4 if i < 12 else 5), []).append((("x", i + 1), [x_d(KO[i]), x_d(KO[i + 1])]))
    for i in range(28):
        val.setdefault(h_use[i] - (5 if land[2 * i][0][0] == "a" or land[2 * i + 1][0][0] == "a" else 4), []).append((("h", i), [h_d(2 * i), h_d(2 * i + 1)]))
    val.setdefault(58, []).append(("st", st_d))
    done_val = set(("x", i) for i in range(4))
    for n in range(NT):
        if n in SS: common.stamp_mid(k, [i for i in range(1, 20) if i != 8][list(SS).index(n)])
        used = force(n)
        if n in bars:
            if n == bars[1]: vm.wait(("w", 9))
            if n == bars[-1]: vm.wait(("w", 12))
            k("s_barrier"); used += 2
        if n + RA < N4:
            rd(n + RA); used += 1
        for v in val.get(n, []): add_val(*v)
        used += run(vfill, 3)
        if "st" in done_val and stat_ops:
            fill.extend(stat_ops); stat_chk = stat_ops; stat_ops = None
        if n < N4:
            ct, kb = p4_fk(n)
            if n % 2 == 0:
                w = lg.waitstr(("w", min(n + 1, N4 - 1)))
                if w: k(w); used += 1
            r = WR + 4 * (n % NR)
            a = A4 + 16 * ct
            first = (kb == KO[0]) if ct < 3 else (kb == 0)
            if kb < 28: assert ("x", KO.index(kb) | 1) in done_val, n
            else: assert stat_ops is None and not any(o in stat_chk for o in fill if isinstance(o, str) and o != "GAP")
            c = "0" if first else f"v[{a}:{a+15}]"
            k(f"{MF} v[{a}:{a+15}], v[{r}:{r+3}], {xreg(kb)}, {c}")
            if n == 86: stamp_mid(k, 10)
            if n == 144: stamp_mid(k, 11)
            if kb == 28 and ct != 5:
                if ct == 6:
                    fill.extend(epi_ops(5, vm, gaps=1) + epi_ops(6, vm, gaps=0))
                else:
                    fill.extend(epi_ops(ct, vm, gaps=3 if ct in (0, 3) else 0))
            if n == 150:
                for d in range(8):
                    fill.append(f"v_lshlrev_b32 v{A5[0]+2*d}, 16, v{RES+d}")
                    fill.append(f"v_and_b32 v{A5[0]+2*d+1}, s61, v{RES+d}")
        else:
            slot, i = p5[n - N4]
            hi = 2 * i + (slot >> 1)
            u = (slot & 1) * 28 + kbo[i]
            assert ("h", i) in done_val, n
            a = A5[slot]
            c = "0" if (i == 0 and slot != 0) else f"v[{a}:{a+15}]"
            if n - N4 == 8:
                assert not fill
            k(f"{MF} v[{a}:{a+15}], {wdreg(u)}, {land[hi][0]}, {c}")
            if n == N4 + 48: stamp_mid(k, 13)
            if n == N4 + 80: stamp_mid(k, 14)
            if n == NT - 7:
                assert not vfill
                for s in range(1, 4):
                    k(f"""
                    s_xor_b32 s9, s3, {s}
                    s_mul_i32 s9, s9, {3*4096}
                    s_add_u32 s9, s9, {R5B + (s-1)*4096}
                    v_add_u32 v{4+s}, s9, v4
                    """)
                k(f"s_mul_i32 s9, s3, {3*4096}\ns_add_u32 s9, s9, {R5B}\nv_add_u32 v2, s9, v4")
            if n >= NT - 3:
                s = n - (NT - 3) + 1
                for q in range(4):
                    k(f"ds_write_b128 v{4+s}, v[{A5[s]+4*q}:{A5[s]+4*q+3}] offset:{q*1024}")
        if n == N4 - 1:
            stamp_mid(k, 12)
            k(f"s_cmp_eq_u32 s70, 0\ns_cbranch_scc1 {NOROLE}")
        if n >= nxt and queue and used <= C["BUD"] - 2:
            c = issue_next(n)
            if c:
                used += c
                pc = C["PACE"] if n < N4 else C["PACE5"]
                nxt = n + pc[pi[0] % len(pc)]; pi[0] += 1
        run(fill, C["BUD"] - used if not (N4 - 1 <= n < N4 + 8) else 5)
    assert not fill and not vfill
    while queue: issue_next(NT)
    stamp_mid(k, 16)
    if layer == 1:
        srd(k, 44, P_OUT, XBYTES)
        k(f"""
        v_and_b32 v7, 31, v1
        s_lshl_b32 s9, s66, 5
        v_add_u32 v7, s9, v7
        v_mul_u32_u24 v7, 896, v7
        v_lshrrev_b32 v3, 5, v1
        v_lshl_add_u32 v7, v3, 4, v7
        s_lshl_b32 s9, s67, 6
        """)
    reduce3(A5[0], 16, 2)
    PK = 8
    for d in range(8):
        k(f"v_cvt_pk_bf16_f32 v{PK+d}, v{A5[0]+2*d}, v{A5[0]+2*d+1}")
    dbg = f"s_sub_u32 s91, {BUDGET + 1}, s13\ns_add_u32 s91, s91, s92" if common.STAMP else ""
    if layer == 1:
        k(f"""
        v_permlane32_swap_b32 v{PK}, v{PK+2}
        v_permlane32_swap_b32 v{PK+1}, v{PK+3}
        v_permlane32_swap_b32 v{PK+4}, v{PK+6}
        v_permlane32_swap_b32 v{PK+5}, v{PK+7}
        buffer_store_dwordx4 v[{PK}:{PK+3}], v7, s[44:47], s9 offen
        buffer_store_dwordx4 v[{PK+4}:{PK+7}], v7, s[44:47], s9 offen offset:32
        {dbg}
        s_endpgm
        """)
    else:
        k(f"s_add_u32 s9, s12, {X2F}")
        for h in range(2):
            hstore(None, f"buffer_store_dwordx4 v[{PK+4*h}:{PK+4*h+3}], v4, s[40:43], s9 offen offset:{h*1024}", None, 3)
        stamp_mid(k, 17)
        RB, SB_ = 48 * 1024, 42 * 1024
        k(f"""
        {P1B}:
        s_mul_i32 s10, s66, {28*1024}
        s_xor_b32 s11, s66, 1
        s_mul_i32 s11, s11, {28*1024}
        s_mul_i32 s9, s3, {7*1024}
        s_add_u32 s9, s9, {X2F}
        s_add_u32 s10, s10, s9
        s_add_u32 s11, s11, s9
        v_add_u32 v13, s59, v4
        s_lshr_b32 s4, s66, 1
        s_and_b32 s12, s66, 1
        s_lshr_b32 s5, s67, 1
        s_mov_b32 s48, s13
        s_and_b32 s13, s67, 1
        v_and_b32 v2, 31, v1
        s_mov_b32 s14, 0x3f803f80
        """)
        qkv_setup(k, KVF1)
        k("s_mov_b32 s13, s48")
        for s in range(1, 4):
            k(f"""
            s_xor_b32 s9, s3, {s}
            s_mul_i32 s9, s9, {3*4096}
            s_add_u32 s9, s9, {(s-1)*4096}
            s_add_u32 s8, s9, {RB}
            v_add_u32 v{4+s}, s8, v4
            s_lshr_b32 s9, s9, 3
            s_add_u32 s9, s9, {SB_}
            v_lshl_add_u32 v{8+s}, v1, 3, s9
            """)
        k(f"s_mul_i32 s9, s3, {3*4096}\ns_add_u32 s8, s9, {RB}\nv_add_u32 v12, s8, v4\ns_lshr_b32 s9, s9, 3\ns_add_u32 s9, s9, {SB_}\nv_lshl_add_u32 v8, v1, 3, s9")
        k("s_waitcnt vmcnt(0)")
        for i in range(14):
            k(f"ds_read_b128 a[{4*i}:{4*i+3}], v13 offset:{i*1024}")
        k("v_lshrrev_b32 v13, 5, v1")
        ko2 = [0, 2, 4, 6, 1, 3, 5]

        def x2_d(b, kbl):
            i = 2 * kbl + b
            return dict(reg=f"v[{176+4*i}:{179+4*i}]", srd=40, base=10 + b, off=kbl * 1024)
        pl = k.newlabel("pr")
        d8 = [x2_d(b, kbl) for b in range(2) for kbl in ko2[:4]]
        d6 = [x2_d(b, kbl) for b in range(2) for kbl in ko2[4:]]
        spin(pl, d8, pl + "_b", True, d6)
        k(f"{pl}_b:\ns_waitcnt lgkmcnt(0)")
        stamp_mid(k, 18)
        SS1 = 24
        dots = []
        for kbl in ko2:
            for b in range(2):
                r0 = 176 + 4 * (2 * kbl + b)
                for d in range(4):
                    fst = kbl == 0 and d == 0
                    dots.append((kbl, f"v_dot2_f32_bf16 v{SS1+2*b}, v{r0+d}, s14, {'0' if fst else 'v%d' % (SS1+2*b)}"))
                    dots.append((kbl, f"v_dot2_f32_bf16 v{SS1+2*b+1}, v{r0+d}, v{r0+d}, {'0' if fst else 'v%d' % (SS1+2*b+1)}"))
        seq = []
        for kbl in ko2[:4]:
            seq += [(s, kbl) for s in (0, 1, 2, 3)]
        for kbl in ko2[4:]:
            seq += [(s, kbl) for s in (1, 2, 3)]
        seq += [(0, kbl) for kbl in ko2[4:]]
        ok = set(ko2[:4])
        for idx, (slot, kbl) in enumerate(seq):
            if idx == 12:
                k("s_waitcnt vmcnt(0)")
                for o in chk_ops([d["reg"] for d in d6]): k(o)
            if idx == 14:
                chk_branch(d6)
                ok |= set(ko2[4:])
            u = (slot & 1) * 7 + kbl
            a = A5[slot]
            c = "0" if kbl == 0 else f"v[{a}:{a+15}]"
            k(f"{MF} v[{a}:{a+15}], a[{4*u}:{4*u+3}], {x2_d(slot >> 1, kbl)['reg']}, {c}")
            for _ in range(5 if (idx < 25 and idx != 11) else 0):
                if dots and dots[0][0] in ok: k(dots.pop(0)[1])
            if idx == 24:
                while dots: k(dots.pop(0)[1])
            if idx >= 25:
                s = idx - 24
                for q in range(4):
                    k(f"ds_write_b128 v{4+s}, v[{A5[s]+4*q}:{A5[s]+4*q+3}] offset:{q*1024}")
                k(f"ds_write_b64 v{8+s}, v[{SS1+2*(s>>1)}:{SS1+2*(s>>1)+1}]")
        stamp_mid(k, 15)

        def st_extra(ph):
            if ph == 0:
                for j in range(3):
                    k(f"ds_read_b64 v[{16+2*j}:{17+2*j}], v8 offset:{j*512}")
            else:
                k(f"""
                s_waitcnt lgkmcnt(12)
                v_pk_add_f32 v[16:17], v[16:17], v[18:19]
                v_pk_add_f32 v[{SS1}:{SS1+1}], v[{SS1}:{SS1+1}], v[20:21]
                v_pk_add_f32 v[30:31], v[16:17], v[{SS1}:{SS1+1}]
                v_mov_b32 v3, v13
                v_mov_b32 v16, v30
                v_mov_b32 v17, v31
                s_nop 0
                v_permlane32_swap_b32 v30, v16
                v_permlane32_swap_b32 v31, v17
                v_pk_add_f32 v[30:31], v[30:31], v[16:17]
                """)
                stats_finish(k, 30, 31)
        reduce3(A5[0], 176, 12, st_extra)
        qkv_epilogue(k, A5[0], CS)
        k(dbg)
        k("s_endpgm")
    k(f"{NOR1}:")
    if layer == 0: mark_next(0, 16)
    k(f"s_branch {XJOIN}")
    k(f"{NOROLE}:\ns_nop 15")
    V3 = VM(k)
    for f in epi_ops(5, V3, gaps=0) + epi_ops(6, V3, gaps=0):
        if callable(f): f()
        else: k(f)
    if layer == 0:
        k("s_waitcnt vmcnt(0)")
        for f in p1b_prefetch(V3): f()
        cs_prefetch(V3)
        mark_next(16, 16)
        k(f"s_barrier\ns_branch {P1B}")
    else:
        k("s_endpgm")
    for lb, ds in stubs:
        spin(lb, ds, lb + "_b")
        k(f"s_branch {lb}_b ; retry")
    KR = 64
    S = 80
    k(f"""
    {FB}:
    v_mov_b32 v14, 0xff800000
    s_mov_b32 s9, {kvf}
    {FB}_l1:
    buffer_load_dwordx4 v[{KR}:{KR+3}], v4, s[40:43], s9 offen
    buffer_load_dwordx4 v[{KR+4}:{KR+7}], v4, s[40:43], s9 offen offset:1024
    s_waitcnt vmcnt(0)
    {MF} v[{S}:{S+15}], v[{KR}:{KR+3}], v[{Q}:{Q+3}], 0
    {MF} v[{S}:{S+15}], v[{KR+4}:{KR+7}], v[{Q+4}:{Q+7}], v[{S}:{S+15}]
    """)
    for r in range(0, 16, 2):
        k(f"v_max3_f32 v14, v{S+r}, v{S+r+1}, v14")
    k(f"""
    s_add_u32 s9, s9, 4096
    s_cmp_lt_u32 s9, {kvf + 64*4096}
    s_cbranch_scc1 {FB}_l1
    v_mov_b32 v8, v14
    s_nop 1
    v_permlane32_swap_b32 v14, v8
    v_max_f32 v14, v14, v8
    """)
    for r in range(16):
        k(f"v_mov_b32 v{O+r}, 0")
    k(f"""
    s_mov_b32 s9, {kvf}
    {FB}_l2:
    buffer_load_dwordx4 v[{KR}:{KR+3}], v4, s[40:43], s9 offen
    buffer_load_dwordx4 v[{KR+4}:{KR+7}], v4, s[40:43], s9 offen offset:1024
    buffer_load_dwordx4 v[{KR+8}:{KR+11}], v4, s[40:43], s9 offen offset:2048
    buffer_load_dwordx4 v[{KR+12}:{KR+15}], v4, s[40:43], s9 offen offset:3072
    s_waitcnt vmcnt(0)
    {MF} v[{S}:{S+15}], v[{KR}:{KR+3}], v[{Q}:{Q+3}], 0
    {MF} v[{S}:{S+15}], v[{KR+4}:{KR+7}], v[{Q+4}:{Q+7}], v[{S}:{S+15}]
    """)
    for r in range(16):
        k(f"v_sub_f32 v{S+r}, v{S+r}, v14")
    for r in range(16):
        k(f"v_exp_f32 v{S+r}, v{S+r}")
    for d in range(8):
        k(f"v_cvt_pk_bf16_f32 v{P+d}, v{S+2*d}, v{S+2*d+1}")
    k(f"""
    {MF} v[{O}:{O+15}], v[{KR+8}:{KR+11}], v[{P}:{P+3}], v[{O}:{O+15}]
    {MF} v[{O}:{O+15}], v[{KR+12}:{KR+15}], v[{P+4}:{P+7}], v[{O}:{O+15}]
    s_add_u32 s9, s9, 4096
    s_cmp_lt_u32 s9, {kvf + 64*4096}
    s_nop 7
    s_cbranch_scc1 {FB}_l2
    s_nop 7
    v_mov_b32 v9, v{O+12}
    v_mov_b32 v8, v{O+12}
    s_nop 1
    v_permlane32_swap_b32 v9, v8
    v_rcp_f32 v9, v8
    s_nop 1
    s_branch {NORM}
    """)
    epilogue(k)
    return k, dict(grid=256, block=256, lds=LDS)
```

```python
from common import *
import struct, math


def f2h(x):
    return "0x%08x" % struct.unpack("<I", struct.pack("<f", x))[0]


QSCALE = (28 ** -0.5) * math.log2(math.e)
MF = "v_mfma_f32_32x32x16_bf16"


def stats_finish(k, s1, s2):
    k(f"""
    v_mul_f32 v{s1}, {f2h(1.0/448)}, v{s1}
    v_mul_f32 v{s2}, {f2h(1.0/448)}, v{s2}
    v_fma_f32 v{s2}, -v{s1}, v{s1}, v{s2}
    v_max_f32 v{s2}, 0, v{s2}
    v_add_f32 v{s2}, {f2h(1e-5)}, v{s2}
    v_rsq_f32 v{s2}, v{s2}
    """)


def qkv_setup(k, kvf=KVF):
    k(f"""
    s_lshl_b32 s6, s4, 1
    s_add_u32 s6, s6, s12
    s_lshl_b32 s7, s5, 1
    s_add_u32 s62, s7, s13
    s_lshl_b32 s8, s6, 4
    s_add_u32 s8, s8, s62
    s_lshl_b32 s8, s8, 11
    s_add_u32 s60, s8, {QF}
    v_lshlrev_b32 v50, 4, v1
    s_lshl_b32 s9, s6, 12
    s_add_u32 s9, s9, {kvf}
    s_and_b32 s6, s62, 7
    s_lshr_b32 s7, s6, 2
    s_lshl_b32 s7, s7, 10
    s_and_b32 s8, s6, 1
    s_lshl_b32 s8, s8, 9
    s_add_u32 s7, s7, s8
    s_and_b32 s8, s6, 2
    s_lshl_b32 s8, s8, 2
    s_add_u32 s7, s7, s8
    s_lshl_b32 s8, s6, 6
    s_add_u32 s8, s8, 2048
    s_cmp_ge_u32 s62, 8
    s_cselect_b32 s7, s8, s7
    s_cselect_b64 vcc, -1, 0
    s_add_u32 s61, s9, s7
    v_lshrrev_b32 v51, 4, v2
    v_lshlrev_b32 v51, 10, v51
    v_bfe_u32 v52, v2, 2, 1
    v_lshl_add_u32 v51, v52, 9, v51
    v_and_b32 v52, 3, v2
    v_lshl_add_u32 v51, v52, 1, v51
    v_bfe_u32 v52, v2, 3, 1
    v_lshl_add_u32 v51, v52, 3, v51
    v_lshlrev_b32 v52, 4, v2
    v_cndmask_b32 v51, v52, v51, vcc
    """)


def qkv_epilogue(k, ACC, CS):
    k(f"""
    v_mul_f32 v36, {f2h(QSCALE)}, v31
    v_cmp_eq_u32 vcc, 1, v3
    v_sub_f32 v30, 0, v30
    v_cndmask_b32 v37, v36, v31, vcc
    """)
    for r in range(16):
        k(f"v_fmac_f32 v{ACC+r}, v30, v{CS+r}")
    for r in range(16):
        k(f"v_mul_f32 v{ACC+r}, v{36 if r < 12 else 37}, v{ACC+r}")
    PKD = 40
    for d in range(8):
        k(f"v_cvt_pk_bf16_f32 v{PKD+d}, v{ACC+2*d}, v{ACC+2*d+1}")
    k(f"""
    buffer_store_dwordx4 v[{PKD}:{PKD+3}], v50, s[40:43], s60 offen
    buffer_store_dwordx4 v[{PKD+4}:{PKD+7}], v50, s[40:43], s60 offen offset:1024
    s_and_b32 s10, s62, 7
    v_mov_b32 v48, v{PKD+6}
    v_mov_b32 v49, v{PKD+7}
    s_mov_b32 exec_lo, 0
    s_cmp_lg_u32 s10, 7
    s_cbranch_scc1 {k.name}_kv1
    s_cmp_ge_u32 s62, 8
    s_cselect_b32 s10, 0x3f80, 0
    v_mov_b32 v48, s10
    v_mov_b32 v49, 0
    {k.name}_kv1:
    s_cmp_ge_u32 s62, 8
    s_cbranch_scc1 {k.name}_v
    buffer_store_dwordx2 v[48:49], v51, s[40:43], s61 offen
    s_branch {k.name}_kvd
    {k.name}_v:
    buffer_store_short v48, v51, s[40:43], s61 offen
    buffer_store_short_d16_hi v48, v51, s[40:43], s61 offen offset:16
    buffer_store_short v49, v51, s[40:43], s61 offen offset:32
    buffer_store_short_d16_hi v49, v51, s[40:43], s61 offen offset:48
    {k.name}_kvd:
    s_mov_b64 exec, -1
    """)


def gen_p1a(name, MAP='H2'):
    k = Kernel(name)
    prologue(k, 256)
    WB = 57344
    PB = WB + 512 * 128
    STB = PB + 28 * 1024
    LDS = STB + 512
    if MAP == "H2":
        k("""
        s_bfe_u32 s4, s2, 0x20001
        s_lshl_b32 s4, s4, 3
        s_and_b32 s5, s2, 1
        s_add_u32 s4, s4, s5
        s_lshr_b32 s5, s2, 3
        s_and_b32 s6, s5, 3
        s_lshl_b32 s6, s6, 1
        s_add_u32 s4, s4, s6
        """)
    else:
        k("""
        s_and_b32 s4, s2, 7
        s_lshl_b32 s4, s4, 2
        s_lshr_b32 s5, s2, 3
        s_and_b32 s6, s5, 3
        s_add_u32 s4, s4, s6
        """)
    k(f"""
    s_lshr_b32 s5, s5, 2
    v_and_b32 v2, 31, v1
    v_lshrrev_b32 v3, 5, v1
    v_lshrrev_b32 v4, 3, v1
    v_and_b32 v5, 7, v1
    v_lshrrev_b32 v6, 4, v1
    """)
    k(f"""
    s_lshl_b32 s6, s4, 6
    s_lshl_b32 s7, s3, 4
    s_add_u32 s6, s6, s7
    v_add_u32 v7, s6, v4
    v_mul_u32_u24 v7, 896, v7
    v_xor_b32 v8, v5, v6
    v_lshl_add_u32 v8, v8, 4, v7
    v_xor_b32 v9, v5, v6
    v_xor_b32 v9, 4, v9
    v_lshl_add_u32 v9, v9, 4, v7
    v_add_u32 v9, {8*896}, v9
    """)
    k(f"""
    s_mul_i32 s6, s5, 112
    s_mul_i32 s7, s3, {8*896}
    s_add_u32 s6, s6, s7
    v_mul_u32_u24 v10, 896, v4
    v_lshl_add_u32 v10, v5, 4, v10
    v_add_u32 v10, s6, v10
    """)
    k(f"""
    s_lshl_b32 s6, s3, 6
    v_add_u32 v11, s6, v1
    v_lshlrev_b32 v12, 7, v11
    v_add_u32 v12, {WB+112}, v12
    v_mul_u32_u24 v11, 56, v11
    s_and_b32 s7, s5, 3
    s_lshl_b32 s7, s7, 4
    v_add_u32 v11, s7, v11
    s_mov_b32 s8, {256*56}
    s_lshl_b32 s9, s3, 11
    s_lshl_b32 s10, s3, 10
    s_add_u32 s10, s10, {WB}
    """)
    wait_ptrs(k)
    stamp_mid(k, 0)
    vm = VM(k)
    srd(k, 44, P_X, XBYTES)
    srd(k, 48, P_WQ, D * D * 2)
    k(f"""
    s_cmp_lt_u32 s5, 4
    s_cselect_b32 s52, s{P_WK}, s{P_WV}
    s_cselect_b32 s53, s{P_WK+1}, s{P_WV+1}
    s_and_b32 s53, s53, 0xffff
    s_mov_b32 s54, {D*DH*2}
    s_mov_b32 s55, 0x20000
    """)
    for c in range(7):
        k(f"s_add_u32 m0, s9, {c*8192}\ns_mov_b32 s11, {c*128}")
        vm.issue("buffer_load_dwordx4 v8, s[44:47], s11 offen lds", "x")
        k(f"s_add_u32 m0, s9, {c*8192+1024}\ns_nop 0")
        vm.issue("buffer_load_dwordx4 v9, s[44:47], s11 offen lds", "x")
    vm.issue("buffer_load_dwordx4 v[16:19], v11, s[52:55], 0 offen", "kv")
    vm.issue("buffer_load_dwordx4 v[20:23], v11, s[52:55], s8 offen", "kv")
    k("s_mov_b32 exec_lo, 0x7f7f7f7f\ns_mov_b32 exec_hi, 0x7f7f7f7f")
    for t in range(14):
        k(f"s_add_u32 m0, s10, {t*4096}\ns_mov_b32 s11, {t*32*896}")
        vm.issue("buffer_load_dwordx4 v10, s[48:51], s11 offen lds", ("w", t // 2))
    k("s_mov_b64 exec, -1")
    stamp_mid(k, 1)
    LN = k.name
    k(f"""
    s_and_b32 s6, s2, 7
    s_lshr_b32 s7, s2, 3
    s_mul_i32 s7, s7, 7
    s_add_u32 s7, s7, s6
    s_sub_u32 s66, s7, 1
    s_cmp_eq_u32 s6, 0
    s_cselect_b32 s66, 255, s66
    s_mov_b32 s59, 0x20000
    s_cmp_ge_u32 s66, 112
    s_cbranch_scc1 {LN}_u1
    s_mov_b32 s63, 0
    s_cmp_lt_u32 s3, 2
    s_cselect_b32 s56, s{P_WG}, s{P_WU}
    s_cselect_b32 s57, s{P_WG+1}, s{P_WU+1}
    s_mov_b32 s58, {D*F*2}
    s_mov_b32 s65, {F*2}
    s_and_b32 s6, s66, 3
    s_mul_i32 s6, s6, 112
    s_and_b32 s7, s3, 1
    s_mul_i32 s7, s7, 56
    s_add_u32 s6, s6, s7
    s_mul_i32 s64, s6, {F*2}
    s_lshr_b32 s67, s66, 2
    s_and_b32 s68, s66, 3
    s_branch {LN}_u9
    {LN}_u1:
    s_mov_b32 s65, {D*2}
    s_cmp_ge_u32 s66, 168
    s_cbranch_scc1 {LN}_u2
    s_mov_b32 s63, 1
    s_mov_b32 s56, s{P_WD}
    s_mov_b32 s57, s{P_WD+1}
    s_mov_b32 s58, {D*F*2}
    s_sub_u32 s6, s66, 112
    s_branch {LN}_u3
    {LN}_u2:
    s_mov_b32 s63, 2
    s_mov_b32 s56, s{P_WO}
    s_mov_b32 s57, s{P_WO+1}
    s_mov_b32 s58, {D*D*2}
    s_sub_u32 s6, s66, 168
    s_cmp_lt_u32 s66, 182
    s_cbranch_scc1 {LN}_u3
    s_mov_b32 s63, 3
    s_mov_b32 s58, 0
    s_mov_b32 s6, 0
    {LN}_u3:
    s_mul_i32 s68, s6, 9363
    s_lshr_b32 s68, s68, 16
    s_mul_i32 s7, s68, 7
    s_sub_u32 s67, s6, s7
    s_mul_i32 s6, s68, 224
    s_mul_i32 s7, s3, 56
    s_add_u32 s6, s6, s7
    s_mul_i32 s64, s6, {D*2}
    {LN}_u9:
    s_and_b32 s57, s57, 0xffff
    s_lshl_b32 s6, s67, 7
    s_add_u32 s64, s64, s6
    v_mul_lo_u32 v13, v4, s65
    v_lshl_add_u32 v13, v5, 4, v13
    s_lshl_b32 s65, s65, 3
    s_mul_i32 s6, s3, {7*1024}
    s_add_u32 s6, s6, {PB}
    """)
    for i in range(7):
        k(f"s_add_u32 m0, s6, {i*1024}\ns_nop 0")
        vm.issue("buffer_load_dwordx4 v13, s[56:59], s64 offen lds", "pre")
        k("s_add_u32 s64, s64, s65")
    k(f"""
    s_lshl_b32 s6, s2, 2
    s_add_u32 s6, s6, s3
    s_lshl_b32 s6, s6, 12
    s_add_u32 s6, s6, {MK0}
    v_lshlrev_b32 v13, 4, v1
    v_mov_b32 v120, -1
    v_mov_b32 v121, -1
    v_mov_b32 v122, -1
    v_mov_b32 v123, -1
    """)
    for i in range(4):
        vm.issue(f"buffer_store_dwordx4 v[120:123], v13, s[40:43], s6 offen offset:{i*1024} sc1", "z")
    k("s_mov_b64 exec, -1")
    SR = 64
    k(f"""
    v_and_b32 v13, 15, v1
    v_lshrrev_b32 v14, 3, v13
    v_lshlrev_b32 v14, 10, v14
    v_and_b32 v15, 7, v13
    v_lshl_add_u32 v14, v15, 7, v14
    v_bfe_u32 v15, v13, 1, 2
    v_xor_b32 v15, v15, v6
    v_lshl_add_u32 v14, v15, 5, v14
    v_add_u32 v14, s9, v14
    s_mov_b32 s14, 0x3f803f80
    v_mov_b32 v30, 0
    v_mov_b32 v31, 0
    """)
    vm.wait("x")
    for c in range(7):
        for h in range(2):
            r = SR + 8 * c + 4 * h
            k(f"ds_read_b128 v[{r}:{r+3}], v14 offset:{c*8192+16*h}")
    k(f"""
    s_lshr_b32 s12, s3, 1
    s_and_b32 s13, s3, 1
    s_lshl_b32 s6, s12, 5
    v_add_u32 v32, s6, v2
    v_lshlrev_b32 v53, 3, v32
    v_add_u32 v53, {STB}, v53
    v_lshrrev_b32 v33, 3, v32
    v_lshlrev_b32 v33, 10, v33
    v_and_b32 v34, 7, v32
    v_lshl_add_u32 v33, v34, 7, v33
    v_bfe_u32 v34, v32, 1, 3
    """)
    for q in range(4):
        k(f"""
        v_add_u32 v32, {2*q}, v3
        v_xor_b32 v32, v32, v34
        v_lshl_add_u32 v{24+q}, v32, 4, v33
        """)
    k(f"""
    v_bfe_u32 v32, v1, 2, 2
    v_bfe_u32 v33, v1, 4, 1
    v_and_b32 v34, 3, v1
    v_lshl_add_u32 v33, v33, 2, v34
    v_lshlrev_b32 v34, 3, v33
    s_mul_i32 s6, s13, 56
    v_add_u32 v34, s6, v34
    s_lshl_b32 s7, s13, 3
    s_add_u32 s7, s7, 112
    v_mov_b32 v29, s7
    v_cmp_eq_u32 vcc, 7, v33
    v_cndmask_b32 v34, v34, v29, vcc
    v_add_u32 v34, {WB}, v34
    v_lshl_add_u32 v29, v3, 2, v32
    v_lshl_add_u32 v29, v29, 7, v34
    v_lshl_add_u32 v28, v3, 3, v32
    v_lshl_add_u32 v28, v28, 7, v34
    """)
    qkv_setup(k)
    for c in range(7):
        k(f"s_waitcnt lgkmcnt({12-2*c})")
        for d in range(8):
            r = SR + 8 * c + d
            k(f"v_dot2_f32_bf16 v30, v{r}, s14, v30")
            k(f"v_dot2_f32_bf16 v31, v{r}, v{r}, v31")
    vm.wait("kv")
    k(f"""
    ds_write_b128 v12, v[16:19]
    ds_write_b128 v12, v[20:23] offset:32768
    v_mov_b32 v36, v30
    v_mov_b32 v37, v31
    s_nop 0
    v_permlane32_swap_b32 v30, v36
    v_permlane32_swap_b32 v31, v37
    v_add_f32 v30, v30, v36
    v_add_f32 v31, v31, v37
    v_mov_b32 v36, v30
    v_mov_b32 v37, v31
    s_nop 0
    v_permlane16_swap_b32 v30, v36
    v_permlane16_swap_b32 v31, v37
    v_add_f32 v30, v30, v36
    v_add_f32 v31, v31, v37
    """)
    stats_finish(k, 30, 31)
    k(f"""
    s_lshl_b32 s6, s3, 7
    s_add_u32 s6, s6, {STB}
    v_lshl_add_u32 v13, v13, 3, s6
    ds_write_b64 v13, v[30:31]
    v_mov_b32 v32, s14
    v_mov_b32 v33, s14
    v_mov_b32 v34, s14
    v_mov_b32 v35, s14
    """)
    stamp_mid(k, 2)
    ACC, CS, RING = 64, 80, 96
    stages = [(0, 8, 1), (8, 16, 3), (16, 28, 6)]

    def reads(kb):
        r = RING + 8 * (kb % 4)
        return [f"ds_read_b64_tr_b16 v[{r}:{r+1}], v28 offset:{kb*2048}",
                f"ds_read_b64_tr_b16 v[{r+2}:{r+3}], v28 offset:{kb*2048+512}",
                f"ds_read_b128 v[{r+4}:{r+7}], v{24+(kb&3)} offset:{(kb>>2)*8192}"]
    for (k0, k1, wg) in stages:
        vm.wait(("w", wg), "lgkmcnt(0)")
        k("s_barrier")
        if k0 == 0: stamp_mid(k, 3)
        for kb in range(k0, min(k0 + 3, k1)):
            for r in reads(kb): k(r)
        for kb in range(k0, k1):
            if kb + 3 < k1:
                for r in reads(kb + 3): k(r)
            out = min(3, k1 - 1 - kb) * 3
            k(f"s_waitcnt lgkmcnt({out})")
            r = RING + 8 * (kb % 4)
            c0 = "0" if kb == 0 else f"v[{ACC}:{ACC+15}]"
            c1 = "0" if kb == 0 else f"v[{CS}:{CS+15}]"
            k(f"{MF} v[{ACC}:{ACC+15}], v[{r}:{r+3}], v[{r+4}:{r+7}], {c0}")
            k(f"{MF} v[{CS}:{CS+15}], v[{r}:{r+3}], v[32:35], {c1}")
    k("ds_read_b64 v[30:31], v53")
    stamp_mid(k, 4)
    vm.wait("pre", "lgkmcnt(0)")
    k("s_barrier")
    qkv_epilogue(k, ACC, CS)
    stamp_mid(k, 5)
    T = 96
    k(f"""
    v_bfe_u32 v13, v1, 2, 2
    v_and_b32 v14, 3, v1
    v_lshlrev_b32 v14, 3, v14
    v_bfe_u32 v15, v1, 4, 1
    s_cmp_eq_u32 s63, 3
    s_cbranch_scc1 {LN}_t3
    s_cmp_eq_u32 s63, 2
    s_cbranch_scc1 {LN}_t2
    s_cmp_eq_u32 s63, 1
    s_cbranch_scc1 {LN}_t1
    """)

    def tr(addr, jstride, ehstride):
        for j in range(7):
            for eh in range(2):
                k(f"ds_read_b64_tr_b16 v[{T+4*j+2*eh}:{T+4*j+2*eh+1}], v{addr} offset:{j*jstride+eh*ehstride}")
    k(f"""
    v_lshl_add_u32 v13, v3, 2, v13
    v_lshl_add_u32 v13, v13, 7, v14
    v_mul_u32_u24 v15, 14336, v15
    s_lshl_b32 s6, s3, 5
    s_add_u32 s6, s6, {PB}
    v_add3_u32 v13, v13, v15, s6
    """)
    tr(13, 2048, 1024)
    k(f"""
    s_lshl_b32 s6, s67, 2
    s_add_u32 s6, s6, s3
    s_mul_i32 s8, s6, 9363
    s_lshr_b32 s8, s8, 16
    s_mul_i32 s9, s8, 7
    s_sub_u32 s9, s6, s9
    s_mul_i32 s8, s8, {WGS*1024}
    s_add_u32 s8, s8, {WGUF}
    s_mul_i32 s12, s68, 7
    s_sub_u32 s13, s9, 3
    s_lshr_b32 s14, s13, 1
    s_mul_i32 s14, s14, 58
    s_and_b32 s13, s13, 1
    s_add_u32 s13, s13, s14
    s_add_u32 s13, s13, 87
    s_mov_b32 s15, 0x3f803f80
    """)
    for j in range(7):
        k(f"""
        s_add_u32 s14, s12, {j}
        s_mul_i32 s10, s68, {3 if j == 6 else 18}
        s_add_u32 s10, s10, {0 if j == 6 else 3 * (4 + j)}
        s_add_u32 s10, s10, s9
        s_lshl_b32 s11, s14, 1
        s_add_u32 s11, s11, s13
        s_cmp_lt_u32 s9, 3
        s_cselect_b32 s10, s10, s11
        s_lshl_b32 s10, s10, 10
        s_add_u32 s10, s10, s8
        s_waitcnt lgkmcnt({12-2*j})
        buffer_store_dwordx4 v[{T+4*j}:{T+4*j+3}], v50, s[40:43], s10 offen
        """)
        for d in range(4):
            k(f"v_dot2_f32_bf16 v16, v{T+4*j+d}, s15, {'0' if (j == 0 and d == 0) else 'v16'}")
    k(f"""
    s_add_u32 s10, s9, 84
    s_add_u32 s11, s13, 56
    s_cmp_lt_u32 s9, 3
    s_cselect_b32 s10, s10, s11
    s_lshl_b32 s10, s10, 10
    s_add_u32 s10, s10, s8
    s_lshl_b32 s11, s68, 2
    s_add_u32 s10, s10, s11
    v_mov_b32 v17, v16
    s_nop 1
    v_permlane32_swap_b32 v16, v17
    v_add_f32 v16, v16, v17
    v_cvt_pk_bf16_f32 v17, v16, v16
    v_lshlrev_b32 v17, 16, v17
    v_sub_f32 v17, v16, v17
    v_cvt_pk_bf16_f32 v16, v16, v17
    buffer_store_dword v16, v50, s[40:43], s10 offen
    s_endpgm
    """)

    def lin_store(stride, dup=0):
        for j in range(7):
            k(f"""
            s_waitcnt lgkmcnt({12-2*j})
            buffer_store_dwordx4 v[{T+4*j}:{T+4*j+3}], v50, s[40:43], s10 offen
            """)
            if dup:
                k(f"""
                s_add_u32 s11, s10, {dup}
                buffer_store_dwordx4 v[{T+4*j}:{T+4*j+3}], v50, s[40:43], s11 offen
                """)
            k(f"s_add_u32 s10, s10, {stride}")
        k("s_endpgm")
    k(f"""
    {LN}_t1:
    v_lshl_add_u32 v13, v3, 2, v13
    v_lshl_add_u32 v13, v13, 7, v14
    v_lshl_add_u32 v13, v15, 5, v13
    s_mul_i32 s6, s12, {7*2048}
    s_lshl_b32 s7, s13, 6
    s_add_u32 s6, s6, s7
    s_add_u32 s6, s6, {PB}
    v_add_u32 v13, s6, v13
    """)
    tr(13, 2048, 1024)
    k(f"""
    s_lshl_b32 s6, s67, 1
    s_add_u32 s6, s6, s13
    s_mul_i32 s10, s6, 112
    s_mul_i32 s6, s68, 14
    s_add_u32 s10, s10, s6
    s_mul_i32 s6, s12, 7
    s_add_u32 s10, s10, s6
    s_lshl_b32 s10, s10, 10
    s_add_u32 s10, s10, {WDF}
    """)
    lin_store(1024)
    k(f"""
    {LN}_t2:
    v_lshl_add_u32 v13, v3, 2, v13
    v_lshl_add_u32 v13, v13, 7, v14
    v_lshl_add_u32 v13, v15, 5, v13
    s_mul_i32 s6, s12, {7*2048}
    s_lshl_b32 s7, s13, 6
    s_add_u32 s6, s6, s7
    s_add_u32 s6, s6, {PB}
    v_add_u32 v13, s6, v13
    """)
    for jj in range(8):
        for eh in range(2):
            k(f"ds_read_b64_tr_b16 v[{T+4*jj+2*eh}:{T+4*jj+2*eh+1}], v13 offset:{(28*(jj>>1)+16*(jj&1)+8*eh)*128}")
    k(f"""
    s_lshl_b32 s6, s67, 1
    s_add_u32 s6, s6, s13
    s_lshl_b32 s10, s6, 5
    s_lshl_b32 s6, s68, 4
    s_add_u32 s10, s10, s6
    s_lshl_b32 s6, s12, 3
    s_add_u32 s10, s10, s6
    s_lshl_b32 s10, s10, 10
    s_add_u32 s10, s10, {WOF}
    s_add_u32 s11, s10, 4096
    s_waitcnt lgkmcnt(0)
    s_mov_b32 exec_lo, 0
    """)
    for jj in range(1, 8, 2):
        k(f"v_mov_b32 v{T+4*jj+2}, 0\nv_mov_b32 v{T+4*jj+3}, 0")
    k("s_mov_b32 exec_lo, -1")
    for jj in range(8):
        k(f"buffer_store_dwordx4 v[{T+4*jj}:{T+4*jj+3}], v50, s[40:43], s{10 if jj < 4 else 11} offen offset:{(jj%4)*1024}")
    k("s_endpgm")
    k(f"""
    {LN}_t3:
    s_and_b32 s6, s2, 7
    s_cmp_lg_u32 s6, 0
    s_cbranch_scc1 {LN}_fin
    s_bfe_u32 s4, s2, 0x20003
    s_cmp_lg_u32 s12, 0
    s_cbranch_scc1 {LN}_fin
    s_mul_i32 s6, s4, {7*2048}
    v_add_u32 v29, s6, v29
    """)
    tr(29, 2048, 1024)
    k(f"""
    s_mul_i32 s10, s62, 28
    s_mul_i32 s6, s4, 7
    s_add_u32 s10, s10, s6
    s_lshl_b32 s10, s10, 10
    s_add_u32 s10, s10, {WQF}
    s_lshl_b32 s6, s62, 7
    s_add_u32 s6, s6, {CSQ}
    v_lshlrev_b32 v13, 4, v3
    """)
    for q in range(4):
        k(f"buffer_store_dwordx4 v[{CS+4*q}:{CS+4*q+3}], v13, s[40:43], s6 offen offset:{q*32}")
    lin_store(1024)
    k(f"{LN}_fin:\ns_endpgm")
    epilogue(k)
    return k, dict(grid=256, block=256, lds=LDS)
```

```python
S, D, H, DH, F = 2048, 448, 16, 28, 1792
def al(x, a=4096): return (x + a - 1) // a * a
off = 0
def alloc(n):
    global off
    o = off; off = al(off + n); return o
QF  = alloc(64 * 16 * 2 * 1024)
KVF = alloc(64 * 4096)
KVF1 = alloc(64 * 4096)
XSZ = 64 * 28 * 1024
MKSZ = 4096 * 1024
MK0 = alloc(MKSZ)
MK1 = alloc(MKSZ)
O_OFF, X1_OFF, ST_OFF = 0, 2048 * 1024, 2048 * 1024 + XSZ
assert ST_OFF + 64 * 4096 == MKSZ
X1F = MK0 + X1_OFF
HF  = alloc(64 * 112 * 1024)
HF1 = alloc(64 * 112 * 1024)
X2F = alloc(64 * 28 * 1024)
WOF = alloc(14 * 32 * 1024)
WGS = 208
WGUF= alloc(16 * WGS * 1024)
WDF = alloc(14 * 112 * 1024)
WQF = alloc(16 * 28 * 1024)
CSQ = alloc(16 * 128)
DUMMY = alloc(128 * 4096)
ST2 = alloc(64 * 4096)
QF1 = alloc(64 * 16 * 2 * 1024)
FLG = alloc(4096)
WS_USED = off
XBYTES = S * D * 2

KO = [6, 13, 20, 27] + [kb for kb in range(28) if kb % 7 != 6] + [28]
N4 = 203
def p4_f(ctl, kb):
    if ctl < 3:
        return 3 * KO.index(kb) + ctl
    return 87 + 58 * ((ctl - 3) >> 1) + 2 * kb + ((ctl - 3) & 1)
def p4_fk(n):
    if n < 87:
        return n % 3, KO[n // 3]
    m = n - 87
    return 3 + 2 * (m // 58) + (m & 1), (m % 58) >> 1
assert all(p4_f(*p4_fk(n)) == n for n in range(N4))

if __name__ == "__main__":
    for k in "QF KVF KVF1 MK0 MK1 HF HF1 X2F WOF WGUF WDF WQF CSQ WS_USED".split():
        print(k, hex(globals()[k]))
```

```python
from asmlib import *
from layout import *

P_X, P_WQ, P_WK, P_WV, P_WO, P_BX, P_WG, P_WU, P_WD, P_OUT, P_DBG, P_WS = [16 + 2 * i for i in range(12)]
S_WS = 40
S_WAVE = 3


STAMP = False
STAMP_BASE = 0x3000000
_stamp_slot = [0]


NMID = 20
def stamp_mid(k, idx):
    if STAMP:
        k(f"s_memtime s[96:97]\ns_waitcnt lgkmcnt(0)\ns_mov_b32 s{72+idx}, s96")


def prologue(k, nwg, pf=None):
    if STAMP:
        k("s_memtime s[92:93]\ns_memrealtime s[94:95]")
        for i in range(NMID): k(f"s_mov_b32 s{72+i}, 0")
    k(f"""
    s_cmp_ge_u32 s2, {nwg}
    s_cbranch_scc1 {k.name}_end
    s_load_dwordx16 s[16:31], s[0:1], 0
    s_load_dwordx8 s[32:39], s[0:1], 64
    """)
    if pf: k(code_pf(k, *pf))
    k(f"""
    v_and_b32 v1, 63, v0
    v_lshrrev_b32 v2, 6, v0
    s_nop 0
    v_readfirstlane_b32 s3, v2
    """)


def code_pf(k, S, T, frm, to, tag):
    lb = f"{k.name}_{tag}"
    k(f"s_getpc_b64 s[{S}:{S+1}]\n{lb}:")
    if frm is None:
        frm = lb
    else:
        k(f"s_add_u32 s{S}, s{S}, {frm}-{lb}\ns_addc_u32 s{S+1}, s{S+1}, 0")
    k(f"""
    s_lshr_b32 s{S+2}, s2, 3
    s_lshl_b32 s{S+2}, s{S+2}, 15
    v_lshlrev_b32 v{T}, 7, v0
    v_add_u32 v{T}, s{S+2}, v{T}
    s_and_b32 s{S+1}, s{S+1}, 0xffff
    s_mov_b32 s{S+2}, {to}-{frm}
    s_mov_b32 s{S+3}, 0x20000
    """)
    return f"buffer_load_dword v{T}, v{T}, s[{S}:{S+3}], 0 offen"


def wait_ptrs(k):
    k("s_waitcnt lgkmcnt(0)")
    srd(k, S_WS, P_WS, WS_USED)


def srd(k, s, ptr, size):
    k(f"""
    s_mov_b32 s{s}, s{ptr}
    s_and_b32 s{s+1}, s{ptr+1}, 0xffff
    s_mov_b32 s{s+2}, {size}
    s_mov_b32 s{s+3}, 0x20000
    """)


def epilogue(k):
    if STAMP:
        k.lines = [(f"s_branch {k.name}_stamp" if l == "s_endpgm" else l) for l in k.lines]
        k(f"""
        {k.name}_stamp:
        s_mov_b64 exec, -1
        s_waitcnt vmcnt(0) lgkmcnt(0)
        s_memtime s[96:97]
        s_memrealtime s[98:99]
        s_load_dwordx2 s[8:9], s[0:1], 80
        s_waitcnt lgkmcnt(0)
        s_mov_b32 s4, s{P_WS}
        s_and_b32 s5, s{P_WS+1}, 0xffff
        s_mov_b32 s6, 0x4000000
        s_mov_b32 s7, 0x20000
        s_lshr_b32 s8, s8, 9
        s_and_b32 s8, s8, 31
        s_lshl_b32 s8, s8, 8
        s_add_u32 s8, s8, s2
        s_lshl_b32 s8, s8, 2
        s_add_u32 s8, s8, s3
        s_lshl_b32 s8, s8, 7
        s_add_u32 s8, s8, {STAMP_BASE}
        v_mov_b32 v0, s92
        v_mov_b32 v1, s96
        v_mov_b32 v2, s94
        v_mov_b32 v3, s98
        """)
        for i in range(NMID): k(f"v_mov_b32 v{4+i}, s{72+i}")
        k("v_mov_b32 v24, 0\ns_mov_b64 exec, 1")
        for q in range(6):
            k(f"buffer_store_dwordx4 v[{4*q}:{4*q+3}], v24, s[4:7], s8 offen offset:{16*q}")
        k("s_endpgm")
    k(f"""
    {k.name}_end:
    s_endpgm
    """)


class VM:
    def __init__(self, k):
        self.k = k; self.tags = []; self.done = 0

    def issue(self, text, tag=None):
        self.k(text); self.tags.append(tag)

    def count_after(self, tag):
        idx = max(i for i, t in enumerate(self.tags) if t == tag)
        return len(self.tags) - 1 - idx, idx

    def wait(self, tag, extra=""):
        n, idx = self.count_after(tag)
        if idx < self.done and not extra:
            return
        n = min(n, 63)
        self.done = max(self.done, idx + 1)
        self.k(f"s_waitcnt vmcnt({n}) {extra}".strip())

    def waitstr(self, tag):
        n, idx = self.count_after(tag)
        if idx < self.done:
            return None
        n = min(n, 63)
        self.done = max(self.done, idx + 1)
        return f"s_waitcnt vmcnt({n})"


class LG:
    def __init__(self):
        self.tags = []; self.done = 0

    def issue(self, tag):
        self.tags.append(tag)

    def waitstr(self, tag):
        idx = max(i for i, t in enumerate(self.tags) if t == tag)
        if idx < self.done:
            return None
        n = len(self.tags) - 1 - idx
        n = min(n, 15)
        self.done = idx + 1
        return f"s_waitcnt lgkmcnt({n})"

    def all_done(self):
        self.done = len(self.tags)


def ws_sub_srd(k, s, off, size):
    k(f"""
    s_add_u32 s{s}, s{P_WS}, {off}
    s_addc_u32 s{s+1}, s{P_WS+1}, 0
    s_and_b32 s{s+1}, s{s+1}, 0xffff
    s_mov_b32 s{s+2}, {size}
    s_mov_b32 s{s+3}, 0x20000
    """)
```

```python
from common import *
import common
from k_p1 import f2h, stats_finish, qkv_setup, qkv_epilogue

MF = "v_mfma_f32_32x32x16_bf16"
SC = " sc1"
BUDGET = 200000

DEF = dict(
    X_BURST=6, LEAD=28,
    PACE=(2, 3), BARS=(106, 106, 154), BUD=6,
    KVROT=0, ROT=0, FE=4, MAP='H2', DUAL=0, PACE5=(2,), W_PRE=0,
    SS=(), CPF=15,
    HT=(150, 200, 252),
)


def gen_mega(name, layer, **over):
    C = dict(DEF); C.update(over)
    k = Kernel(name)
    SS = C["SS"]

    def stamp_mid(k, idx):
        if SS and idx not in (0, 8): return
        common.stamp_mid(k, idx)
    prologue(k, 256, (44, 15, None, name + "_end", "pc") if C["CPF"] & 4 else None)
    kvf = KVF if layer == 0 else KVF1
    mk, hf = (MK0, HF) if layer == 0 else (MK1, HF1)
    Q, O, SA, SB, P = 16, 48, 112, 128, 144
    NS = 160
    LDS = NS * 1024
    RES = 248
    if C["MAP"] == "H2":
        k("""
        s_bfe_u32 s4, s2, 0x20001
        s_lshl_b32 s4, s4, 6
        s_lshr_b32 s5, s2, 6
        s_lshl_b32 s5, s5, 4
        s_add_u32 s4, s4, s5
        s_and_b32 s5, s2, 1
        s_lshl_b32 s5, s5, 3
        s_add_u32 s4, s4, s5
        s_bfe_u32 s5, s2, 0x30003
        s_add_u32 s4, s4, s5
        """)
    else:
        k("""
        s_and_b32 s4, s2, 7
        s_lshl_b32 s4, s4, 5
        s_lshr_b32 s5, s2, 3
        s_add_u32 s4, s4, s5
        """)
    k(f"""
    s_lshr_b32 s5, s4, 2
    s_and_b32 s6, s4, 3
    s_lshl_b32 s6, s6, 3
    v_lshlrev_b32 v4, 4, v1
    v_and_b32 v2, 31, v1
    v_lshrrev_b32 v3, 5, v1
    s_lshl_b32 s8, s3, 16
    s_add_u32 s8, s8, {kvf}
    v_lshrrev_b32 v5, 3, v2
    v_lshlrev_b32 v5, 11, v5
    v_and_b32 v6, 7, v1
    v_add_u32 v6, s6, v6
    v_lshl_add_u32 v6, v3, 5, v6
    v_lshl_add_u32 v13, v6, 4, v5
    s_lshl_b32 s7, s5, 15
    s_lshl_b32 s14, s3, 13
    s_add_u32 s49, s7, s14
    s_add_u32 s49, s49, {mk + O_OFF}
    s_add_u32 s7, s7, {QF}
    s_lshr_b32 s14, s2, 3
    s_and_b32 s14, s14, {15 if C["KVROT"] else 0}
    s_lshl_b32 s14, s14, 12
    s_add_u32 s9, s8, s14
    """)
    for jj in range(4):
        k(f"""
        s_add_u32 s14, s3, {jj}
        s_and_b32 s14, s14, 3
        s_lshl_b32 s14, s14, 13
        s_add_u32 s{10+jj}, s7, s14
        """)
    wait_ptrs(k)
    stamp_mid(k, 0)
    vm = VM(k)
    order = [1, 2, 3, 0]
    NRING = 4

    def ab(t):
        return 16 * (t % NRING)

    def ld_kv(t, parts=(0, 1, 2, 3)):
        if parts[0] == 0:
            if t: k(f"s_add_u32 s9, s9, 4096\ns_pack_lh_b32_b16 s9, s9, s8")
        for f in parts:
            vm.issue(f"buffer_load_dwordx4 a[{ab(t)+4*f}:{ab(t)+4*f+3}], v4, s[40:43], s9 offen offset:{f*1024}", ("k" if f < 2 else "v", t))

    def ld_q(jj):
        for h in range(2):
            vm.issue(f"buffer_load_dwordx4 v[{Q+8*jj+4*h}:{Q+8*jj+4*h+3}], v13, s[40:43], s{10+jj} offen offset:{h*1024}", ("q", jj))

    ld_kv(0, (0, 1))
    ld_q(1)
    ld_q(2)
    vm.issue(f"buffer_load_dwordx4 a[8:11], v4, s[40:43], s9 offen offset:2048", ("v", 0))
    vm.issue(f"buffer_load_dwordx4 a[12:15], v4, s[40:43], s9 offen offset:3072", ("v", 0))
    ld_q(3)
    ld_q(0)
    ld_kv(1)
    steps = [(t, jj) for t in range(16) for jj in order]
    Sb = [SA, SB]

    def qk(s, half):
        t, jj = steps[s]
        S = Sb[s & 1]
        c = "0" if half == 0 else f"v[{S}:{S+15}]"
        return f"{MF} v[{S}:{S+15}], a[{ab(t)+4*half}:{ab(t)+4*half+3}], v[{Q+8*jj+4*half}:{Q+8*jj+4*half+3}], {c}"

    def pv(s, half):
        t, jj = steps[s]
        o = O + 16 * jj
        c = "0" if (t == 0 and half == 0) else f"v[{o}:{o+15}]"
        return f"{MF} v[{o}:{o+15}], a[{ab(t)+8+4*half}:{ab(t)+8+4*half+3}], v[{P+4*half}:{P+4*half+3}], {c}"

    def need_qk(s):
        t, jj = steps[s]
        if t >= 1:
            vm.wait(("v", t))
        vm.wait(("k", t)); vm.wait(("q", jj))

    for jj in range(1, 4):
        k(f"""
        s_add_u32 s14, s3, {jj}
        s_and_b32 s14, s14, 3
        s_mul_i32 s14, s14, {3*4096}
        s_add_u32 s14, s14, {(jj-1)*4096}
        v_add_u32 v{5+jj}, s14, v4
        s_xor_b32 s14, s3, {jj}
        s_mul_i32 s14, s14, {3*4096}
        s_add_u32 s14, s14, {(jj-1)*4096}
        v_add_u32 v{9+jj}, s14, v4
        """)
    k(f"""
    s_mul_i32 s14, s3, {3*4096}
    v_add_u32 v5, s14, v4
    """)
    srd(k, 68, P_WS, WS_USED)
    k(f"""
    s_and_b32 s14, s4, 15
    s_lshl_b32 s63, s3, 12
    s_mul_i32 s64, s14, {WGS*1024}
    s_add_u32 s64, s64, s63
    s_add_u32 s64, s64, {WGUF}
    s_add_u32 s63, s63, {48*1024}
    s_and_b32 s15, s14, 7
    s_cmp_lt_u32 s15, 7
    s_cselect_b32 s70, s70, 0
    s_lshr_b32 s44, s4, 4
    s_add_u32 s45, s44, s15
    s_and_b32 s44, s44, {3 if C["ROT"] else 0}
    s_lshl_b32 s57, s44, 15
    s_lshl_b32 s15, s15, 1
    s_and_b32 s67, s3, 1
    s_add_u32 s67, s67, s15
    s_xor_b32 s65, s67, 1
    s_lshl_b32 s46, s67, 15
    s_lshl_b32 s47, s65, 15
    s_lshl_b32 s15, s3, 13
    s_add_u32 s44, s15, {WOF}
    s_add_u32 s46, s46, s44
    s_add_u32 s47, s47, s44
    s_mul_i32 s62, s67, {112*1024}
    s_mul_i32 s65, s65, {112*1024}
    s_mul_i32 s48, s3, {28*1024}
    s_add_u32 s7, s48, {WDF}
    s_add_u32 s62, s62, s7
    s_add_u32 s65, s65, s7
    s_lshr_b32 s44, s4, 4
    s_lshl_b32 s44, s44, 2
    s_add_u32 s6, s44, s3
    s_mul_i32 s5, s6, {28*1024}
    s_add_u32 s5, s5, {mk + X1_OFF}
    s_lshl_b32 s7, s6, 12
    s_add_u32 s7, s7, {mk + ST_OFF}
    s_mul_i32 s6, s6, 112
    s_mul_i32 s13, s14, 7
    s_add_u32 s6, s6, s13
    s_lshl_b32 s6, s6, 10
    s_add_u32 s6, s6, {hf}
    s_lshr_b32 s13, s14, 3
    s_lshl_b32 s13, s13, 1
    s_add_u32 s44, s44, s13
    s_lshr_b32 s13, s3, 1
    s_add_u32 s66, s44, s13
    s_xor_b32 s11, s66, 1
    s_lshl_b32 s50, s66, 15
    s_lshl_b32 s51, s11, 15
    s_add_u32 s15, s15, {mk + O_OFF}
    s_add_u32 s50, s50, s15
    s_add_u32 s51, s51, s15
    s_mul_i32 s10, s66, {112*1024}
    s_mul_i32 s11, s11, {112*1024}
    s_add_u32 s48, s48, {hf}
    s_add_u32 s10, s10, s48
    s_add_u32 s11, s11, s48
    s_mul_i32 s12, s66, 28
    s_lshl_b32 s13, s67, 1
    s_add_u32 s12, s12, s13
    s_lshl_b32 s12, s12, 10
    s_lshl_b32 s56, s66, 12
    s_lshr_b32 s13, s67, 2
    s_lshl_b32 s13, s13, 10
    s_add_u32 s56, s56, s13
    s_bfe_u32 s13, s67, 0x10001
    s_lshl_b32 s13, s13, 9
    s_add_u32 s56, s56, s13
    s_and_b32 s13, s67, 1
    s_lshl_b32 s13, s13, 3
    s_add_u32 s56, s56, s13
    s_add_u32 s56, s56, {mk + ST_OFF}
    s_mov_b32 s13, {BUDGET}
    s_mov_b32 s61, 0xffff0000
    v_mov_b32 v{RES}, -1
    v_mov_b32 v{RES+1}, -1
    v_mov_b32 v{RES+2}, -1
    v_mov_b32 v{RES+3}, -1
    """)
    for g in range(4):
        k(f"""
        s_add_u32 s14, s45, {g}
        s_and_b32 s14, s14, 3
        s_mul_i32 s{52+g}, s14, {7168 if C["ROT"] else 0}
        """)
        if not C["ROT"]: k(f"s_mov_b32 s{52+g}, {7168*g}")
    if layer == 0:
        k(f"""
        s_lshl_b32 s14, s66, 5
        v_add_u32 v14, s14, v2
        v_mul_u32_u24 v14, 896, v14
        v_lshl_add_u32 v14, v3, 3, v14
        s_lshl_b32 s58, s67, 6
        """)
    if layer == 0 and C["CPF"] & 8:
        cpf_ld = code_pf(k, 20, 0, "mb_kernel", "mb_kernel_end", "pc2")
    k(f"""
    s_mov_b32 s14, {f2h(2.0**-60)}
    s_mov_b32 s15, {f2h(2.0**60)}
    """)

    def wdreg(u):
        return f"a[{64+4*u}:{67+4*u}]" if u < 48 else f"v[{216+4*(u-48)}:{219+4*(u-48)}]"

    def woreg(a, kk):
        i = a * 8 + kk
        return f"v[{152+4*i}:{155+4*i}]"

    pf = []
    for i in range(28):
        q = i & 3
        pre = ""
        if q == 0:
            pre = (f"s_add_u32 s57, s57, 16384\ns_cmp_eq_u32 s57, {7*16384}\ns_cselect_b32 s57, 0, s57\n" if i else "") \
                + "s_add_u32 m0, s63, s57\ns_add_u32 s48, s64, s57"
        pf.append((pre, f"buffer_load_dwordx4 v4, s[40:43], s48 offen offset:{q*1024} lds", ("w", 6)))
    for u in range(56):
        a, kbl = divmod(u, 28)
        g, c = divmod(kbl, 7)
        pre = f"s_add_u32 s48, s{62 if a == 0 else 65}, s{52+g}" if c == 0 else ("s_add_u32 s48, s48, 4096" if c == 4 else "")
        pf.append((pre, f"buffer_load_dwordx4 {wdreg(u)}, v4, s[68:71], s48 offen offset:{(c%4)*1024}", "wd"))
    for a in range(2):
        for kk in range(8):
            pre = f"s_add_u32 s48, s{46+a}, 4096" if kk == 4 else ""
            pf.append((pre, f"buffer_load_dwordx4 {woreg(a, kk)}, v4, s[68:71], s{46+a if kk < 4 else 48} offen offset:{(kk%4)*1024}", "wo"))
    fills = []
    if layer == 0 and C["CPF"] & 8:
        fills.append(("", cpf_ld, "cpf"))
    for ct in range(7):
        fills.append((f"s_add_u32 s44, s6, {ct*1024}", f"buffer_store_dwordx4 v[{RES}:{RES+3}], v4, s[40:43], s44 offen{SC}", "fill"))
    if layer == 0:
        for h in range(2):
            fills.append((f"s_add_u32 s44, s12, {X2F + h*1024}", f"buffer_store_dwordx4 v[{RES}:{RES+3}], v4, s[68:71], s44 offen{SC}", "fill"))
        resl = [("", f"buffer_load_dwordx2 v[{RES+2*q}:{RES+2*q+1}], v14, s[52:55], s58 offen offset:{q*16}", "res") for q in range(4)]
    else:
        resl = [(f"s_add_u32 s44, s12, {X2F}" if h == 0 else "", f"buffer_load_dwordx4 v[{RES+4*h}:{RES+4*h+3}], v4, s[68:71], s44 offen offset:{h*1024}", "res") for h in range(2)]
    staged = [None]

    def hstore(V, text, tag, bit):
        if V: V.issue(text + SC, tag)
        else: k(text + SC)
        if C["DUAL"] >> bit & 1:
            if V: V.issue(text, tag)
            else: k(text)
            return 2
        return 0

    def prep():
        if pf and pf[0][0]:
            k(pf[0][0]); pf[0] = ("",) + pf[0][1:]

    def side(lst):
        if not lst: return
        p, ins, tag = lst.pop(0)
        k(p); vm.issue(ins, tag)

    def lds_wr(jj):
        o = O + 16 * jj
        return [f"ds_write_b128 v{5+jj}, v[{o+4*q}:{o+4*q+3}] offset:{q*1024}" for q in range(4)]

    prep()
    need_qk(0)
    stamp_mid(k, 1)
    k(qk(0, 0))
    ld_kv(2, (0, 1))
    k(qk(0, 1))
    vm.issue(f"buffer_load_dwordx4 a[40:43], v4, s[40:43], s9 offen offset:2048", ("v", 2))
    vm.issue(f"buffer_load_dwordx4 a[44:47], v4, s[40:43], s9 offen offset:3072", ("v", 2))
    k("s_nop 7")
    n = len(steps)
    for s in range(n):
        t, jj = steps[s]
        S = Sb[s & 1]
        e = lambda i: f"v_exp_f32 v{S+i}, v{S+i}"
        c = lambda d: f"v_cvt_pk_bf16_f32 v{P+d}, v{S+2*d}, v{S+2*d+1}"
        if s + 1 < n:
            need_qk(s + 1)
            k(qk(s + 1, 0))
        if t + 3 < 16:
            ld_kv(t + 3, ((s & 3),))
        else:
            side(pf)
        for i in range(4): k(e(i))
        if s > 0:
            k(pv(s - 1, 1))
        side(pf)
        for i in range(4, 8): k(e(i))
        if s + 1 < n:
            k(qk(s + 1, 1))
        prep()
        for d in range(4): k(c(d))
        for i in range(8, 11): k(e(i))
        vm.wait(("v", t))
        k(pv(s, 0))
        if fills and s % C["FE"] == 0:
            side(fills)
        elif s & 1:
            side(pf)
        extra = []
        if t == 15 and s & 3 >= 2:
            extra = lds_wr(order[(s & 3) - 2])
        if s == n - 1:
            extra = extra + lds_wr(3)
        for i in range(11, 16):
            k(e(i))
            if extra: k(extra.pop(0))
        for d in range(4, 8):
            k(c(d))
            if extra: k(extra.pop(0))
    assert not pf and not fills, (len(pf), len(fills))
    stamp_mid(k, 2)
    k(pv(n - 1, 1))
    if layer == 0:
        srd(k, 44, P_X, XBYTES)
        resl = [(p, i.replace("s[52:55]", "s[44:47]"), t) for p, i, t in resl]
    while resl: side(resl)
    k("s_waitcnt lgkmcnt(0)\ns_barrier")
    stamp_mid(k, 3)
    R = 64
    for j in range(3):
        for q in range(4):
            r = R + 16 * j + 4 * q
            k(f"ds_read_b128 v[{r}:{r+3}], v5 offset:{j*4096+q*1024}")
    for j in range(3):
        k(f"s_waitcnt lgkmcnt({8-4*j})")
        for r in ([12] + [x for x in range(0, 16, 2) if x != 12] if j == 2 else range(0, 16, 2)):
            k(f"v_pk_add_f32 v[{O+r}:{O+r+1}], v[{O+r}:{O+r+1}], v[{R+16*j+r}:{R+16*j+r+1}]")
            if j == 2 and r == 12:
                k(f"v_mov_b32 v9, v{O+12}\nv_mov_b32 v8, v{O+12}")
            if j == 2 and r == 2:
                k("v_permlane32_swap_b32 v9, v8")
            if j == 2 and r == 4:
                k("v_rcp_f32 v9, v8\nv_cmp_nle_f32 vcc, s14, v8\nv_cmp_nge_f32 s[46:47], s15, v8")
            if j == 2 and r == 10:
                k("s_or_b64 vcc, vcc, s[46:47]")
    FB, NORM = k.name + "_fb", k.name + "_norm"
    k(f"""
    s_cbranch_vccnz {FB}
    {NORM}:
    """)
    for h in range(2):
        for r in range(8 * h, 8 * h + 8, 2):
            k(f"v_pk_mul_f32 v[{O+r}:{O+r+1}], v[{O+r}:{O+r+1}], v[8:9] op_sel:[0,1] op_sel_hi:[1,1]")
        for d in range(4 * h, 4 * h + 4):
            k(f"v_cvt_pk_bf16_f32 v{P+d}, v{O+2*d}, v{O+2*d+1}")
        hstore(vm, f"buffer_store_dwordx4 v[{P+4*h}:{P+4*h+3}], v13, s[40:43], s49 offen offset:{h*1024}", "ost", 0)
    stamp_mid(k, 4)
    stubs = []

    def chk_ops(regs):
        o = []
        for i, r in enumerate(regs):
            kind, b = r[0], int(r[2:r.index(":")])
            if kind == "a":
                o += [f"v_accvgpr_read_b32 v2, a{b}", f"v_accvgpr_read_b32 v7, a{b+2}"]
                p, q = "v2", "v7"
            else:
                p, q = f"v{b}", f"v{b+2}"
            o.append(f"v_max_u32 v3, {p}, {q}" if i == 0 else f"v_max3_u32 v3, {p}, {q}, v3")
        o.append("v_cmp_eq_u32 vcc, -1, v3")
        return o

    def ld_text(d, sreg, imm):
        t = f"buffer_load_dwordx4 {d['reg']}, v4, s[{d['srd']}:{d['srd']+3}], s{sreg} offen offset:{imm}{SC}"
        return t

    def base_add(d, sreg):
        if d.get("blk") is None:
            return f"s_add_u32 s{sreg}, s{d['base']}, {d['off']}"
        t = f"s_add_u32 s{sreg}, s{d['base']}, s{52+d['blk']}"
        return t + (f"\ns_add_u32 s{sreg}, s{sreg}, {d['off']}" if d["off"] else "")

    def spin(lb, ds, back, inline=False, more=()):
        mk_ = "" if inline else " ; retry"
        k(f"{lb}:")
        prev = None
        for d in list(ds) + list(more):
            if prev and prev[0] == (d["base"], d.get("blk")) and prev[1] <= d["off"] <= prev[1] + 3072:
                imm = d["off"] - prev[1]
            else:
                k(base_add(d, 15)); prev = ((d["base"], d.get("blk")), d["off"]); imm = 0
            if d.get("lo"): k("s_mov_b32 exec_hi, 0")
            k(ld_text(d, 15, imm) + mk_)
            if d.get("lo"): k("s_mov_b32 exec_hi, -1")
        k(f"s_sub_i32 s13, s13, 1\ns_cmp_lt_i32 s13, 0\ns_waitcnt vmcnt({len(more)}){mk_}")
        for o in chk_ops([d["reg"] for d in ds]): k(o + mk_)
        k(f"s_cbranch_scc1 {back}{mk_}\ns_cbranch_vccnz {lb}{mk_}")

    def chk_branch(ds):
        lb = k.newlabel("st")
        k(f"s_cbranch_vccnz {lb}\n{lb}_b:")
        stubs.append((lb, ds))

    def reduce3(A, R, rb, extra=None):
        k("s_waitcnt lgkmcnt(0)\ns_barrier")
        if extra: extra(0)
        for j in range(3):
            for q in range(4):
                r = R + 16 * j + 4 * q
                k(f"ds_read_b128 v[{r}:{r+3}], v{rb} offset:{j*4096+q*1024}")
        if extra: extra(1)
        for j in range(3):
            k(f"s_waitcnt lgkmcnt({8-4*j})")
            for r in range(0, 16, 2):
                k(f"v_pk_add_f32 v[{A+r}:{A+r+1}], v[{A+r}:{A+r+1}], v[{R+16*j+r}:{R+16*j+r+1}]")

    def mark_next(first, cnt):
        k(f"""
        s_lshr_b32 s9, s4, 3
        s_lshl_b32 s9, s9, 2
        s_add_u32 s9, s9, s3
        s_lshl_b32 s9, s9, 15
        s_add_u32 s9, s9, {MK1 + first*1024}
        v_mov_b32 v16, -1
        v_mov_b32 v17, -1
        v_mov_b32 v18, -1
        v_mov_b32 v19, -1
        """)
        for i in range(cnt):
            if i and i % 4 == 0: k("s_add_u32 s9, s9, 4096")
            k(f"buffer_store_dwordx4 v[16:19], v4, s[40:43], s9 offen offset:{(i%4)*1024}{SC}")

    NOR1, XJOIN = k.name + "_nor1", k.name + "_xjoin"
    AO = [80, 96, 112, 128]
    k(f"s_barrier\ns_cmp_eq_u32 s70, 0\ns_cbranch_scc1 {NOR1}")
    vm.wait("res")
    for d in range(8):
        k(f"v_lshlrev_b32 v{AO[0]+2*d}, 16, v{RES+d}")
        k(f"v_and_b32 v{AO[0]+2*d+1}, s61, v{RES+d}")

    def o_d(b, kk):
        i = 2 * kk + b
        return dict(reg=f"v[{16+4*i}:{19+4*i}]", srd=40, base=50 + b, off=kk * 1024)
    vm.wait("ost")
    stamp_mid(k, 5)
    pl = k.newlabel("pr")
    od = [[o_d(b, kk) for b in range(2) for kk in range(4 * hh, 4 * hh + 4)] for hh in range(2)]
    spin(pl, od[0], pl + "_b", True, od[1])
    k(f"{pl}_b:")
    stamp_mid(k, 6)
    seq = []
    for kk in range(5): seq += [(s, kk) for s in (0, 1, 2, 3)]
    for kk in range(5, 8): seq += [(s, kk) for s in (1, 2, 3)]
    seq += [(0, kk) for kk in range(5, 8)]
    for idx, (slot, kk) in enumerate(seq):
        if idx == 11:
            k("s_waitcnt vmcnt(0)")
        if 11 <= idx <= 13:
            for o in chk_ops([d["reg"] for d in od[1]])[3 * (idx - 11): 3 * (idx - 11) + 3]: k(o)
        if idx == 16:
            chk_branch(od[1])
        a = AO[slot]
        c = "0" if (kk == 0 and slot) else f"v[{a}:{a+15}]"
        k(f"{MF} v[{a}:{a+15}], {woreg(slot & 1, kk)}, {o_d(slot >> 1, kk)['reg']}, {c}")
        if idx >= 29:
            s = idx - 28
            for q in range(4):
                k(f"ds_write_b128 v{9+s}, v[{AO[s]+4*q}:{AO[s]+4*q+3}] offset:{q*1024}")
    vm.done = len(vm.tags)
    k(f"s_add_u32 s9, s12, {mk + X1_OFF}")
    reduce3(AO[0], 16, 5)
    for h in range(2):
        for d in range(4 * h, 4 * h + 4):
            k(f"v_cvt_pk_bf16_f32 v{RES+d}, v{AO[0]+2*d}, v{AO[0]+2*d+1}")
        hstore(vm, f"buffer_store_dwordx4 v[{RES+4*h}:{RES+4*h+3}], v4, s[40:43], s9 offen offset:{h*1024}", "xst", 1)
    pr = lambda i: f"v[{AO[0]+2*i}:{AO[0]+2*i+1}]"
    k(f"v_pk_add_f32 v[6:7], {pr(0)}, {pr(1)}")
    k(f"v_pk_mul_f32 v[8:9], {pr(0)}, {pr(0)}")
    k(f"v_pk_fma_f32 v[8:9], {pr(1)}, {pr(1)}, v[8:9]")
    for i in range(2, 8):
        k(f"v_pk_add_f32 v[6:7], v[6:7], {pr(i)}")
        k(f"v_pk_fma_f32 v[8:9], {pr(i)}, {pr(i)}, v[8:9]")
    k(f"""
    v_add_f32 v6, v6, v7
    v_add_f32 v7, v8, v9
    v_mov_b32 v8, v6
    v_mov_b32 v9, v7
    s_nop 0
    v_permlane32_swap_b32 v6, v8
    v_permlane32_swap_b32 v7, v9
    s_mov_b32 exec_hi, 0
    v_pk_add_f32 v[6:7], v[6:7], v[8:9]
    """)
    vm.issue(f"buffer_store_dwordx2 v[6:7], v4, s[40:43], s56 offen{SC}", "sst")
    k(f"s_mov_b32 exec_hi, -1\n{XJOIN}:\ns_barrier")
    stamp_mid(k, 7)
    w_next = [28]

    def ld_w():
        i = w_next[0]; w_next[0] += 1
        G, q = i >> 2, i & 3
        if q == 0:
            off = (16 * G + 48) % NS - 48
            k(f"s_{'add' if off >= 0 else 'sub'}_u32 m0, s63, {abs(off)*1024}\ns_add_u32 s48, s64, {16*G*1024}")
        vm.issue(f"buffer_load_dwordx4 v4, s[40:43], s48 offen offset:{q*1024} lds", ("w", G))
        return 2 + 2 * (q == 0)
    for _ in range(C['W_PRE']): ld_w()
    A4, WR, HP, MB, R2 = 16, 128, 160, 168, 172
    k(f"""
    v_add_u32 v5, 0x10000, v4
    v_add_u32 v6, 0x20000, v4
    v_mov_b32 v{HP+12}, 0
    v_mov_b32 v{HP+13}, 0
    v_mov_b32 v{HP+14}, 0
    v_mov_b32 v{HP+15}, 0
    """)
    R5B = 96 * 1024
    if layer == 0:
        k(f"""
        s_mul_i32 s50, s67, {28*1024}
        s_xor_b32 s51, s67, 1
        s_mul_i32 s51, s51, {28*1024}
        s_mul_i32 s15, s3, {7*1024}
        s_add_u32 s15, s15, {WQF}
        s_add_u32 s50, s50, s15
        s_add_u32 s51, s51, s15
        s_lshl_b32 s60, s67, 7
        s_add_u32 s60, s60, {CSQ}
        s_mul_i32 s59, s3, {14*1024}
        s_cmp_eq_u32 s3, 3
        s_cselect_b32 s59, {144*1024}, s59
        """)
    cur = {}

    def stream_ld(d, tag):
        t = d["tmp"]
        c = cur.get(t)
        n = 2
        key = (d["base"], d.get("blk"))
        if not (c and c[0] == key and c[1] <= d["off"] <= c[1] + 3072):
            x = base_add(d, t)
            k(x); n += x.count("\n") + 1
            cur[t] = c = (key, d["off"])
        if d.get("lo"): k("s_mov_b32 exec_hi, 0")
        vm.issue(ld_text(d, t, d["off"] - c[1]), tag)
        if d.get("lo"): k("s_mov_b32 exec_hi, -1"); n += 2
        return n

    lg = LG()
    NR, RA = 8, 6
    A5 = [64, 96, 80, 112]

    def xreg(kb):
        if kb == 28: return f"v[{MB}:{MB+3}]"
        i = KO.index(kb)
        if i < 10: return f"v[{176+4*i}:{179+4*i}]"
        if i < 12: return f"v[{8+4*(i-10)}:{11+4*(i-10)}]"
        return f"a[{4*(i-12)}:{4*(i-12)+3}]"

    def x_d(kb):
        return dict(reg=xreg(kb), srd=40, base=5, off=kb * 1024, tmp=44)

    kbo = [7 * g + c for g in range(4) for c in range(3)] + [7 * g + c for g in range(4) for c in (3, 4)] + [7 * g + c for g in range(4) for c in (5, 6)]
    p5 = []
    for i in range(4): p5 += [(0, i), (2, i)]
    for i in range(4): p5 += [(1, i), (3, i)]
    for i in range(4, 25):
        p5 += [(0, i), (2, i), (1, i), (3, i)]
    for i in (25, 26, 27):
        p5 += [(1, i), (2, i), (3, i)]
    p5 += [(0, 25), (0, 26), (0, 27)]
    assert len(p5) == 112
    NT = N4 + 112
    land = [(f"v[{16+4*i}:{19+4*i}]", 110) for i in range(12)] \
        + [(xreg(kb), 146 + 2 * kb) for kb in range(28)] + [(f"v[{128+4*i}:{131+4*i}]", N4) for i in range(8)] \
        + [(f"v[{16+4*i}:{19+4*i}]", N4 + 16) for i in range(8)]
    assert len(land) == 56
    h_use = {}
    for s, (slot, i) in enumerate(p5):
        h_use.setdefault(i, N4 + s)

    def h_d(hi):
        i, b = hi >> 1, hi & 1
        g, c = divmod(kbo[i], 7)
        return dict(reg=land[hi][0], srd=68, base=10 + b, blk=g, off=c * 1024, tmp=44 + b)

    st_d = [dict(reg=f"v[{HP+4*q}:{HP+4*q+3}]", srd=40, base=7, off=q * 1024, tmp=14, lo=(q == 3)) for q in range(4)]

    items = []
    LEAD = C["LEAD"]
    XB = 4 + C["X_BURST"]
    for i in range(XB, 28):
        items.append((3 * i - LEAD, -1, 3 * (i & ~1) - 5, (lambda i=i: stream_ld(x_d(KO[i]), ("x", i)))))
    for q in range(4):
        items.append((60 - LEAD, -1, 57, (lambda q=q: stream_ld(st_d[q], "st"))))
    bars = sorted(C["BARS"])
    assert 48 <= bars[0] and 152 <= bars[-1] <= 160 - RA
    assert len(bars) == 3 and bars[1] <= 112 - RA
    for i in range(w_next[0], 40):
        items.append((bars[1] - LEAD + i * 0.01, -1, bars[1] - 4, ld_w))
    for i in range(40, 52):
        items.append((bars[-1] - LEAD - 10 + i * 0.01, bars[0], bars[-1] - 4, ld_w))
    for hi in range(56):
        part = 0 if hi < 24 else (1 if hi < 40 else 2)
        items.append((h_use[hi >> 1] - LEAD, max(C["HT"][part], land[hi][1]), h_use[hi >> 1] - 5, (lambda hi=hi: stream_ld(h_d(hi), ("h", hi >> 1)))))
    CS = 160

    def p1b_prefetch(V):
        o = []
        for a in range(2):
            for kbl in range(7):
                def f(a=a, kbl=kbl):
                    if kbl % 4 == 0:
                        k(f"s_add_u32 m0, s59, {(a*7+kbl)*1024}\ns_add_u32 s48, s{50+a}, {kbl*1024}")
                    V.issue(f"buffer_load_dwordx4 v4, s[40:43], s48 offen offset:{(kbl%4)*1024} lds", "wq")
                    return 2 + 2 * (kbl % 4 == 0)
                o.append(f)
        return o

    def cs_prefetch(V):
        k(f"v_lshrrev_b32 v0, 5, v1\nv_lshlrev_b32 v0, 4, v0")
        for q in range(4):
            V.issue(f"buffer_load_dwordx4 v[{CS+4*q}:{CS+4*q+3}], v0, s[40:43], s60 offen offset:{q*32}", "wq")
        return 10
    if layer == 0:
        for f in p1b_prefetch(vm):
            items.append((NT + 10, bars[-1], NT + 10, f))
        items.append((NT + 11, N4 + 10, NT + 11, lambda: cs_prefetch(vm)))
    items.sort(key=lambda t: t[0])
    queue = list(items)

    def issue_next(n):
        for idx, it in enumerate(queue):
            if it[1] <= n:
                queue.pop(idx); return it[3]()
        return 0

    def force(n):
        c = 0
        while any(it[2] <= n for it in queue):
            c += issue_next(n)
        return c

    def rd(f):
        slot = ((f + 48) % NS) * 1024
        base = [4, 5, 6][slot >> 16]
        r = WR + 4 * (f % NR)
        lg.issue(("w", f))
        k(f"ds_read_b128 v[{r}:{r+3}], v{base} offset:{slot & 0xffff}")

    fill = []
    vfill = []

    def epi_ops(ct, V, gaps=3):
        a = A4 + 16 * ct
        hp = HP + 4 * (ct & 1)
        o = ["GAP"] * gaps
        for r in range(0, 8, 2):
            o.append(f"v_pk_mul_f32 v[{a+r}:{a+r+1}], v[{a+r}:{a+r+1}], v[{a+8+r}:{a+9+r}]")
        for r in range(0, 8, 2):
            o.append(f"v_pk_mul_f32 v[{a+r}:{a+r+1}], v[{a+r}:{a+r+1}], v[{R2}:{R2+1}]")
        for d in range(4):
            o.append(f"v_cvt_pk_bf16_f32 v{hp+d}, v{a+2*d}, v{a+2*d+1}")

        def st():
            k(f"s_add_u32 s14, s6, {ct*1024}")
            cur.pop(14, None)
            return 3 + hstore(V, f"buffer_store_dwordx4 v[{hp}:{hp+3}], v4, s[40:43], s14 offen", ("hst", ct), 2)
        o.append(st)
        return o

    def run(lst, room):
        used = 0
        while lst and used < room:
            f = lst.pop(0)
            if f == "GAP":
                break
            if callable(f): used += f() or 0
            else:
                k(f); used += f.count("\n") + 1
        return used

    def add_val(tag, ds):
        def w():
            s_ = vm.waitstr(tag)
            if s_: k(s_)
            return 1 if s_ else 0

        def b():
            chk_branch(ds); done_val.add(tag); return 1
        vfill.extend([w] + chk_ops([d["reg"] for d in ds]) + ["GAP", b])

    T0 = HP + 4
    stat_ops = [f"v_pk_add_f32 v[{HP+4*q}:{HP+4*q+1}], v[{HP+4*q}:{HP+4*q+1}], v[{HP+4*q+2}:{HP+4*q+3}]" for q in range(4)] + [
        f"v_pk_add_f32 v[{HP}:{HP+1}], v[{HP}:{HP+1}], v[{HP+4}:{HP+5}]",
        f"v_pk_add_f32 v[{HP+8}:{HP+9}], v[{HP+8}:{HP+9}], v[{HP+12}:{HP+13}]",
        f"v_pk_add_f32 v[{HP}:{HP+1}], v[{HP}:{HP+1}], v[{HP+8}:{HP+9}]",
        f"v_mov_b32 v{T0}, v{HP}", f"v_mov_b32 v{T0+1}, v{HP+1}", "GAP",
        f"v_permlane32_swap_b32 v{HP}, v{T0}", f"v_permlane32_swap_b32 v{HP+1}, v{T0+1}",
        f"v_pk_add_f32 v[{HP}:{HP+1}], v[{HP}:{HP+1}], v[{T0}:{T0+1}]",
        f"v_mul_f32 v{HP}, {f2h(-1.0/448)}, v{HP}",
        f"v_mul_f32 v{HP+1}, {f2h(1.0/448)}, v{HP+1}",
        f"v_fma_f32 v{HP+1}, -v{HP}, v{HP}, v{HP+1}",
        f"v_max_f32 v{HP+1}, 0, v{HP+1}",
        f"v_add_f32 v{HP+1}, {f2h(1e-5)}, v{HP+1}",
        f"v_rcp_f32 v{R2}, v{HP+1}",
        f"v_cvt_pk_bf16_f32 v{MB}, v{HP}, v{HP}",
        f"v_lshlrev_b32 v{T0}, 16, v{MB}",
        f"v_sub_f32 v{T0}, v{HP}, v{T0}",
        f"v_mov_b32 v{R2+1}, v{R2}",
        f"s_mov_b32 exec_lo, 0\nv_cvt_pk_bf16_f32 v{MB}, v{T0}, v{T0}\ns_mov_b32 exec_lo, -1",
        f"v_mov_b32 v{MB+1}, v{MB}", f"v_mov_b32 v{MB+2}, v{MB}", f"v_mov_b32 v{MB+3}, v{MB}",
    ]

    vm.wait("xst")
    stamp_mid(k, 9)
    pl = k.newlabel("pr")
    for f in range(RA): rd(f)
    spin(pl, [x_d(kb) for kb in KO[:4]], pl + "_b", True, [x_d(kb) for kb in KO[4:XB]])
    k(f"{pl}_b:")
    vm.done = len(vm.tags)
    for i in range(4, XB): vm.tags.append(("x", i))
    stamp_mid(k, 8)
    nxt = 0; pi = [0]
    NOROLE = k.name + "_norole"
    P1B = k.name + "_p1b"
    val = {}
    for i in range(4, 28, 2):
        val.setdefault(3 * i - (4 if i < 12 else 5), []).append((("x", i + 1), [x_d(KO[i]), x_d(KO[i + 1])]))
    for i in range(28):
        val.setdefault(h_use[i] - (5 if land[2 * i][0][0] == "a" or land[2 * i + 1][0][0] == "a" else 4), []).append((("h", i), [h_d(2 * i), h_d(2 * i + 1)]))
    val.setdefault(58, []).append(("st", st_d))
    done_val = set(("x", i) for i in range(4))
    for n in range(NT):
        if n in SS: common.stamp_mid(k, [i for i in range(1, 20) if i != 8][list(SS).index(n)])
        used = force(n)
        if n in bars:
            if n == bars[1]: vm.wait(("w", 9))
            if n == bars[-1]: vm.wait(("w", 12))
            k("s_barrier"); used += 2
        if n + RA < N4:
            rd(n + RA); used += 1
        for v in val.get(n, []): add_val(*v)
        used += run(vfill, 3)
        if "st" in done_val and stat_ops:
            fill.extend(stat_ops); stat_chk = stat_ops; stat_ops = None
        if n < N4:
            ct, kb = p4_fk(n)
            if n % 2 == 0:
                w = lg.waitstr(("w", min(n + 1, N4 - 1)))
                if w: k(w); used += 1
            r = WR + 4 * (n % NR)
            a = A4 + 16 * ct
            first = (kb == KO[0]) if ct < 3 else (kb == 0)
            if kb < 28: assert ("x", KO.index(kb) | 1) in done_val, n
            else: assert stat_ops is None and not any(o in stat_chk for o in fill if isinstance(o, str) and o != "GAP")
            c = "0" if first else f"v[{a}:{a+15}]"
            k(f"{MF} v[{a}:{a+15}], v[{r}:{r+3}], {xreg(kb)}, {c}")
            if n == 86: stamp_mid(k, 10)
            if n == 144: stamp_mid(k, 11)
            if kb == 28 and ct != 5:
                if ct == 6:
                    fill.extend(epi_ops(5, vm, gaps=1) + epi_ops(6, vm, gaps=0))
                else:
                    fill.extend(epi_ops(ct, vm, gaps=3 if ct in (0, 3) else 0))
            if n == 150:
                for d in range(8):
                    fill.append(f"v_lshlrev_b32 v{A5[0]+2*d}, 16, v{RES+d}")
                    fill.append(f"v_and_b32 v{A5[0]+2*d+1}, s61, v{RES+d}")
        else:
            slot, i = p5[n - N4]
            hi = 2 * i + (slot >> 1)
            u = (slot & 1) * 28 + kbo[i]
            assert ("h", i) in done_val, n
            a = A5[slot]
            c = "0" if (i == 0 and slot != 0) else f"v[{a}:{a+15}]"
            if n - N4 == 8:
                assert not fill
            k(f"{MF} v[{a}:{a+15}], {wdreg(u)}, {land[hi][0]}, {c}")
            if n == N4 + 48: stamp_mid(k, 13)
            if n == N4 + 80: stamp_mid(k, 14)
            if n == NT - 7:
                assert not vfill
                for s in range(1, 4):
                    k(f"""
                    s_xor_b32 s9, s3, {s}
                    s_mul_i32 s9, s9, {3*4096}
                    s_add_u32 s9, s9, {R5B + (s-1)*4096}
                    v_add_u32 v{4+s}, s9, v4
                    """)
                k(f"s_mul_i32 s9, s3, {3*4096}\ns_add_u32 s9, s9, {R5B}\nv_add_u32 v2, s9, v4")
            if n >= NT - 3:
                s = n - (NT - 3) + 1
                for q in range(4):
                    k(f"ds_write_b128 v{4+s}, v[{A5[s]+4*q}:{A5[s]+4*q+3}] offset:{q*1024}")
        if n == N4 - 1:
            stamp_mid(k, 12)
            k(f"s_cmp_eq_u32 s70, 0\ns_cbranch_scc1 {NOROLE}")
        if n >= nxt and queue and used <= C["BUD"] - 2:
            c = issue_next(n)
            if c:
                used += c
                pc = C["PACE"] if n < N4 else C["PACE5"]
                nxt = n + pc[pi[0] % len(pc)]; pi[0] += 1
        run(fill, C["BUD"] - used if not (N4 - 1 <= n < N4 + 8) else 5)
    assert not fill and not vfill
    while queue: issue_next(NT)
    stamp_mid(k, 16)
    if layer == 1:
        srd(k, 44, P_OUT, XBYTES)
        k(f"""
        v_and_b32 v7, 31, v1
        s_lshl_b32 s9, s66, 5
        v_add_u32 v7, s9, v7
        v_mul_u32_u24 v7, 896, v7
        v_lshrrev_b32 v3, 5, v1
        v_lshl_add_u32 v7, v3, 4, v7
        s_lshl_b32 s9, s67, 6
        """)
    reduce3(A5[0], 16, 2)
    PK = 8
    for d in range(8):
        k(f"v_cvt_pk_bf16_f32 v{PK+d}, v{A5[0]+2*d}, v{A5[0]+2*d+1}")
    dbg = f"s_sub_u32 s91, {BUDGET + 1}, s13\ns_add_u32 s91, s91, s92" if common.STAMP else ""
    if layer == 1:
        k(f"""
        v_permlane32_swap_b32 v{PK}, v{PK+2}
        v_permlane32_swap_b32 v{PK+1}, v{PK+3}
        v_permlane32_swap_b32 v{PK+4}, v{PK+6}
        v_permlane32_swap_b32 v{PK+5}, v{PK+7}
        buffer_store_dwordx4 v[{PK}:{PK+3}], v7, s[44:47], s9 offen
        buffer_store_dwordx4 v[{PK+4}:{PK+7}], v7, s[44:47], s9 offen offset:32
        {dbg}
        s_endpgm
        """)
    else:
        k(f"s_add_u32 s9, s12, {X2F}")
        for h in range(2):
            hstore(None, f"buffer_store_dwordx4 v[{PK+4*h}:{PK+4*h+3}], v4, s[40:43], s9 offen offset:{h*1024}", None, 3)
        stamp_mid(k, 17)
        RB, SB_ = 48 * 1024, 42 * 1024
        k(f"""
        {P1B}:
        s_mul_i32 s10, s66, {28*1024}
        s_xor_b32 s11, s66, 1
        s_mul_i32 s11, s11, {28*1024}
        s_mul_i32 s9, s3, {7*1024}
        s_add_u32 s9, s9, {X2F}
        s_add_u32 s10, s10, s9
        s_add_u32 s11, s11, s9
        v_add_u32 v13, s59, v4
        s_lshr_b32 s4, s66, 1
        s_and_b32 s12, s66, 1
        s_lshr_b32 s5, s67, 1
        s_mov_b32 s48, s13
        s_and_b32 s13, s67, 1
        v_and_b32 v2, 31, v1
        s_mov_b32 s14, 0x3f803f80
        """)
        qkv_setup(k, KVF1)
        k("s_mov_b32 s13, s48")
        for s in range(1, 4):
            k(f"""
            s_xor_b32 s9, s3, {s}
            s_mul_i32 s9, s9, {3*4096}
            s_add_u32 s9, s9, {(s-1)*4096}
            s_add_u32 s8, s9, {RB}
            v_add_u32 v{4+s}, s8, v4
            s_lshr_b32 s9, s9, 3
            s_add_u32 s9, s9, {SB_}
            v_lshl_add_u32 v{8+s}, v1, 3, s9
            """)
        k(f"s_mul_i32 s9, s3, {3*4096}\ns_add_u32 s8, s9, {RB}\nv_add_u32 v12, s8, v4\ns_lshr_b32 s9, s9, 3\ns_add_u32 s9, s9, {SB_}\nv_lshl_add_u32 v8, v1, 3, s9")
        k("s_waitcnt vmcnt(0)")
        for i in range(14):
            k(f"ds_read_b128 a[{4*i}:{4*i+3}], v13 offset:{i*1024}")
        k("v_lshrrev_b32 v13, 5, v1")
        ko2 = [0, 2, 4, 6, 1, 3, 5]

        def x2_d(b, kbl):
            i = 2 * kbl + b
            return dict(reg=f"v[{176+4*i}:{179+4*i}]", srd=40, base=10 + b, off=kbl * 1024)
        pl = k.newlabel("pr")
        d8 = [x2_d(b, kbl) for b in range(2) for kbl in ko2[:4]]
        d6 = [x2_d(b, kbl) for b in range(2) for kbl in ko2[4:]]
        spin(pl, d8, pl + "_b", True, d6)
        k(f"{pl}_b:\ns_waitcnt lgkmcnt(0)")
        stamp_mid(k, 18)
        SS1 = 24
        dots = []
        for kbl in ko2:
            for b in range(2):
                r0 = 176 + 4 * (2 * kbl + b)
                for d in range(4):
                    fst = kbl == 0 and d == 0
                    dots.append((kbl, f"v_dot2_f32_bf16 v{SS1+2*b}, v{r0+d}, s14, {'0' if fst else 'v%d' % (SS1+2*b)}"))
                    dots.append((kbl, f"v_dot2_f32_bf16 v{SS1+2*b+1}, v{r0+d}, v{r0+d}, {'0' if fst else 'v%d' % (SS1+2*b+1)}"))
        seq = []
        for kbl in ko2[:4]:
            seq += [(s, kbl) for s in (0, 1, 2, 3)]
        for kbl in ko2[4:]:
            seq += [(s, kbl) for s in (1, 2, 3)]
        seq += [(0, kbl) for kbl in ko2[4:]]
        ok = set(ko2[:4])
        for idx, (slot, kbl) in enumerate(seq):
            if idx == 12:
                k("s_waitcnt vmcnt(0)")
                for o in chk_ops([d["reg"] for d in d6]): k(o)
            if idx == 14:
                chk_branch(d6)
                ok |= set(ko2[4:])
            u = (slot & 1) * 7 + kbl
            a = A5[slot]
            c = "0" if kbl == 0 else f"v[{a}:{a+15}]"
            k(f"{MF} v[{a}:{a+15}], a[{4*u}:{4*u+3}], {x2_d(slot >> 1, kbl)['reg']}, {c}")
            for _ in range(5 if (idx < 25 and idx != 11) else 0):
                if dots and dots[0][0] in ok: k(dots.pop(0)[1])
            if idx == 24:
                while dots: k(dots.pop(0)[1])
            if idx >= 25:
                s = idx - 24
                for q in range(4):
                    k(f"ds_write_b128 v{4+s}, v[{A5[s]+4*q}:{A5[s]+4*q+3}] offset:{q*1024}")
                k(f"ds_write_b64 v{8+s}, v[{SS1+2*(s>>1)}:{SS1+2*(s>>1)+1}]")
        stamp_mid(k, 15)

        def st_extra(ph):
            if ph == 0:
                for j in range(3):
                    k(f"ds_read_b64 v[{16+2*j}:{17+2*j}], v8 offset:{j*512}")
            else:
                k(f"""
                s_waitcnt lgkmcnt(12)
                v_pk_add_f32 v[16:17], v[16:17], v[18:19]
                v_pk_add_f32 v[{SS1}:{SS1+1}], v[{SS1}:{SS1+1}], v[20:21]
                v_pk_add_f32 v[30:31], v[16:17], v[{SS1}:{SS1+1}]
                v_mov_b32 v3, v13
                v_mov_b32 v16, v30
                v_mov_b32 v17, v31
                s_nop 0
                v_permlane32_swap_b32 v30, v16
                v_permlane32_swap_b32 v31, v17
                v_pk_add_f32 v[30:31], v[30:31], v[16:17]
                """)
                stats_finish(k, 30, 31)
        reduce3(A5[0], 176, 12, st_extra)
        qkv_epilogue(k, A5[0], CS)
        k(dbg)
        k("s_endpgm")
    k(f"{NOR1}:")
    if layer == 0: mark_next(0, 16)
    k(f"s_branch {XJOIN}")
    k(f"{NOROLE}:\ns_nop 15")
    V3 = VM(k)
    for f in epi_ops(5, V3, gaps=0) + epi_ops(6, V3, gaps=0):
        if callable(f): f()
        else: k(f)
    if layer == 0:
        k("s_waitcnt vmcnt(0)")
        for f in p1b_prefetch(V3): f()
        cs_prefetch(V3)
        mark_next(16, 16)
        k(f"s_barrier\ns_branch {P1B}")
    else:
        k("s_endpgm")
    for lb, ds in stubs:
        spin(lb, ds, lb + "_b")
        k(f"s_branch {lb}_b ; retry")
    KR = 64
    S = 80
    k(f"""
    {FB}:
    v_mov_b32 v14, 0xff800000
    s_mov_b32 s9, {kvf}
    {FB}_l1:
    buffer_load_dwordx4 v[{KR}:{KR+3}], v4, s[40:43], s9 offen
    buffer_load_dwordx4 v[{KR+4}:{KR+7}], v4, s[40:43], s9 offen offset:1024
    s_waitcnt vmcnt(0)
    {MF} v[{S}:{S+15}], v[{KR}:{KR+3}], v[{Q}:{Q+3}], 0
    {MF} v[{S}:{S+15}], v[{KR+4}:{KR+7}], v[{Q+4}:{Q+7}], v[{S}:{S+15}]
    """)
    for r in range(0, 16, 2):
        k(f"v_max3_f32 v14, v{S+r}, v{S+r+1}, v14")
    k(f"""
    s_add_u32 s9, s9, 4096
    s_cmp_lt_u32 s9, {kvf + 64*4096}
    s_cbranch_scc1 {FB}_l1
    v_mov_b32 v8, v14
    s_nop 1
    v_permlane32_swap_b32 v14, v8
    v_max_f32 v14, v14, v8
    """)
    for r in range(16):
        k(f"v_mov_b32 v{O+r}, 0")
    k(f"""
    s_mov_b32 s9, {kvf}
    {FB}_l2:
    buffer_load_dwordx4 v[{KR}:{KR+3}], v4, s[40:43], s9 offen
    buffer_load_dwordx4 v[{KR+4}:{KR+7}], v4, s[40:43], s9 offen offset:1024
    buffer_load_dwordx4 v[{KR+8}:{KR+11}], v4, s[40:43], s9 offen offset:2048
    buffer_load_dwordx4 v[{KR+12}:{KR+15}], v4, s[40:43], s9 offen offset:3072
    s_waitcnt vmcnt(0)
    {MF} v[{S}:{S+15}], v[{KR}:{KR+3}], v[{Q}:{Q+3}], 0
    {MF} v[{S}:{S+15}], v[{KR+4}:{KR+7}], v[{Q+4}:{Q+7}], v[{S}:{S+15}]
    """)
    for r in range(16):
        k(f"v_sub_f32 v{S+r}, v{S+r}, v14")
    for r in range(16):
        k(f"v_exp_f32 v{S+r}, v{S+r}")
    for d in range(8):
        k(f"v_cvt_pk_bf16_f32 v{P+d}, v{S+2*d}, v{S+2*d+1}")
    k(f"""
    {MF} v[{O}:{O+15}], v[{KR+8}:{KR+11}], v[{P}:{P+3}], v[{O}:{O+15}]
    {MF} v[{O}:{O+15}], v[{KR+12}:{KR+15}], v[{P+4}:{P+7}], v[{O}:{O+15}]
    s_add_u32 s9, s9, 4096
    s_cmp_lt_u32 s9, {kvf + 64*4096}
    s_nop 7
    s_cbranch_scc1 {FB}_l2
    s_nop 7
    v_mov_b32 v9, v{O+12}
    v_mov_b32 v8, v{O+12}
    s_nop 1
    v_permlane32_swap_b32 v9, v8
    v_rcp_f32 v9, v8
    s_nop 1
    s_branch {NORM}
    """)
    epilogue(k)
    return k, dict(grid=256, block=256, lds=LDS)
```

```python
from common import *
import struct, math


def f2h(x):
    return "0x%08x" % struct.unpack("<I", struct.pack("<f", x))[0]


QSCALE = (28 ** -0.5) * math.log2(math.e)
MF = "v_mfma_f32_32x32x16_bf16"


def stats_finish(k, s1, s2):
    k(f"""
    v_mul_f32 v{s1}, {f2h(1.0/448)}, v{s1}
    v_mul_f32 v{s2}, {f2h(1.0/448)}, v{s2}
    v_fma_f32 v{s2}, -v{s1}, v{s1}, v{s2}
    v_max_f32 v{s2}, 0, v{s2}
    v_add_f32 v{s2}, {f2h(1e-5)}, v{s2}
    v_rsq_f32 v{s2}, v{s2}
    """)


def qkv_setup(k, kvf=KVF):
    k(f"""
    s_lshl_b32 s6, s4, 1
    s_add_u32 s6, s6, s12
    s_lshl_b32 s7, s5, 1
    s_add_u32 s62, s7, s13
    s_lshl_b32 s8, s6, 4
    s_add_u32 s8, s8, s62
    s_lshl_b32 s8, s8, 11
    s_add_u32 s60, s8, {QF}
    v_lshlrev_b32 v50, 4, v1
    s_lshl_b32 s9, s6, 12
    s_add_u32 s9, s9, {kvf}
    s_and_b32 s6, s62, 7
    s_lshr_b32 s7, s6, 2
    s_lshl_b32 s7, s7, 10
    s_and_b32 s8, s6, 1
    s_lshl_b32 s8, s8, 9
    s_add_u32 s7, s7, s8
    s_and_b32 s8, s6, 2
    s_lshl_b32 s8, s8, 2
    s_add_u32 s7, s7, s8
    s_lshl_b32 s8, s6, 6
    s_add_u32 s8, s8, 2048
    s_cmp_ge_u32 s62, 8
    s_cselect_b32 s7, s8, s7
    s_cselect_b64 vcc, -1, 0
    s_add_u32 s61, s9, s7
    v_lshrrev_b32 v51, 4, v2
    v_lshlrev_b32 v51, 10, v51
    v_bfe_u32 v52, v2, 2, 1
    v_lshl_add_u32 v51, v52, 9, v51
    v_and_b32 v52, 3, v2
    v_lshl_add_u32 v51, v52, 1, v51
    v_bfe_u32 v52, v2, 3, 1
    v_lshl_add_u32 v51, v52, 3, v51
    v_lshlrev_b32 v52, 4, v2
    v_cndmask_b32 v51, v52, v51, vcc
    """)


def qkv_epilogue(k, ACC, CS, sfx=''):
    k(f"""
    v_mul_f32 v36, {f2h(QSCALE)}, v31
    v_cmp_eq_u32 vcc, 1, v3
    v_sub_f32 v30, 0, v30
    v_cndmask_b32 v37, v36, v31, vcc
    """)
    for r in range(16):
        k(f"v_fmac_f32 v{ACC+r}, v30, v{CS+r}")
    for r in range(16):
        k(f"v_mul_f32 v{ACC+r}, v{36 if r < 12 else 37}, v{ACC+r}")
    PKD = 40
    for d in range(8):
        k(f"v_cvt_pk_bf16_f32 v{PKD+d}, v{ACC+2*d}, v{ACC+2*d+1}")
    k(f"""
    buffer_store_dwordx4 v[{PKD}:{PKD+3}], v50, s[40:43], s60 offen
    buffer_store_dwordx4 v[{PKD+4}:{PKD+7}], v50, s[40:43], s60 offen offset:1024
    s_and_b32 s10, s62, 7
    v_mov_b32 v48, v{PKD+6}
    v_mov_b32 v49, v{PKD+7}
    s_mov_b32 exec_lo, 0
    s_cmp_lg_u32 s10, 7
    s_cbranch_scc1 {k.name}_kv1{sfx}
    s_cmp_ge_u32 s62, 8
    s_cselect_b32 s10, 0x3f80, 0
    v_mov_b32 v48, s10
    v_mov_b32 v49, 0
    {k.name}_kv1{sfx}:
    s_cmp_ge_u32 s62, 8
    s_cbranch_scc1 {k.name}_v{sfx}
    buffer_store_dwordx2 v[48:49], v51, s[40:43], s61 offen
    s_branch {k.name}_kvd{sfx}
    {k.name}_v{sfx}:
    buffer_store_short v48, v51, s[40:43], s61 offen
    buffer_store_short_d16_hi v48, v51, s[40:43], s61 offen offset:16
    buffer_store_short v49, v51, s[40:43], s61 offen offset:32
    buffer_store_short_d16_hi v49, v51, s[40:43], s61 offen offset:48
    {k.name}_kvd{sfx}:
    s_mov_b64 exec, -1
    """)


def gen_p1a(name, MAP='H2', NF=(2, 4), PSC=' sc1', ND=5, KP=16, PREPOS=0, NTP=' nt', NTX='', NTW='', MKSC=' sc1'):
    import os
    DBG = os.environ.get("DBG2", "").split(",")
    k = Kernel(name)
    prologue(k, 256, (44, 63, None, "ma_kernel", "pc"))
    WB = 57344
    PB = WB + 512 * 128
    STB = PB + 28 * 1024
    LDS = STB + 512
    LN = k.name
    k("""
    s_bfe_u32 s4, s2, 0x20001
    s_lshl_b32 s4, s4, 3
    s_and_b32 s5, s2, 1
    s_add_u32 s4, s4, s5
    s_lshr_b32 s5, s2, 3
    s_and_b32 s6, s5, 3
    s_lshl_b32 s6, s6, 1
    s_add_u32 s4, s4, s6
    """)
    k(f"""
    s_lshr_b32 s5, s5, 2
    v_and_b32 v2, 31, v1
    v_lshrrev_b32 v3, 5, v1
    v_lshrrev_b32 v4, 3, v1
    v_and_b32 v5, 7, v1
    v_lshrrev_b32 v6, 4, v1
    v_lshlrev_b32 v50, 4, v1
    """)
    k(f"""
    s_lshl_b32 s6, s4, 6
    s_lshl_b32 s7, s3, 4
    s_add_u32 s6, s6, s7
    v_add_u32 v7, s6, v4
    v_mul_u32_u24 v7, 896, v7
    v_xor_b32 v8, v5, v6
    v_lshl_add_u32 v8, v8, 4, v7
    v_xor_b32 v9, v5, v6
    v_xor_b32 v9, 4, v9
    v_lshl_add_u32 v9, v9, 4, v7
    v_add_u32 v9, {8*896}, v9
    """)
    k(f"""
    s_mul_i32 s6, s5, 112
    s_mul_i32 s7, s3, {8*896}
    s_add_u32 s6, s6, s7
    v_mul_u32_u24 v10, 896, v4
    v_lshl_add_u32 v10, v5, 4, v10
    v_add_u32 v10, s6, v10
    """)
    k(f"""
    s_lshl_b32 s6, s3, 6
    v_add_u32 v11, s6, v1
    v_lshlrev_b32 v12, 7, v11
    v_add_u32 v12, {WB+112}, v12
    v_mul_u32_u24 v11, 56, v11
    s_and_b32 s7, s5, 3
    s_lshl_b32 s7, s7, 4
    v_add_u32 v11, s7, v11
    v_add_u32 v14, {256*56}, v11
    s_lshl_b32 s9, s3, 11
    s_lshl_b32 s10, s3, 10
    s_add_u32 s10, s10, {WB}
    s_and_b32 s6, s2, 7
    s_lshl_b32 s7, s5, 3
    s_add_u32 s6, s6, s7
    s_lshl_b32 s6, s6, 2
    s_add_u32 s6, s6, s3
    s_lshl_b32 s6, s6, 14
    s_add_u32 s15, s6, {MK0}
    s_cmp_eq_u32 s5, 7
    s_cselect_b32 s69, 0, s5
    s_lshl_b32 s69, s69, 13
    s_bfe_u32 s70, s2, 0x20003
    s_mul_i32 s70, s70, 7
    s_lshr_b32 s70, s70, 1
    s_lshl_b32 s70, s70, 12
    v_mov_b32 v56, -1
    v_mov_b32 v57, -1
    v_mov_b32 v58, -1
    v_mov_b32 v59, -1
    """)
    k("s_waitcnt lgkmcnt(0)")
    stamp_mid(k, 0)
    vm = VM(k)
    srd(k, S_WS, P_WS, WS_USED)
    srd(k, 44, P_X, XBYTES)
    srd(k, 48, P_WQ, D * D * 2)

    def ldx(cnt):
        for _ in range(cnt):
            k("s_add_u32 m0, s9, s69\ns_lshr_b32 s11, s69, 6")
            vm.issue(f"buffer_load_dwordx4 v8, s[44:47], s11 offen{NTX} lds", "x")
            k("s_add_u32 m0, m0, 1024\ns_add_u32 s69, s69, 8192")
            vm.issue(f"buffer_load_dwordx4 v9, s[44:47], s11 offen{NTX} lds", "x")
            k("s_cmp_eq_u32 s69, 57344\ns_cselect_b32 s69, 0, s69")

    def ldw(cnt):
        k("s_mov_b32 exec_lo, 0x7f7f7f7f\ns_mov_b32 exec_hi, 0x7f7f7f7f")
        for _ in range(cnt):
            k("s_add_u32 m0, s10, s70\ns_mul_i32 s11, s70, 7")
            vm.issue(f"buffer_load_dwordx4 v10, s[48:51], s11 offen{NTW} lds", "w")
            k("s_add_u32 s70, s70, 4096\ns_cmp_eq_u32 s70, 57344\ns_cselect_b32 s70, 0, s70")
        k("s_mov_b64 exec, -1")
    ldx(NF[0]); ldw(NF[1])
    k(f"""
    s_and_b32 s6, s2, 7
    s_bfe_u32 s7, s2, 0x20003
    s_mul_i32 s66, s5, 3
    s_add_u32 s66, s66, s7
    s_sub_u32 s66, s66, 1
    s_lshl_b32 s66, s66, 3
    s_add_u32 s66, s66, s6
    s_cmp_eq_u32 s7, 0
    s_cselect_b32 s66, 255, s66
    s_mov_b32 s59, 0x20000
    s_cmp_ge_u32 s66, 112
    s_cbranch_scc1 {LN}_u1
    s_mov_b32 s63, 0
    s_cmp_lt_u32 s3, 2
    s_cselect_b32 s56, s{P_WG}, s{P_WU}
    s_cselect_b32 s57, s{P_WG+1}, s{P_WU+1}
    s_mov_b32 s58, {D*F*2}
    s_mov_b32 s65, {F*2}
    s_and_b32 s6, s66, 3
    s_mul_i32 s6, s6, 112
    s_and_b32 s7, s3, 1
    s_mul_i32 s7, s7, 56
    s_add_u32 s6, s6, s7
    s_mul_i32 s64, s6, {F*2}
    s_lshr_b32 s67, s66, 2
    s_and_b32 s68, s66, 3
    s_branch {LN}_u9
    {LN}_u1:
    s_mov_b32 s65, {D*2}
    s_cmp_ge_u32 s66, 168
    s_cbranch_scc1 {LN}_u2
    s_mov_b32 s63, 1
    s_mov_b32 s56, s{P_WD}
    s_mov_b32 s57, s{P_WD+1}
    s_mov_b32 s58, {D*F*2}
    s_sub_u32 s6, s66, 112
    s_branch {LN}_u3
    {LN}_u2:
    s_mov_b32 s63, 2
    s_mov_b32 s56, s{P_WO}
    s_mov_b32 s57, s{P_WO+1}
    s_mov_b32 s58, {D*D*2}
    s_sub_u32 s6, s66, 168
    s_cmp_lt_u32 s66, 182
    s_cbranch_scc1 {LN}_u3
    s_mov_b32 s63, 3
    s_mov_b32 s58, 0
    s_mov_b32 s6, 0
    {LN}_u3:
    s_mul_i32 s68, s6, 9363
    s_lshr_b32 s68, s68, 16
    s_mul_i32 s7, s68, 7
    s_sub_u32 s67, s6, s7
    s_mul_i32 s6, s68, 224
    s_mul_i32 s7, s3, 56
    s_add_u32 s6, s6, s7
    s_mul_i32 s64, s6, {D*2}
    {LN}_u9:
    s_and_b32 s57, s57, 0xffff
    s_lshl_b32 s6, s67, 7
    s_add_u32 s64, s64, s6
    v_mul_lo_u32 v13, v4, s65
    v_lshl_add_u32 v13, v5, 4, v13
    s_lshl_b32 s65, s65, 3
    s_mul_i32 s6, s3, {7*1024}
    s_add_u32 s6, s6, {PB}
    """)
    k(f"""
    s_mov_b32 s66, s6
    s_cmp_lt_u32 s5, 4
    s_cselect_b32 s52, s{P_WK}, s{P_WV}
    s_cselect_b32 s53, s{P_WK+1}, s{P_WV+1}
    s_and_b32 s53, s53, 0xffff
    s_mov_b32 s54, {D*DH*2}
    s_mov_b32 s55, 0x20000
    v_and_b32 v55, 15, v1
    v_lshrrev_b32 v54, 3, v55
    v_lshlrev_b32 v54, 10, v54
    v_and_b32 v15, 7, v55
    v_lshl_add_u32 v54, v15, 7, v54
    v_bfe_u32 v15, v55, 1, 2
    v_xor_b32 v15, v15, v6
    v_lshl_add_u32 v54, v15, 5, v54
    v_add_u32 v54, s9, v54
    s_lshl_b32 s6, s3, 7
    s_add_u32 s6, s6, {STB}
    v_lshl_add_u32 v55, v55, 3, s6
    """)
    k(f"""
    s_mov_b32 s71, 0x3f803f80
    s_lshr_b32 s12, s3, 1
    s_and_b32 s13, s3, 1
    s_lshl_b32 s6, s12, 5
    v_add_u32 v32, s6, v2
    v_lshlrev_b32 v53, 3, v32
    v_add_u32 v53, {STB}, v53
    v_lshrrev_b32 v33, 3, v32
    v_lshlrev_b32 v33, 10, v33
    v_and_b32 v34, 7, v32
    v_lshl_add_u32 v33, v34, 7, v33
    v_bfe_u32 v34, v32, 1, 3
    """)
    for q in range(4):
        k(f"""
        v_add_u32 v32, {2*q}, v3
        v_xor_b32 v32, v32, v34
        v_lshl_add_u32 v{24+q}, v32, 4, v33
        """)
    k(f"""
    v_bfe_u32 v32, v1, 2, 2
    v_bfe_u32 v33, v1, 4, 1
    v_and_b32 v34, 3, v1
    v_lshl_add_u32 v33, v33, 2, v34
    v_lshlrev_b32 v34, 3, v33
    s_mul_i32 s6, s13, 56
    v_add_u32 v34, s6, v34
    s_lshl_b32 s7, s13, 3
    s_add_u32 s7, s7, 112
    v_mov_b32 v29, s7
    v_cmp_eq_u32 vcc, 7, v33
    v_cndmask_b32 v34, v34, v29, vcc
    v_add_u32 v34, {WB}, v34
    v_lshl_add_u32 v29, v3, 2, v32
    v_lshl_add_u32 v29, v29, 7, v34
    v_lshl_add_u32 v28, v3, 3, v32
    v_lshl_add_u32 v28, v28, 7, v34
    """)
    k("s_mov_b32 s14, s9")
    qkv_setup(k)
    k(f"""
    s_mov_b32 s9, s14
    v_mov_b32 v32, s71
    v_mov_b32 v33, s71
    v_mov_b32 v34, s71
    v_mov_b32 v35, s71
    """)
    k(f"""
    v_bfe_u32 v60, v1, 2, 2
    v_lshl_add_u32 v60, v3, 2, v60
    v_and_b32 v15, 3, v1
    v_lshlrev_b32 v15, 3, v15
    v_lshl_add_u32 v60, v60, 7, v15
    v_bfe_u32 v15, v1, 4, 1
    s_mov_b32 s61x, 0xffff0000
    s_mov_b32 s24, s40
    s_mov_b32 s25, s41
    s_mov_b32 s26, s42
    s_mov_b32 s27, 0x20000
    s_cmp_lg_u32 s63, 0
    s_cbranch_scc1 {LN}_a1
    v_mul_u32_u24 v15, 14336, v15
    s_lshl_b32 s6, s3, 5
    s_add_u32 s6, s6, {PB}
    v_add3_u32 v60, v60, v15, s6
    s_lshl_b32 s6, s67, 2
    s_add_u32 s6, s6, s3
    s_mul_i32 s8, s6, 9363
    s_lshr_b32 s8, s8, 16
    s_mul_i32 s7, s8, 7
    s_sub_u32 s7, s6, s7
    s_mul_i32 s8, s8, {WGS*1024}
    s_add_u32 s8, s8, {WGUF}
    s_sub_u32 s28, s7, 3
    s_lshr_b32 s29, s28, 1
    s_mul_i32 s29, s29, 58
    s_and_b32 s28, s28, 1
    s_add_u32 s28, s28, s29
    s_add_u32 s28, s28, 87
    s_mul_i32 s29, s68, 14
    s_add_u32 s29, s29, s28
    s_mul_i32 s30, s68, 18
    s_add_u32 s30, s30, s7
    s_cmp_lt_u32 s7, 3
    s_cselect_b32 s29, s30, s29
    s_cselect_b32 s30, 3, 2
    s_cselect_b32 s31, 12, 0
    s_lshl_b32 s30, s30, 10
    s_add_u32 s29, s29, s31
    s_lshl_b32 s29, s29, 10
    s_add_u32 s16, s29, s8
    """.replace("s61x", "s32"))
    for j in range(1, 7):
        k(f"s_add_u32 s{16+j}, s{15+j}, s30")
    k(f"""
    s_mul_i32 s29, s68, 3
    s_add_u32 s29, s29, s7
    s_lshl_b32 s29, s29, 10
    s_add_u32 s29, s29, s8
    s_add_u32 s30, s7, 84
    s_add_u32 s31, s28, 56
    s_cmp_lt_u32 s7, 3
    s_cselect_b32 s22, s29, s22
    s_cselect_b32 s30, s30, s31
    s_lshl_b32 s30, s30, 10
    s_add_u32 s30, s30, s8
    s_lshl_b32 s31, s68, 2
    s_add_u32 s23, s30, s31
    s_branch {LN}_a9
    {LN}_a1:
    v_lshl_add_u32 v60, v15, 5, v60
    s_mul_i32 s6, s12, {7*2048}
    s_lshl_b32 s7, s13, 6
    s_add_u32 s6, s6, s7
    s_add_u32 s6, s6, {PB}
    v_add_u32 v60, s6, v60
    s_lshl_b32 s6, s67, 1
    s_add_u32 s6, s6, s13
    s_mul_i32 s7, s6, 112
    s_mul_i32 s8, s68, 14
    s_add_u32 s7, s7, s8
    s_mul_i32 s8, s12, 7
    s_add_u32 s7, s7, s8
    s_lshl_b32 s7, s7, 10
    s_add_u32 s16, s7, {WDF}
    s_lshl_b32 s7, s6, 5
    s_lshl_b32 s8, s68, 4
    s_add_u32 s7, s7, s8
    s_lshl_b32 s8, s12, 3
    s_add_u32 s7, s7, s8
    s_lshl_b32 s7, s7, 10
    s_add_u32 s7, s7, {WOF}
    s_cmp_eq_u32 s63, 2
    s_cselect_b32 s16, s7, s16
    s_cmp_lg_u32 s63, 3
    s_cbranch_scc1 {LN}_a2
    s_and_b32 s6, s2, 3
    s_mul_i32 s7, s6, {7*2048}
    v_add_u32 v60, s7, v29
    s_mul_i32 s7, s62, 28
    s_mul_i32 s6, s6, 7
    s_add_u32 s7, s7, s6
    s_lshl_b32 s7, s7, 10
    s_add_u32 s16, s7, {WQF}
    s_and_b32 s6, s2, 0x1c
    s_or_b32 s6, s6, s12
    s_cmp_eq_u32 s6, 0
    s_cselect_b32 s26, s26, 0
    {LN}_a2:
    """)
    for j in range(1, 8):
        k(f"s_add_u32 s{16+j}, s{15+j}, 1024")
    k(f"{LN}_a9:")
    stamp_mid(k, 7)
    vm.issue("buffer_load_dwordx4 v[16:19], v11, s[52:55], 0 offen", "kv")
    vm.issue("buffer_load_dwordx4 v[20:23], v14, s[52:55], 0 offen", "kv")
    ldx(7 - NF[0])
    ldw(14 - NF[1])
    stamp_mid(k, 1)
    def preblk():
        cpf = code_pf(k, 44, 62, "ma_kernel", "mb_kernel_end", "pc2")
        vm.issue(cpf, "cpf")
        k(f"s_bfe_u32 s6, s2, 0x20003\ns_cmp_eq_u32 s6, 0\ns_cbranch_scc1 {LN}_mk1")
        for i in range(7):
            k(f"s_add_u32 m0, s66, {i*1024}\ns_nop 0")
            vm.issue(f"buffer_load_dwordx4 v13, s[56:59], s64 offen{NTP} lds", "pre")
            k("s_add_u32 s64, s64, s65")
        k(f"{LN}_mk1b:")
        stamp_mid(k, 8)
    if PREPOS == 0: preblk()
    vm.wait("kv")
    k("ds_write_b128 v12, v[16:19]\nds_write_b128 v12, v[20:23] offset:32768")
    SR = 128
    T = 184
    vm.wait("x")
    stamp_mid(k, 10)
    for c in range(7):
        for h in range(2):
            r = SR + 8 * c + 4 * h
            k(f"ds_read_b128 v[{r}:{r+3}], v54 offset:{c*8192+16*h}")
    for c in range(ND):
        k(f"s_waitcnt lgkmcnt({12-2*c})")
        for d in range(8):
            r = SR + 8 * c + d
            z = c == 0 and d == 0
            k(f"v_dot2_f32_bf16 v30, v{r}, s71, {'0' if z else 'v30'}")
            k(f"v_dot2_f32_bf16 v31, v{r}, v{r}, {'0' if z else 'v31'}")
    if PREPOS == 1: preblk()
    sv = []
    for i, r in enumerate(range(SR + 8 * ND, SR + 56)):
        t = 40 + 2 * (i & 1)
        sv += [f"v_lshlrev_b32 v{t}, 16, v{r}", f"v_and_b32 v{t+1}, s32, v{r}",
               f"v_add_f32 v30, v30, v{t}", f"v_fmac_f32 v31, v{t}, v{t}",
               f"v_add_f32 v30, v30, v{t+1}", f"v_fmac_f32 v31, v{t+1}, v{t+1}"]
    ad = ["v_add_f32 v30, v30, v36", "v_add_f32 v31, v31, v37"]
    sv += [
           "v_mov_b32 v36, v30", "v_mov_b32 v37, v31", "GAP",
           "v_permlane32_swap_b32 v30, v36", "v_permlane32_swap_b32 v31, v37", *ad,
           "v_mov_b32 v36, v30", "v_mov_b32 v37, v31", "GAP",
           "v_permlane16_swap_b32 v30, v36", "v_permlane16_swap_b32 v31, v37", *ad,
           f"v_mul_f32 v30, {f2h(1.0/448)}, v30", f"v_mul_f32 v31, {f2h(1.0/448)}, v31", "v_fma_f32 v31, -v30, v30, v31",
           "v_max_f32 v31, 0, v31", f"v_add_f32 v31, {f2h(1e-5)}, v31", "v_rsq_f32 v31, v31", "GAP", "W"]
    stamp_mid(k, 2)
    ACC, CS, RING = 64, 80, 96
    lg = LG()

    def reads(kb):
        r = RING + 8 * (kb % 4)
        return [f"ds_read_b64_tr_b16 v[{r}:{r+1}], v28 offset:{kb*2048}",
                f"ds_read_b64_tr_b16 v[{r+2}:{r+3}], v28 offset:{kb*2048+512}",
                f"ds_read_b128 v[{r+4}:{r+7}], v{24+(kb&3)} offset:{(kb>>2)*8192}"]

    def ds(lg, text, tag):
        lg.issue(tag); k(text)

    def put(lg, sv, n):
        while sv and n > 0:
            o = sv.pop(0); n -= 1
            if o == "GAP": return
            if o == "W": ds(lg, "ds_write_b64 v55, v[30:31]", "stw")
            else: k(o)

    def step(lg, sv, kb, side, more=()):
        w = lg.waitstr(("f", kb))
        if w: k(w)
        r = RING + 8 * (kb % 4)
        c0 = "0" if kb == 0 else f"v[{ACC}:{ACC+15}]"
        c1 = "0" if kb == 0 else f"v[{CS}:{CS+15}]"
        if kb + 3 < 28: side = [(x, ("f", kb + 3)) for x in reads(kb + 3)] + side
        h = (len(side) + 1) // 2
        room = max(0, (11 - len(side) - 2 * len(more)) // 2)
        k(f"{MF} v[{ACC}:{ACC+15}], v[{r}:{r+3}], v[{r+4}:{r+7}], {c0}")
        for o, t in side[:h]: ds(lg, o, t)
        put(lg, sv, room)
        k(f"{MF} v[{CS}:{CS+15}], v[{r}:{r+3}], v[32:35], {c1}")
        for o, t in side[h:]: ds(lg, o, t)
        for f in more: f()
        put(lg, sv, room)
    vm.wait("w")
    k(f"s_waitcnt lgkmcnt(0)\ns_barrier")
    stamp_mid(k, 3)
    for kb in range(3):
        for r in reads(kb): ds(lg, r, ("f", kb))
    for kb in range(KP):
        step(lg, sv, kb, [])
    stamp_mid(k, 4)
    k(f"s_cmp_eq_u32 s63, 3\ns_cbranch_scc1 {LN}_np")
    vm.wait("pre")
    k(f"{LN}_np:")
    k(f"s_barrier\ns_cmp_eq_u32 s63, 2\ns_cbranch_scc1 {LN}_t2")
    stamp_mid(k, 6)

    def finish(offs, sfx):
        import copy
        l2 = copy.deepcopy(lg); s2 = list(sv)
        trs = []
        for j, (o0, o1) in enumerate(offs):
            trs += [(f"ds_read_b64_tr_b16 v[{T+4*j}:{T+4*j+1}], v60 offset:{o0}", ("t", j)),
                    (f"ds_read_b64_tr_b16 v[{T+4*j+2}:{T+4*j+3}], v60 offset:{o1}", ("t", j))]

        def st(j):
            def f():
                w = l2.waitstr(("t", j))
                if w: k(w)
                if sfx == "o" and j & 1:
                    k(f"v_cndmask_b32 v{T+4*j+2}, 0, v{T+4*j+2}, vcc\nv_cndmask_b32 v{T+4*j+3}, 0, v{T+4*j+3}, vcc")
                k(f"buffer_store_dwordx4 v[{T+4*j}:{T+4*j+3}], v50, s[24:27], s{16+j} offen{PSC}")
            return f
        sts = [st(j) for j in range(len(offs))]
        if sfx == "o": k("s_mov_b32 vcc_lo, -1\ns_mov_b32 vcc_hi, 0")
        for kb in range(KP, 28):
            side, trs = trs[:4], trs[4:]
            more = [sts.pop(0)] if (sts and kb >= KP + 2) else []
            if kb == 26:
                assert not s2, len(s2)
                k((l2.waitstr("stw") or "") + "\ns_barrier")
                side = side + [("ds_read_b64 v[30:31], v53", "st")]
            step(l2, s2, kb, side, more)
        for f in sts: f()
        k(l2.waitstr("st") or "")
        qkv_epilogue(k, ACC, CS, sfx)
    finish([(j * 2048, j * 2048 + 1024) for j in range(7)], "")
    stamp_mid(k, 5)
    k(f"s_cmp_lg_u32 s63, 0\ns_cbranch_scc1 {LN}_t3")
    for j in range(7):
        for d in range(4):
            k(f"v_dot2_f32_bf16 v{16+(d&1)}, v{T+4*j+d}, s71, {'0' if (j == 0 and d < 2) else 'v%d' % (16+(d&1))}")
    k(f"""
    v_add_f32 v16, v16, v17
    v_mov_b32 v17, v16
    s_nop 1
    v_permlane32_swap_b32 v16, v17
    v_add_f32 v16, v16, v17
    v_cvt_pk_bf16_f32 v17, v16, v16
    v_lshlrev_b32 v17, 16, v17
    v_sub_f32 v17, v16, v17
    v_cvt_pk_bf16_f32 v16, v16, v17
    buffer_store_dword v16, v50, s[24:27], s23 offen sc1
    """)
    stamp_mid(k, 9)
    k(f"s_endpgm\n{LN}_t3:")

    def mk(i0, i1):
        for i in range(i0, i1):
            if i % 4 == 0 or i == i0: k(f"s_add_u32 s14, s15, {(i & ~3)*1024}")
            k(f"buffer_store_dwordx4 v[56:59], v50, s[40:43], s14 offen offset:{(i%4)*1024}{MKSC}")
    k(f"""
    s_bfe_u32 s6, s2, 0x20003
    s_cmp_lg_u32 s6, 0
    s_cbranch_scc1 {LN}_fin
    s_lshl_b32 s6, s62, 7
    s_add_u32 s6, s6, {CSQ}
    v_lshlrev_b32 v13, 4, v3
    """)
    for q in range(4):
        k(f"buffer_store_dwordx4 v[{CS+4*q}:{CS+4*q+3}], v13, s[24:27], s6 offen offset:{q*32}")
    mk(7, 16)
    k(f"{LN}_fin:\ns_endpgm\n{LN}_t2:")
    finish([((28*(jj>>1)+16*(jj&1))*128, (28*(jj>>1)+16*(jj&1)+8)*128) for jj in range(8)], "o")
    k(f"s_endpgm\n{LN}_mk1:")
    mk(0, 7)
    k(f"s_branch {LN}_mk1b")
    epilogue(k)
    return k, dict(grid=256, block=256, lds=LDS)
```

```python
from common import *
import struct, math


def f2h(x):
    return "0x%08x" % struct.unpack("<I", struct.pack("<f", x))[0]


QSCALE = (28 ** -0.5) * math.log2(math.e)
MF = "v_mfma_f32_32x32x16_bf16"


def stats_finish(k, s1, s2):
    k(f"""
    v_mul_f32 v{s1}, {f2h(1.0/448)}, v{s1}
    v_mul_f32 v{s2}, {f2h(1.0/448)}, v{s2}
    v_fma_f32 v{s2}, -v{s1}, v{s1}, v{s2}
    v_max_f32 v{s2}, 0, v{s2}
    v_add_f32 v{s2}, {f2h(1e-5)}, v{s2}
    v_rsq_f32 v{s2}, v{s2}
    """)


def qkv_setup(k, kvf=KVF):
    k(f"""
    s_lshl_b32 s6, s4, 1
    s_add_u32 s6, s6, s12
    s_lshl_b32 s7, s5, 1
    s_add_u32 s62, s7, s13
    s_lshl_b32 s8, s6, 4
    s_add_u32 s8, s8, s62
    s_lshl_b32 s8, s8, 11
    s_add_u32 s60, s8, {QF}
    v_lshlrev_b32 v50, 4, v1
    s_lshl_b32 s9, s6, 12
    s_add_u32 s9, s9, {kvf}
    s_and_b32 s6, s62, 7
    s_lshr_b32 s7, s6, 2
    s_lshl_b32 s7, s7, 10
    s_and_b32 s8, s6, 1
    s_lshl_b32 s8, s8, 9
    s_add_u32 s7, s7, s8
    s_and_b32 s8, s6, 2
    s_lshl_b32 s8, s8, 2
    s_add_u32 s7, s7, s8
    s_lshl_b32 s8, s6, 6
    s_add_u32 s8, s8, 2048
    s_cmp_ge_u32 s62, 8
    s_cselect_b32 s7, s8, s7
    s_cselect_b64 vcc, -1, 0
    s_add_u32 s61, s9, s7
    v_lshrrev_b32 v51, 4, v2
    v_lshlrev_b32 v51, 10, v51
    v_bfe_u32 v52, v2, 2, 1
    v_lshl_add_u32 v51, v52, 9, v51
    v_and_b32 v52, 3, v2
    v_lshl_add_u32 v51, v52, 1, v51
    v_bfe_u32 v52, v2, 3, 1
    v_lshl_add_u32 v51, v52, 3, v51
    v_lshlrev_b32 v52, 4, v2
    v_cndmask_b32 v51, v52, v51, vcc
    """)


def qkv_epilogue(k, ACC, CS, marks=None):
    k(f"""
    v_mul_f32 v36, {f2h(QSCALE)}, v31
    v_cmp_eq_u32 vcc, 1, v3
    v_sub_f32 v30, 0, v30
    v_cndmask_b32 v37, v36, v31, vcc
    """)
    for r in range(16):
        k(f"v_fmac_f32 v{ACC+r}, v30, v{CS+r}")
    for r in range(16):
        k(f"v_mul_f32 v{ACC+r}, v{36 if r < 12 else 37}, v{ACC+r}")
    PKD = 40
    for d in range(8):
        k(f"v_cvt_pk_bf16_f32 v{PKD+d}, v{ACC+2*d}, v{ACC+2*d+1}")
    k(f"""
    buffer_store_dwordx4 v[{PKD}:{PKD+3}], v50, s[40:43], s60 offen
    buffer_store_dwordx4 v[{PKD+4}:{PKD+7}], v50, s[40:43], s60 offen offset:1024
    {marks or ""}
    s_and_b32 s10, s62, 7
    v_mov_b32 v48, v{PKD+6}
    v_mov_b32 v49, v{PKD+7}
    s_mov_b32 exec_lo, 0
    s_cmp_lg_u32 s10, 7
    s_cbranch_scc1 {k.name}_kv1
    s_cmp_ge_u32 s62, 8
    s_cselect_b32 s10, 0x3f80, 0
    v_mov_b32 v48, s10
    v_mov_b32 v49, 0
    {k.name}_kv1:
    s_cmp_ge_u32 s62, 8
    s_cbranch_scc1 {k.name}_v
    buffer_store_dwordx2 v[48:49], v51, s[40:43], s61 offen
    {"s_waitcnt vmcnt(7)" if marks else ""}
    s_branch {k.name}_kvd
    {k.name}_v:
    buffer_store_short v48, v51, s[40:43], s61 offen
    buffer_store_short_d16_hi v48, v51, s[40:43], s61 offen offset:16
    buffer_store_short v49, v51, s[40:43], s61 offen offset:32
    buffer_store_short_d16_hi v49, v51, s[40:43], s61 offen offset:48
    {"s_waitcnt vmcnt(10)" if marks else ""}
    {k.name}_kvd:
    s_mov_b64 exec, -1
    """)


def gen_p1a(name, MAP='H2', CPF=0):
    import os
    DBG = os.environ.get("DBG2", "").split(",")
    k = Kernel(name)
    prologue(k, 256, (44, 63, None, "ma_kernel", "pc") if CPF & 3 else None)
    WB = 57344
    PB = WB + 512 * 128
    STB = PB + 28 * 1024
    LDS = STB + 512
    if MAP == "H2":
        k("""
        s_bfe_u32 s4, s2, 0x20001
        s_lshl_b32 s4, s4, 3
        s_and_b32 s5, s2, 1
        s_add_u32 s4, s4, s5
        s_lshr_b32 s5, s2, 3
        s_and_b32 s6, s5, 3
        s_lshl_b32 s6, s6, 1
        s_add_u32 s4, s4, s6
        """)
    else:
        k("""
        s_and_b32 s4, s2, 7
        s_lshl_b32 s4, s4, 2
        s_lshr_b32 s5, s2, 3
        s_and_b32 s6, s5, 3
        s_add_u32 s4, s4, s6
        """)
    k(f"""
    s_lshr_b32 s5, s5, 2
    v_and_b32 v2, 31, v1
    v_lshrrev_b32 v3, 5, v1
    v_lshrrev_b32 v4, 3, v1
    v_and_b32 v5, 7, v1
    v_lshrrev_b32 v6, 4, v1
    """)
    k(f"""
    s_lshl_b32 s6, s4, 6
    s_lshl_b32 s7, s3, 4
    s_add_u32 s6, s6, s7
    v_add_u32 v7, s6, v4
    v_mul_u32_u24 v7, 896, v7
    v_xor_b32 v8, v5, v6
    v_lshl_add_u32 v8, v8, 4, v7
    v_xor_b32 v9, v5, v6
    v_xor_b32 v9, 4, v9
    v_lshl_add_u32 v9, v9, 4, v7
    v_add_u32 v9, {8*896}, v9
    """)
    k(f"""
    s_mul_i32 s6, s5, {128 if "al" in DBG else 112}
    s_min_u32 s6, s6, {768 if "al" in DBG else 1000}
    s_mul_i32 s7, s3, {8*896}
    s_add_u32 s6, s6, s7
    v_mul_u32_u24 v10, 896, v4
    v_lshl_add_u32 v10, v5, 4, v10
    v_add_u32 v10, s6, v10
    """)
    k(f"""
    s_lshl_b32 s6, s3, 6
    v_add_u32 v11, s6, v1
    v_lshlrev_b32 v12, 7, v11
    v_add_u32 v12, {WB+112}, v12
    v_mul_u32_u24 v11, 56, v11
    s_and_b32 s7, s5, 3
    s_lshl_b32 s7, s7, 4
    v_add_u32 v11, s7, v11
    s_mov_b32 s8, {256*56}
    s_lshl_b32 s9, s3, 11
    s_lshl_b32 s10, s3, 10
    s_add_u32 s10, s10, {WB}
    """)
    wait_ptrs(k)
    stamp_mid(k, 0)
    vm = VM(k)
    srd(k, 44, P_X, 0 if "nox" in DBG else XBYTES)
    srd(k, 48, P_WQ, 0 if "now" in DBG else D * D * 2)
    k(f"""
    s_cmp_lt_u32 s5, 4
    s_cselect_b32 s52, s{P_WK}, s{P_WV}
    s_cselect_b32 s53, s{P_WK+1}, s{P_WV+1}
    s_and_b32 s53, s53, 0xffff
    s_mov_b32 s54, {0 if "nokv" in DBG else D*DH*2}
    s_mov_b32 s55, 0x20000
    """)
    k(f"""
    s_cmp_eq_u32 s5, 7
    s_cselect_b32 s69, 0, s5
    s_lshl_b32 s69, s69, 13
    s_bfe_u32 s70, s2, 0x20003
    s_mul_i32 s70, s70, 7
    s_lshr_b32 s70, s70, 1
    s_lshl_b32 s70, s70, 12
    """)

    def ldx(cnt):
        for _ in range(cnt):
            k("s_add_u32 m0, s9, s69\ns_lshr_b32 s11, s69, 6")
            vm.issue("buffer_load_dwordx4 v8, s[44:47], s11 offen lds", "x")
            k("s_add_u32 m0, m0, 1024\ns_add_u32 s69, s69, 8192")
            vm.issue("buffer_load_dwordx4 v9, s[44:47], s11 offen lds", "x")
            k("s_cmp_eq_u32 s69, 57344\ns_cselect_b32 s69, 0, s69")

    def ldw(cnt):
        k("s_mov_b32 exec_lo, 0x7f7f7f7f\ns_mov_b32 exec_hi, 0x7f7f7f7f")
        for _ in range(cnt):
            k("s_add_u32 m0, s10, s70\ns_mul_i32 s11, s70, 7")
            vm.issue("buffer_load_dwordx4 v10, s[48:51], s11 offen lds", "w")
            k("s_add_u32 s70, s70, 4096\ns_cmp_eq_u32 s70, 57344\ns_cselect_b32 s70, 0, s70")
        k("s_mov_b64 exec, -1")
    vm.issue("buffer_load_dwordx4 v[16:19], v11, s[52:55], 0 offen", "kv")
    vm.issue("buffer_load_dwordx4 v[20:23], v11, s[52:55], s8 offen", "kv")
    ldx(2)
    ldw(4)
    LN = k.name
    k(f"""
    s_and_b32 s6, s2, 7
    s_bfe_u32 s7, s2, 0x20003
    s_mul_i32 s66, s5, 3
    s_add_u32 s66, s66, s7
    s_sub_u32 s66, s66, 1
    s_lshl_b32 s66, s66, 3
    s_add_u32 s66, s66, s6
    s_cmp_eq_u32 s7, 0
    s_cselect_b32 s66, 255, s66
    s_mov_b32 s59, 0x20000
    s_cmp_ge_u32 s66, 112
    s_cbranch_scc1 {LN}_u1
    s_mov_b32 s63, 0
    s_cmp_lt_u32 s3, 2
    s_cselect_b32 s56, s{P_WG}, s{P_WU}
    s_cselect_b32 s57, s{P_WG+1}, s{P_WU+1}
    s_mov_b32 s58, {D*F*2}
    s_mov_b32 s65, {F*2}
    s_and_b32 s6, s66, 3
    s_mul_i32 s6, s6, 112
    s_and_b32 s7, s3, 1
    s_mul_i32 s7, s7, 56
    s_add_u32 s6, s6, s7
    s_mul_i32 s64, s6, {F*2}
    s_lshr_b32 s67, s66, 2
    s_and_b32 s68, s66, 3
    s_branch {LN}_u9
    {LN}_u1:
    s_mov_b32 s65, {D*2}
    s_cmp_ge_u32 s66, 168
    s_cbranch_scc1 {LN}_u2
    s_mov_b32 s63, 1
    s_mov_b32 s56, s{P_WD}
    s_mov_b32 s57, s{P_WD+1}
    s_mov_b32 s58, {D*F*2}
    s_sub_u32 s6, s66, 112
    s_branch {LN}_u3
    {LN}_u2:
    s_mov_b32 s63, 2
    s_mov_b32 s56, s{P_WO}
    s_mov_b32 s57, s{P_WO+1}
    s_mov_b32 s58, {D*D*2}
    s_sub_u32 s6, s66, 168
    s_cmp_lt_u32 s66, 182
    s_cbranch_scc1 {LN}_u3
    s_mov_b32 s63, 3
    s_mov_b32 s58, 0
    s_mov_b32 s6, 0
    {LN}_u3:
    s_mul_i32 s68, s6, 9363
    s_lshr_b32 s68, s68, 16
    s_mul_i32 s7, s68, 7
    s_sub_u32 s67, s6, s7
    s_mul_i32 s6, s68, 224
    s_mul_i32 s7, s3, 56
    s_add_u32 s6, s6, s7
    s_mul_i32 s64, s6, {D*2}
    {LN}_u9:
    s_and_b32 s57, s57, 0xffff
    s_lshl_b32 s6, s67, 7
    s_add_u32 s64, s64, s6
    v_mul_lo_u32 v13, v4, s65
    v_lshl_add_u32 v13, v5, 4, v13
    s_lshl_b32 s65, s65, 3
    s_mul_i32 s6, s3, {7*1024}
    s_add_u32 s6, s6, {PB}
    """)
    if "nopre" in DBG: k("s_mov_b32 s58, 0")
    ldx(5)
    ldw(10)
    stamp_mid(k, 1)
    for i in range(7):
        k(f"s_add_u32 m0, s6, {i*1024}\ns_nop 0")
        vm.issue("buffer_load_dwordx4 v13, s[56:59], s64 offen lds", "pre")
        k("s_add_u32 s64, s64, s65")
    if CPF & 3 > 1:
        vm.issue(code_pf(k, 44, 62, "ma_kernel", ["", "", "mb_kernel", "mb_kernel_end"][CPF & 3], "pc2"), "pre")
    stamp_mid(k, 8)
    k(f"""
    s_lshl_b32 s6, s2, 2
    s_add_u32 s6, s6, s3
    s_lshl_b32 s6, s6, 12
    s_add_u32 s69, s6, {MK0}
    v_mov_b32 v56, -1
    v_mov_b32 v57, -1
    v_mov_b32 v58, -1
    v_mov_b32 v59, -1
    """)
    marks = "\n".join(f"buffer_store_dwordx4 v[56:59], v50, s[40:43], s69 offen offset:{i*1024} sc1" for i in range(4))
    SR = 64
    k(f"""
    v_and_b32 v55, 15, v1
    v_lshrrev_b32 v54, 3, v55
    v_lshlrev_b32 v54, 10, v54
    v_and_b32 v15, 7, v55
    v_lshl_add_u32 v54, v15, 7, v54
    v_bfe_u32 v15, v55, 1, 2
    v_xor_b32 v15, v15, v6
    v_lshl_add_u32 v54, v15, 5, v54
    v_add_u32 v54, s9, v54
    s_mov_b32 s71, 0x3f803f80
    v_mov_b32 v30, 0
    v_mov_b32 v31, 0
    """)
    k(f"""
    s_lshr_b32 s12, s3, 1
    s_and_b32 s13, s3, 1
    s_lshl_b32 s6, s12, 5
    v_add_u32 v32, s6, v2
    v_lshlrev_b32 v53, 3, v32
    v_add_u32 v53, {STB}, v53
    v_lshrrev_b32 v33, 3, v32
    v_lshlrev_b32 v33, 10, v33
    v_and_b32 v34, 7, v32
    v_lshl_add_u32 v33, v34, 7, v33
    v_bfe_u32 v34, v32, 1, 3
    """)
    for q in range(4):
        k(f"""
        v_add_u32 v32, {2*q}, v3
        v_xor_b32 v32, v32, v34
        v_lshl_add_u32 v{24+q}, v32, 4, v33
        """)
    k(f"""
    v_bfe_u32 v32, v1, 2, 2
    v_bfe_u32 v33, v1, 4, 1
    v_and_b32 v34, 3, v1
    v_lshl_add_u32 v33, v33, 2, v34
    v_lshlrev_b32 v34, 3, v33
    s_mul_i32 s6, s13, 56
    v_add_u32 v34, s6, v34
    s_lshl_b32 s7, s13, 3
    s_add_u32 s7, s7, 112
    v_mov_b32 v29, s7
    v_cmp_eq_u32 vcc, 7, v33
    v_cndmask_b32 v34, v34, v29, vcc
    v_add_u32 v34, {WB}, v34
    v_lshl_add_u32 v29, v3, 2, v32
    v_lshl_add_u32 v29, v29, 7, v34
    v_lshl_add_u32 v28, v3, 3, v32
    v_lshl_add_u32 v28, v28, 7, v34
    """)
    qkv_setup(k)
    vm.wait("kv")
    k("ds_write_b128 v12, v[16:19]\nds_write_b128 v12, v[20:23] offset:32768")
    vm.wait("x")
    for c in range(7):
        for h in range(2):
            r = SR + 8 * c + 4 * h
            k(f"ds_read_b128 v[{r}:{r+3}], v54 offset:{c*8192+16*h}")
    for c in range(7):
        k(f"s_waitcnt lgkmcnt({12-2*c})")
        for d in range(8):
            r = SR + 8 * c + d
            k(f"v_dot2_f32_bf16 v30, v{r}, s71, v30")
            k(f"v_dot2_f32_bf16 v31, v{r}, v{r}, v31")
    k(f"""
    v_mov_b32 v36, v30
    v_mov_b32 v37, v31
    s_nop 0
    v_permlane32_swap_b32 v30, v36
    v_permlane32_swap_b32 v31, v37
    v_add_f32 v30, v30, v36
    v_add_f32 v31, v31, v37
    v_mov_b32 v36, v30
    v_mov_b32 v37, v31
    s_nop 0
    v_permlane16_swap_b32 v30, v36
    v_permlane16_swap_b32 v31, v37
    v_add_f32 v30, v30, v36
    v_add_f32 v31, v31, v37
    """)
    stats_finish(k, 30, 31)
    k(f"""
    s_lshl_b32 s6, s3, 7
    s_add_u32 s6, s6, {STB}
    v_lshl_add_u32 v55, v55, 3, s6
    ds_write_b64 v55, v[30:31]
    v_mov_b32 v32, s71
    v_mov_b32 v33, s71
    v_mov_b32 v34, s71
    v_mov_b32 v35, s71
    """)
    stamp_mid(k, 2)
    ACC, CS, RING = 64, 80, 96
    stages = [(0, 28, 0)]

    def reads(kb):
        r = RING + 8 * (kb % 4)
        return [f"ds_read_b64_tr_b16 v[{r}:{r+1}], v28 offset:{kb*2048}",
                f"ds_read_b64_tr_b16 v[{r+2}:{r+3}], v28 offset:{kb*2048+512}",
                f"ds_read_b128 v[{r+4}:{r+7}], v{24+(kb&3)} offset:{(kb>>2)*8192}"]
    for (k0, k1, wg) in stages:
        vm.wait("w", "lgkmcnt(0)")
        k("s_barrier")
        if k0 == 0: stamp_mid(k, 3)
        for kb in range(k0, min(k0 + 3, k1)):
            for r in reads(kb): k(r)
        for kb in range(k0, k1):
            if kb + 3 < k1:
                for r in reads(kb + 3): k(r)
            out = min(3, k1 - 1 - kb) * 3
            k(f"s_waitcnt lgkmcnt({out})")
            r = RING + 8 * (kb % 4)
            c0 = "0" if kb == 0 else f"v[{ACC}:{ACC+15}]"
            c1 = "0" if kb == 0 else f"v[{CS}:{CS+15}]"
            k(f"{MF} v[{ACC}:{ACC+15}], v[{r}:{r+3}], v[{r+4}:{r+7}], {c0}")
            k(f"{MF} v[{CS}:{CS+15}], v[{r}:{r+3}], v[32:35], {c1}")
    k("ds_read_b64 v[30:31], v53")
    stamp_mid(k, 4)
    k("s_waitcnt lgkmcnt(0)")
    qkv_epilogue(k, ACC, CS, marks)
    stamp_mid(k, 5)
    k("s_barrier")
    stamp_mid(k, 6)
    T = 96
    k(f"""
    v_bfe_u32 v13, v1, 2, 2
    v_and_b32 v14, 3, v1
    v_lshlrev_b32 v14, 3, v14
    v_bfe_u32 v15, v1, 4, 1
    s_cmp_eq_u32 s63, 3
    s_cbranch_scc1 {LN}_t4
    s_cmp_eq_u32 s63, 2
    s_cbranch_scc1 {LN}_t2
    s_cmp_eq_u32 s63, 1
    s_cbranch_scc1 {LN}_t1
    """)

    def tr(addr, jstride, ehstride):
        for j in range(7):
            for eh in range(2):
                k(f"ds_read_b64_tr_b16 v[{T+4*j+2*eh}:{T+4*j+2*eh+1}], v{addr} offset:{j*jstride+eh*ehstride}")
    k(f"""
    v_lshl_add_u32 v13, v3, 2, v13
    v_lshl_add_u32 v13, v13, 7, v14
    v_mul_u32_u24 v15, 14336, v15
    s_lshl_b32 s6, s3, 5
    s_add_u32 s6, s6, {PB}
    v_add3_u32 v13, v13, v15, s6
    """)
    tr(13, 2048, 1024)
    k(f"""
    s_lshl_b32 s6, s67, 2
    s_add_u32 s6, s6, s3
    s_mul_i32 s8, s6, 9363
    s_lshr_b32 s8, s8, 16
    s_mul_i32 s9, s8, 7
    s_sub_u32 s9, s6, s9
    s_mul_i32 s8, s8, {WGS*1024}
    s_add_u32 s8, s8, {WGUF}
    s_mul_i32 s12, s68, 7
    s_sub_u32 s13, s9, 3
    s_lshr_b32 s14, s13, 1
    s_mul_i32 s14, s14, 58
    s_and_b32 s13, s13, 1
    s_add_u32 s13, s13, s14
    s_add_u32 s13, s13, 87
    s_mov_b32 s15, 0x3f803f80
    """)
    for j in range(7):
        k(f"""
        s_add_u32 s14, s12, {j}
        s_mul_i32 s10, s68, {3 if j == 6 else 18}
        s_add_u32 s10, s10, {0 if j == 6 else 3 * (4 + j)}
        s_add_u32 s10, s10, s9
        s_lshl_b32 s11, s14, 1
        s_add_u32 s11, s11, s13
        s_cmp_lt_u32 s9, 3
        s_cselect_b32 s10, s10, s11
        s_lshl_b32 s10, s10, 10
        s_add_u32 s10, s10, s8
        s_waitcnt lgkmcnt({12-2*j})
        buffer_store_dwordx4 v[{T+4*j}:{T+4*j+3}], v50, s[40:43], s10 offen sc1
        """)
        for d in range(4):
            k(f"v_dot2_f32_bf16 v16, v{T+4*j+d}, s15, {'0' if (j == 0 and d == 0) else 'v16'}")
    k(f"""
    s_add_u32 s10, s9, 84
    s_add_u32 s11, s13, 56
    s_cmp_lt_u32 s9, 3
    s_cselect_b32 s10, s10, s11
    s_lshl_b32 s10, s10, 10
    s_add_u32 s10, s10, s8
    s_lshl_b32 s11, s68, 2
    s_add_u32 s10, s10, s11
    v_mov_b32 v17, v16
    s_nop 1
    v_permlane32_swap_b32 v16, v17
    v_add_f32 v16, v16, v17
    v_cvt_pk_bf16_f32 v17, v16, v16
    v_lshlrev_b32 v17, 16, v17
    v_sub_f32 v17, v16, v17
    v_cvt_pk_bf16_f32 v16, v16, v17
    buffer_store_dword v16, v50, s[40:43], s10 offen sc1
    s_endpgm
    """)

    def lin_store(stride, dup=0, end=True):
        for j in range(7):
            k(f"""
            s_waitcnt lgkmcnt({12-2*j})
            buffer_store_dwordx4 v[{T+4*j}:{T+4*j+3}], v50, s[40:43], s10 offen sc1
            """)
            if dup:
                k(f"""
                s_add_u32 s11, s10, {dup}
                buffer_store_dwordx4 v[{T+4*j}:{T+4*j+3}], v50, s[40:43], s11 offen
                """)
            k(f"s_add_u32 s10, s10, {stride}")
        if end: k("s_endpgm")
    k(f"""
    {LN}_t1:
    v_lshl_add_u32 v13, v3, 2, v13
    v_lshl_add_u32 v13, v13, 7, v14
    v_lshl_add_u32 v13, v15, 5, v13
    s_mul_i32 s6, s12, {7*2048}
    s_lshl_b32 s7, s13, 6
    s_add_u32 s6, s6, s7
    s_add_u32 s6, s6, {PB}
    v_add_u32 v13, s6, v13
    """)
    tr(13, 2048, 1024)
    k(f"""
    s_lshl_b32 s6, s67, 1
    s_add_u32 s6, s6, s13
    s_mul_i32 s10, s6, 112
    s_mul_i32 s6, s68, 14
    s_add_u32 s10, s10, s6
    s_mul_i32 s6, s12, 7
    s_add_u32 s10, s10, s6
    s_lshl_b32 s10, s10, 10
    s_add_u32 s10, s10, {WDF}
    """)
    lin_store(1024)
    k(f"""
    {LN}_t2:
    v_lshl_add_u32 v13, v3, 2, v13
    v_lshl_add_u32 v13, v13, 7, v14
    v_lshl_add_u32 v13, v15, 5, v13
    s_mul_i32 s6, s12, {7*2048}
    s_lshl_b32 s7, s13, 6
    s_add_u32 s6, s6, s7
    s_add_u32 s6, s6, {PB}
    v_add_u32 v13, s6, v13
    """)
    for jj in range(8):
        for eh in range(2):
            k(f"ds_read_b64_tr_b16 v[{T+4*jj+2*eh}:{T+4*jj+2*eh+1}], v13 offset:{(28*(jj>>1)+16*(jj&1)+8*eh)*128}")
    k(f"""
    s_lshl_b32 s6, s67, 1
    s_add_u32 s6, s6, s13
    s_lshl_b32 s10, s6, 5
    s_lshl_b32 s6, s68, 4
    s_add_u32 s10, s10, s6
    s_lshl_b32 s6, s12, 3
    s_add_u32 s10, s10, s6
    s_lshl_b32 s10, s10, 10
    s_add_u32 s10, s10, {WOF}
    s_add_u32 s11, s10, 4096
    s_waitcnt lgkmcnt(0)
    s_mov_b32 exec_lo, 0
    """)
    for jj in range(1, 8, 2):
        k(f"v_mov_b32 v{T+4*jj+2}, 0\nv_mov_b32 v{T+4*jj+3}, 0")
    k("s_mov_b32 exec_lo, -1")
    for jj in range(8):
        k(f"buffer_store_dwordx4 v[{T+4*jj}:{T+4*jj+3}], v50, s[40:43], s{10 if jj < 4 else 11} offen offset:{(jj%4)*1024} sc1")
    k(f"s_endpgm\n{LN}_t4:")
    k(f"""
    s_and_b32 s6, s2, 0x1c
    s_cmp_lg_u32 s6, 0
    s_cbranch_scc1 {LN}_fin
    s_and_b32 s4, s2, 3
    s_cmp_lg_u32 s12, 0
    s_cbranch_scc1 {LN}_fin
    s_mul_i32 s6, s4, {7*2048}
    v_add_u32 v29, s6, v29
    """)
    tr(29, 2048, 1024)
    k(f"""
    s_mul_i32 s10, s62, 28
    s_mul_i32 s6, s4, 7
    s_add_u32 s10, s10, s6
    s_lshl_b32 s10, s10, 10
    s_add_u32 s10, s10, {WQF}
    s_lshl_b32 s6, s62, 7
    s_add_u32 s6, s6, {CSQ}
    v_lshlrev_b32 v13, 4, v3
    """)
    for q in range(4):
        k(f"buffer_store_dwordx4 v[{CS+4*q}:{CS+4*q+3}], v13, s[40:43], s6 offen offset:{q*32}")
    lin_store(1024)
    k(f"{LN}_fin:\ns_endpgm")
    epilogue(k)
    return k, dict(grid=256, block=256, lds=LDS)
```

```python
import sys
import common
if len(sys.argv) > 2 and sys.argv[2] == 'stamp': common.STAMP = True
from build import *
import os
if os.environ.get("P1R"):
    from k_p1r import gen_p1a as g1
    gen_p1a = lambda n: g1(n, "H2", 15)
else:
    from k_p1 import gen_p1a
from k_mega3 import gen_mega, DEF
import json, os
over = json.loads(os.environ.get("OVER", "{}"))
L = [gen_p1a("p1a_kernel", **json.loads(os.environ.get("OV1", "{}"))), gen_mega("ma_kernel", 0, **over), gen_mega("mb_kernel", 1, **over)]
if os.environ.get("ONLY1"): L = [L[0], L[1], L[2]]; ONLY = 1
assemble(L, sys.argv[1] if len(sys.argv) > 1 else "out.s")
```

```python
from common import *
import common
from k_p1 import f2h, stats_finish, qkv_setup, qkv_epilogue

MF = "v_mfma_f32_32x32x16_bf16"
SC = " sc1"
BUDGET = 200000

DEF = dict(
    X_BURST=6, LEAD=28,
    PACE=(2, 3), BARS=(106, 106, 154), BUD=6,
    KVROT=0, ROT=0, FE=4, MAP='H2', DUAL=0, PACE5=(2,), W_PRE=0,
    SS=(), CPF=15, NOPK=1, E56=6, WD1=0, WD2=12, WD2S=16, BGAP=2, OACK=1, XACK=1, X2ACK=1, DBGP=0, MK1=16, MKB=11, UNI=2, MKB1=99, DSPLIT=32,
    HT=(150, 200, 252),
)


def gen_mega(name, layer, **over):
    C = dict(DEF); C.update(over)
    k = Kernel(name)
    SS = C["SS"]

    def stamp_mid(k, idx):
        if SS and idx not in (0, 8): return
        common.stamp_mid(k, idx)
    prologue(k, 256, (44, 15, None, name + "_end", "pc") if C["CPF"] & 4 else None)
    kvf = KVF if layer == 0 else KVF1
    mk, hf = (MK0, HF) if layer == 0 else (MK1, HF1)
    Q, O, SA, SB, P = 16, 48, 112, 128, 144
    NS = 160
    LDS = NS * 1024
    RES = 248
    if C["MAP"] == "H2":
        k("""
        s_bfe_u32 s4, s2, 0x20001
        s_lshl_b32 s4, s4, 6
        s_lshr_b32 s5, s2, 6
        s_lshl_b32 s5, s5, 4
        s_add_u32 s4, s4, s5
        s_and_b32 s5, s2, 1
        s_lshl_b32 s5, s5, 3
        s_add_u32 s4, s4, s5
        s_bfe_u32 s5, s2, 0x30003
        s_add_u32 s4, s4, s5
        """)
    else:
        k("""
        s_and_b32 s4, s2, 7
        s_lshl_b32 s4, s4, 5
        s_lshr_b32 s5, s2, 3
        s_add_u32 s4, s4, s5
        """)
    k(f"""
    s_lshr_b32 s5, s4, 2
    s_and_b32 s6, s4, 3
    s_lshl_b32 s6, s6, 3
    v_lshlrev_b32 v4, 4, v1
    v_and_b32 v2, 31, v1
    v_lshrrev_b32 v3, 5, v1
    s_lshl_b32 s8, s3, 16
    s_add_u32 s8, s8, {kvf}
    v_lshrrev_b32 v5, 3, v2
    v_lshlrev_b32 v5, 11, v5
    v_and_b32 v6, 7, v1
    v_add_u32 v6, s6, v6
    v_lshl_add_u32 v6, v3, 5, v6
    v_lshl_add_u32 v13, v6, 4, v5
    s_lshl_b32 s7, s5, 15
    s_lshl_b32 s14, s3, 13
    s_add_u32 s49, s7, s14
    s_add_u32 s49, s49, {mk + O_OFF}
    s_add_u32 s7, s7, {QF}
    s_lshr_b32 s14, s2, 3
    s_and_b32 s14, s14, {15 if C["KVROT"] else 0}
    s_lshl_b32 s14, s14, 12
    s_add_u32 s9, s8, s14
    """)
    for jj in range(4):
        k(f"""
        s_add_u32 s14, s3, {jj}
        s_and_b32 s14, s14, 3
        s_lshl_b32 s14, s14, 13
        s_add_u32 s{10+jj}, s7, s14
        """)
    wait_ptrs(k)
    stamp_mid(k, 0)
    vm = VM(k)
    order = [1, 2, 3, 0]
    NRING = 4

    def ab(t):
        return 16 * (t % NRING)

    def ld_kv(t, parts=(0, 1, 2, 3)):
        if parts[0] == 0:
            if t: k(f"s_add_u32 s9, s9, 4096\ns_pack_lh_b32_b16 s9, s9, s8")
        for f in parts:
            vm.issue(f"buffer_load_dwordx4 a[{ab(t)+4*f}:{ab(t)+4*f+3}], v4, s[40:43], s9 offen offset:{f*1024}", ("k" if f < 2 else "v", t))

    def ld_q(jj):
        for h in range(2):
            vm.issue(f"buffer_load_dwordx4 v[{Q+8*jj+4*h}:{Q+8*jj+4*h+3}], v13, s[40:43], s{10+jj} offen offset:{h*1024}", ("q", jj))

    ld_kv(0, (0, 1))
    ld_q(1)
    ld_q(2)
    vm.issue(f"buffer_load_dwordx4 a[8:11], v4, s[40:43], s9 offen offset:2048", ("v", 0))
    vm.issue(f"buffer_load_dwordx4 a[12:15], v4, s[40:43], s9 offen offset:3072", ("v", 0))
    ld_q(3)
    ld_q(0)
    ld_kv(1)
    steps = [(t, jj) for t in range(16) for jj in order]
    Sb = [SA, SB]

    def qk(s, half):
        t, jj = steps[s]
        S = Sb[s & 1]
        c = "0" if half == 0 else f"v[{S}:{S+15}]"
        return f"{MF} v[{S}:{S+15}], a[{ab(t)+4*half}:{ab(t)+4*half+3}], v[{Q+8*jj+4*half}:{Q+8*jj+4*half+3}], {c}"

    def pv(s, half):
        t, jj = steps[s]
        o = O + 16 * jj
        c = "0" if (t == 0 and half == 0) else f"v[{o}:{o+15}]"
        return f"{MF} v[{o}:{o+15}], a[{ab(t)+8+4*half}:{ab(t)+8+4*half+3}], v[{P+4*half}:{P+4*half+3}], {c}"

    def need_qk(s):
        t, jj = steps[s]
        if t >= 1:
            vm.wait(("v", t))
        vm.wait(("k", t)); vm.wait(("q", jj))

    for jj in range(1, 4):
        k(f"""
        s_add_u32 s14, s3, {jj}
        s_and_b32 s14, s14, 3
        s_mul_i32 s14, s14, {3*4096}
        s_add_u32 s14, s14, {(jj-1)*4096}
        v_add_u32 v{5+jj}, s14, v4
        s_xor_b32 s14, s3, {jj}
        s_mul_i32 s14, s14, {3*4096}
        s_add_u32 s14, s14, {(jj-1)*4096}
        v_add_u32 v{9+jj}, s14, v4
        """)
    k(f"""
    s_mul_i32 s14, s3, {3*4096}
    v_add_u32 v5, s14, v4
    """)
    srd(k, 68, P_WS, WS_USED)
    k(f"""
    s_and_b32 s14, s4, 15
    s_lshl_b32 s63, s3, 12
    s_mul_i32 s64, s14, {WGS*1024}
    s_add_u32 s64, s64, s63
    s_add_u32 s64, s64, {WGUF}
    s_add_u32 s63, s63, {48*1024}
    s_and_b32 s15, s14, 7
    s_cmp_lt_u32 s15, 7
    s_cselect_b32 s70, s70, 0
    s_lshr_b32 s44, s4, 4
    s_add_u32 s45, s44, s15
    s_and_b32 s44, s44, {3 if C["ROT"] else 0}
    s_lshl_b32 s57, s44, 15
    s_lshl_b32 s15, s15, 1
    s_and_b32 s67, s3, 1
    s_add_u32 s67, s67, s15
    s_xor_b32 s65, s67, 1
    s_lshl_b32 s46, s67, 15
    s_lshl_b32 s47, s65, 15
    s_lshl_b32 s15, s3, 13
    s_add_u32 s44, s15, {WOF}
    s_add_u32 s46, s46, s44
    s_add_u32 s47, s47, s44
    s_mul_i32 s62, s67, {112*1024}
    s_mul_i32 s65, s65, {112*1024}
    s_mul_i32 s48, s3, {28*1024}
    s_add_u32 s7, s48, {WDF}
    s_add_u32 s62, s62, s7
    s_add_u32 s65, s65, s7
    s_lshr_b32 s44, s4, 4
    s_lshl_b32 s44, s44, 2
    s_add_u32 s6, s44, s3
    s_mul_i32 s5, s6, {28*1024}
    s_add_u32 s5, s5, {mk + X1_OFF}
    s_lshl_b32 s7, s6, 12
    s_add_u32 s7, s7, {mk + ST_OFF}
    s_mul_i32 s6, s6, 112
    s_mul_i32 s13, s14, 7
    s_add_u32 s6, s6, s13
    s_lshl_b32 s6, s6, 10
    s_add_u32 s6, s6, {hf}
    s_lshr_b32 s13, s14, 3
    s_lshl_b32 s13, s13, 1
    s_add_u32 s44, s44, s13
    s_lshr_b32 s13, s3, 1
    s_add_u32 s66, s44, s13
    s_xor_b32 s11, s66, 1
    s_lshl_b32 s50, s66, 15
    s_lshl_b32 s51, s11, 15
    s_add_u32 s15, s15, {mk + O_OFF}
    s_add_u32 s50, s50, s15
    s_add_u32 s51, s51, s15
    s_mul_i32 s10, s66, {112*1024}
    s_mul_i32 s11, s11, {112*1024}
    s_add_u32 s48, s48, {hf}
    s_add_u32 s10, s10, s48
    s_add_u32 s11, s11, s48
    s_mul_i32 s12, s66, 28
    s_lshl_b32 s13, s67, 1
    s_add_u32 s12, s12, s13
    s_lshl_b32 s12, s12, 10
    s_lshl_b32 s56, s66, 12
    s_lshr_b32 s13, s67, 2
    s_lshl_b32 s13, s13, 10
    s_add_u32 s56, s56, s13
    s_bfe_u32 s13, s67, 0x10001
    s_lshl_b32 s13, s13, 9
    s_add_u32 s56, s56, s13
    s_and_b32 s13, s67, 1
    s_lshl_b32 s13, s13, 3
    s_add_u32 s56, s56, s13
    s_add_u32 s56, s56, {mk + ST_OFF}
    s_mov_b32 s13, {BUDGET}
    s_mov_b32 s61, 0xffff0000
    v_mov_b32 v{RES}, -1
    v_mov_b32 v{RES+1}, -1
    v_mov_b32 v{RES+2}, -1
    v_mov_b32 v{RES+3}, -1
    """)
    for g in range(4):
        k(f"""
        s_add_u32 s14, s45, {g}
        s_and_b32 s14, s14, 3
        s_mul_i32 s{52+g}, s14, {7168 if C["ROT"] else 0}
        """)
        if not C["ROT"]: k(f"s_mov_b32 s{52+g}, {7168*g}")
    if layer == 0:
        k(f"""
        s_lshl_b32 s14, s66, 5
        v_add_u32 v14, s14, v2
        v_mul_u32_u24 v14, 896, v14
        v_lshl_add_u32 v14, v3, 3, v14
        s_min_u32 s58, s67, 13
        s_lshl_b32 s58, s58, 6
        """)
    if layer == 0 and C["CPF"] & 8:
        cpf_ld = code_pf(k, 20, 0, "mb_kernel", "mb_kernel_end", "pc2")
    k(f"""
    s_mov_b32 s14, {f2h(2.0**-60)}
    s_mov_b32 s15, {f2h(2.0**60)}
    """)

    def wdreg(u):
        return f"a[{64+4*u}:{67+4*u}]" if u < 48 else f"v[{216+4*(u-48)}:{219+4*(u-48)}]"

    def woreg(a, kk):
        i = a * 8 + kk
        return f"v[{152+4*i}:{155+4*i}]"

    pf = []
    for i in range(28):
        q = i & 3
        pre = ""
        if q == 0:
            pre = (f"s_add_u32 s57, s57, 16384\ns_cmp_eq_u32 s57, {7*16384}\ns_cselect_b32 s57, 0, s57\n" if i else "") \
                + "s_add_u32 m0, s63, s57\ns_add_u32 s48, s64, s57"
        pf.append((pre, f"buffer_load_dwordx4 v4, s[40:43], s48 offen offset:{q*1024} lds", ("w", 6)))
    for u in range(56):
        a, kbl = divmod(u, 28)
        g, c = divmod(kbl, 7)
        pre = f"s_add_u32 s48, s{62 if a == 0 else 65}, s{52+g}" if c == 0 else ("s_add_u32 s48, s48, 4096" if c == 4 else "")
        pf.append((pre, f"buffer_load_dwordx4 {wdreg(u)}, v4, s[68:71], s48 offen offset:{(c%4)*1024}", "wd"))
    for a in range(2):
        for kk in range(8):
            pre = f"s_add_u32 s48, s{46+a}, 4096" if kk == 4 else ""
            pf.append((pre, f"buffer_load_dwordx4 {woreg(a, kk)}, v4, s[68:71], s{46+a if kk < 4 else 48} offen offset:{(kk%4)*1024}", "wo"))
    late = []
    for u in range(56 - C["WD1"] - C["WD2"], 56):
        a, kbl = divmod(u, 28)
        g, c = divmod(kbl, 7)
        first = u in (56 - C["WD1"] - C["WD2"], 56 - C["WD2"])
        pre = ""
        if c in (0, 4) or first:
            pre = f"s_add_u32 s48, s{62 if a == 0 else 65}, s{52+g}" + ("\ns_add_u32 s48, s48, 4096" if c >= 4 else "")
        late.append((pre, pf[28 + u][1], "wd"))
    del pf[28 + 56 - len(late): 28 + 56]
    fills = []
    if layer == 0 and C["CPF"] & 8:
        fills.append(("", cpf_ld, "cpf"))
    for ct in range(7):
        fills.append((f"s_add_u32 s44, s6, {ct*1024}", f"buffer_store_dwordx4 v[{RES}:{RES+3}], v4, s[40:43], s44 offen{SC}", "fill"))
    if layer == 0:
        for h in range(2):
            fills.append((f"s_add_u32 s44, s12, {X2F + h*1024}", f"buffer_store_dwordx4 v[{RES}:{RES+3}], v4, s[68:71], s44 offen{SC}", "fill"))
        resl = [("", f"buffer_load_dwordx2 v[{RES+2*q}:{RES+2*q+1}], v14, s[52:55], s58 offen offset:{q*16}", "res") for q in range(4)]
    else:
        resl = [(f"s_add_u32 s44, s12, {X2F}" if h == 0 else "", f"buffer_load_dwordx4 v[{RES+4*h}:{RES+4*h+3}], v4, s[68:71], s44 offen offset:{h*1024}", "res") for h in range(2)]
    staged = [None]

    def hstore(V, text, tag, bit):
        if V: V.issue(text + SC, tag)
        else: k(text + SC)
        if C["DUAL"] >> bit & 1:
            if V: V.issue(text, tag)
            else: k(text)
            return 2
        return 0

    def prep():
        if pf and pf[0][0]:
            k(pf[0][0]); pf[0] = ("",) + pf[0][1:]

    def side(lst):
        if not lst: return
        p, ins, tag = lst.pop(0)
        k(p); vm.issue(ins, tag)

    def lds_wr(jj):
        o = O + 16 * jj
        return [f"ds_write_b128 v{5+jj}, v[{o+4*q}:{o+4*q+3}] offset:{q*1024}" for q in range(4)]

    prep()
    need_qk(0)
    stamp_mid(k, 1)
    k(qk(0, 0))
    ld_kv(2, (0, 1))
    k(qk(0, 1))
    vm.issue(f"buffer_load_dwordx4 a[40:43], v4, s[40:43], s9 offen offset:2048", ("v", 2))
    vm.issue(f"buffer_load_dwordx4 a[44:47], v4, s[40:43], s9 offen offset:3072", ("v", 2))
    k("s_nop 7")
    n = len(steps)
    nb = [1]
    for s in range(n):
        t, jj = steps[s]
        S = Sb[s & 1]
        e = lambda i: f"v_exp_f32 v{S+i}, v{S+i}"
        c = lambda d: f"v_cvt_pk_bf16_f32 v{P+d}, v{S+2*d}, v{S+2*d+1}"
        if s + 1 < n:
            need_qk(s + 1)
            k(qk(s + 1, 0))
        if t + 3 < 16:
            ld_kv(t + 3, ((s & 3),))
        else:
            side(pf)
        for i in range(4): k(e(i))
        if s > 0:
            k(pv(s - 1, 1))
        side(pf)
        for i in range(4, 8): k(e(i))
        if s + 1 < n:
            k(qk(s + 1, 1))
        prep()
        for d in range(4): k(c(d))
        for i in range(8, 11): k(e(i))
        vm.wait(("v", t))
        k(pv(s, 0))
        if fills and s % C["FE"] == 0:
            side(fills)
        elif len(pf) > (n - 1 - s) + min(12, n - 1 - s) and s >= nb[0]:
            side(pf); nb[0] = s + C["BGAP"]
        extra = []
        if t == 15 and s & 3 >= 2:
            extra = lds_wr(order[(s & 3) - 2])
        if s == n - 1:
            extra = extra + lds_wr(3)
        for i in range(11, 16):
            k(e(i))
            if extra: k(extra.pop(0))
        for d in range(4, 8):
            k(c(d))
            if extra: k(extra.pop(0))
    assert not pf and not fills, (len(pf), len(fills))
    stamp_mid(k, 2)
    k(pv(n - 1, 1))
    if layer == 0:
        srd(k, 44, P_X, XBYTES)
        resl = [(p, i.replace("s[52:55]", "s[44:47]"), t) for p, i, t in resl]
    while resl: side(resl)
    k("s_waitcnt lgkmcnt(0)\ns_barrier")
    stamp_mid(k, 3)
    R = 64
    for j in range(3):
        for q in range(4):
            r = R + 16 * j + 4 * q
            k(f"ds_read_b128 v[{r}:{r+3}], v5 offset:{j*4096+q*1024}")
    for j in range(3):
        k(f"s_waitcnt lgkmcnt({8-4*j})")
        for r in ([12] + [x for x in range(0, 16, 2) if x != 12] if j == 2 else range(0, 16, 2)):
            k(f"v_pk_add_f32 v[{O+r}:{O+r+1}], v[{O+r}:{O+r+1}], v[{R+16*j+r}:{R+16*j+r+1}]")
            if j == 2 and r == 12:
                k(f"v_mov_b32 v9, v{O+12}\nv_mov_b32 v8, v{O+12}")
            if j == 2 and r == 2:
                k("v_permlane32_swap_b32 v9, v8")
            if j == 2 and r == 4:
                k("v_rcp_f32 v9, v8\nv_cmp_nle_f32 vcc, s14, v8\nv_cmp_nge_f32 s[46:47], s15, v8")
            if j == 2 and r == 10:
                k("s_or_b64 vcc, vcc, s[46:47]")
    FB, NORM = k.name + "_fb", k.name + "_norm"
    k(f"""
    s_cbranch_vccnz {FB}
    {NORM}:
    """)
    for h in range(2):
        for r in range(8 * h, 8 * h + 8, 2):
            k(f"v_pk_mul_f32 v[{O+r}:{O+r+1}], v[{O+r}:{O+r+1}], v[8:9] op_sel:[0,1] op_sel_hi:[1,1]")
        for d in range(4 * h, 4 * h + 4):
            k(f"v_cvt_pk_bf16_f32 v{P+d}, v{O+2*d}, v{O+2*d+1}")
        hstore(vm, f"buffer_store_dwordx4 v[{P+4*h}:{P+4*h+3}], v13, s[40:43], s49 offen offset:{h*1024}", "ost", 0)
    stamp_mid(k, 4)
    stubs = []

    def chk_ops(regs):
        o = []
        for i, r in enumerate(regs):
            kind, b = r[0], int(r[2:r.index(":")])
            if kind == "a":
                o += [f"v_accvgpr_read_b32 v2, a{b}", f"v_accvgpr_read_b32 v7, a{b+2}"]
                p, q = "v2", "v7"
            else:
                p, q = f"v{b}", f"v{b+2}"
            o.append(f"v_max_u32 v3, {p}, {q}" if i == 0 else f"v_max3_u32 v3, {p}, {q}, v3")
        o.append("v_cmp_eq_u32 vcc, -1, v3")
        return o

    def ld_text(d, sreg, imm):
        t = f"buffer_load_dwordx4 {d['reg']}, v4, s[{d['srd']}:{d['srd']+3}], s{sreg} offen offset:{imm}{SC}"
        return t

    def base_add(d, sreg):
        if d.get("blk") is None:
            return f"s_add_u32 s{sreg}, s{d['base']}, {d['off']}"
        t = f"s_add_u32 s{sreg}, s{d['base']}, s{52+d['blk']}"
        return t + (f"\ns_add_u32 s{sreg}, s{sreg}, {d['off']}" if d["off"] else "")

    def spin(lb, ds, back, inline=False, more=()):
        mk_ = "" if inline else " ; retry"
        k(f"{lb}:")
        prev = None
        for d in list(ds) + list(more):
            if prev and prev[0] == (d["base"], d.get("blk")) and prev[1] <= d["off"] <= prev[1] + 3072:
                imm = d["off"] - prev[1]
            else:
                k(base_add(d, 15)); prev = ((d["base"], d.get("blk")), d["off"]); imm = 0
            if d.get("lo"): k("s_mov_b32 exec_hi, 0")
            k(ld_text(d, 15, imm) + mk_)
            if d.get("lo"): k("s_mov_b32 exec_hi, -1")
        k(f"s_sub_i32 s13, s13, 1\ns_cmp_lt_i32 s13, 0\ns_waitcnt vmcnt({len(more)}){mk_}")
        for o in chk_ops([d["reg"] for d in ds]): k(o + mk_)
        k(f"s_cbranch_scc1 {back}{mk_}\ns_cbranch_vccnz {lb}{mk_}")

    def chk_branch(ds):
        lb = k.newlabel("st")
        k(f"s_cbranch_vccnz {lb}\n{lb}_b:")
        stubs.append((lb, ds))

    def reduce3(A, R, rb, extra=None):
        k("s_waitcnt lgkmcnt(0)\ns_barrier")
        if extra: extra(0)
        for j in range(3):
            for q in range(4):
                r = R + 16 * j + 4 * q
                k(f"ds_read_b128 v[{r}:{r+3}], v{rb} offset:{j*4096+q*1024}")
        if extra: extra(1)
        for j in range(3):
            k(f"s_waitcnt lgkmcnt({8-4*j})")
            for r in range(0, 16, 2):
                k(f"v_pk_add_f32 v[{A+r}:{A+r+1}], v[{A+r}:{A+r+1}], v[{R+16*j+r}:{R+16*j+r+1}]")

    def mark_next(first, cnt, batch=99):
        k(f"""
        s_lshr_b32 s9, s4, 3
        s_lshl_b32 s9, s9, 2
        s_add_u32 s9, s9, s3
        s_lshl_b32 s9, s9, 15
        s_add_u32 s9, s9, {MK1 + first*1024}
        v_mov_b32 v16, -1
        v_mov_b32 v17, -1
        v_mov_b32 v18, -1
        v_mov_b32 v19, -1
        """)
        for i in range(cnt):
            if i and i % 4 == 0: k("s_add_u32 s9, s9, 4096")
            if i and i % batch == 0: k("s_waitcnt vmcnt(0)")
            k(f"buffer_store_dwordx4 v[16:19], v4, s[40:43], s9 offen offset:{(i%4)*1024}{SC}")

    NOR1, XJOIN = k.name + "_nor1", k.name + "_xjoin"
    AO = [80, 96, 112, 128]
    UNI = C["UNI"]
    OS = 68 if UNI == 1 else 40
    k("s_barrier" if UNI else f"s_barrier\ns_cmp_eq_u32 s70, 0\ns_cbranch_scc1 {NOR1}")
    vm.wait("res")
    for d in range(8):
        k(f"v_lshlrev_b32 v{AO[0]+2*d}, 16, v{RES+d}")
        k(f"v_and_b32 v{AO[0]+2*d+1}, s61, v{RES+d}")

    def o_d(b, kk):
        i = 2 * kk + b
        return dict(reg=f"v[{16+4*i}:{19+4*i}]", srd=OS, base=50 + b, off=kk * 1024)
    for _ in range(C["WD1"]): side(late)
    if C["OACK"]: vm.wait("ost")
    stamp_mid(k, 5)
    pl = k.newlabel("pr")
    od = [[o_d(b, kk) for b in range(2) for kk in range(4 * hh, 4 * hh + 4)] for hh in range(2)]
    spin(pl, od[0], pl + "_b", True, od[1])
    k(f"{pl}_b:")
    stamp_mid(k, 6)
    seq = []
    for kk in range(5): seq += [(s, kk) for s in (0, 1, 2, 3)]
    for kk in range(5, 8): seq += [(s, kk) for s in (1, 2, 3)]
    seq += [(0, kk) for kk in range(5, 8)]
    for idx, (slot, kk) in enumerate(seq):
        if idx == 0: vm.done = len(vm.tags); n0 = len(vm.tags)
        if idx == 11:
            k(f"s_waitcnt vmcnt({len(vm.tags) - n0})")
        if 11 <= idx <= 13:
            for o in chk_ops([d["reg"] for d in od[1]])[3 * (idx - 11): 3 * (idx - 11) + 3]: k(o)
        if idx == 16:
            chk_branch(od[1])
        a = AO[slot]
        c = "0" if (kk == 0 and slot) else f"v[{a}:{a+15}]"
        k(f"{MF} v[{a}:{a+15}], {woreg(slot & 1, kk)}, {o_d(slot >> 1, kk)['reg']}, {c}")
        if idx >= C["WD2S"] and late:
            side(late)
            if len(late) > 28 - idx: side(late)
        if idx >= 29:
            s = idx - 28
            for q in range(4):
                k(f"ds_write_b128 v{9+s}, v[{AO[s]+4*q}:{AO[s]+4*q+3}] offset:{q*1024}")
    assert not late
    k(f"s_add_u32 s9, s12, {mk + X1_OFF}")
    if UNI == 2:
        k(f"""
        s_lshr_b32 s15, s4, 3
        s_lshl_b32 s15, s15, 2
        s_add_u32 s15, s15, s3
        s_lshl_b32 s15, s15, 12
        s_add_u32 s15, s15, {DUMMY}
        s_cmp_eq_u32 s70, 0
        s_cselect_b32 s9, s15, s9
        s_add_u32 s15, s15, 2048
        s_cmp_eq_u32 s70, 0
        s_cselect_b32 s56, s15, s56
        """)
    reduce3(AO[0], 16, 5)
    for h in range(2):
        for d in range(4 * h, 4 * h + 4):
            k(f"v_cvt_pk_bf16_f32 v{RES+d}, v{AO[0]+2*d}, v{AO[0]+2*d+1}")
        hstore(vm, f"buffer_store_dwordx4 v[{RES+4*h}:{RES+4*h+3}], v4, s[{OS}:{OS+3}], s9 offen offset:{h*1024}", "xst", 1)
    def row_stats(A, T, soff, V):
        pr = lambda i: f"v[{A+2*i}:{A+2*i+1}]"
        k(f"v_pk_add_f32 v[{T}:{T+1}], {pr(0)}, {pr(1)}")
        k(f"v_pk_mul_f32 v[{T+2}:{T+3}], {pr(0)}, {pr(0)}")
        k(f"v_pk_fma_f32 v[{T+2}:{T+3}], {pr(1)}, {pr(1)}, v[{T+2}:{T+3}]")
        for i in range(2, 8):
            k(f"v_pk_add_f32 v[{T}:{T+1}], v[{T}:{T+1}], {pr(i)}")
            k(f"v_pk_fma_f32 v[{T+2}:{T+3}], {pr(i)}, {pr(i)}, v[{T+2}:{T+3}]")
        k(f"""
        v_add_f32 v{T}, v{T}, v{T+1}
        v_add_f32 v{T+1}, v{T+2}, v{T+3}
        v_mov_b32 v{T+2}, v{T}
        v_mov_b32 v{T+3}, v{T+1}
        s_nop 0
        v_permlane32_swap_b32 v{T}, v{T+2}
        v_permlane32_swap_b32 v{T+1}, v{T+3}
        s_mov_b32 exec_hi, 0
        v_pk_add_f32 v[{T}:{T+1}], v[{T}:{T+1}], v[{T+2}:{T+3}]
        """)
        t = f"buffer_store_dwordx2 v[{T}:{T+1}], v4, s[{OS}:{OS+3}], s{soff} offen{SC}"
        if V: V.issue(t, "sst")
        else: k(t)
        k("s_mov_b32 exec_hi, -1")
    row_stats(AO[0], 6, 56, vm)
    k(f"{XJOIN}:\ns_barrier")
    stamp_mid(k, 7)
    w_next = [28]

    def ld_w():
        i = w_next[0]; w_next[0] += 1
        G, q = i >> 2, i & 3
        if q == 0:
            off = (16 * G + 48) % NS - 48
            k(f"s_{'add' if off >= 0 else 'sub'}_u32 m0, s63, {abs(off)*1024}\ns_add_u32 s48, s64, {16*G*1024}")
        vm.issue(f"buffer_load_dwordx4 v4, s[40:43], s48 offen offset:{q*1024} lds", ("w", G))
        return 2 + 2 * (q == 0)
    for _ in range(C['W_PRE']): ld_w()
    A4, WR, HP, MB, R2 = 16, 128, 160, 168, 172
    k(f"""
    v_add_u32 v5, 0x10000, v4
    v_add_u32 v6, 0x20000, v4
    v_mov_b32 v{HP+12}, 0
    v_mov_b32 v{HP+13}, 0
    v_mov_b32 v{HP+14}, 0
    v_mov_b32 v{HP+15}, 0
    """)
    R5B = 96 * 1024
    if layer == 0:
        k(f"""
        s_mul_i32 s50, s67, {28*1024}
        s_xor_b32 s51, s67, 1
        s_mul_i32 s51, s51, {28*1024}
        s_mul_i32 s15, s3, {7*1024}
        s_add_u32 s15, s15, {WQF}
        s_add_u32 s50, s50, s15
        s_add_u32 s51, s51, s15
        s_lshl_b32 s60, s67, 7
        s_add_u32 s60, s60, {CSQ}
        s_mul_i32 s59, s3, {14*1024}
        s_cmp_eq_u32 s3, 3
        s_cselect_b32 s59, {144*1024}, s59
        """)
    cur = {}

    def stream_ld(d, tag):
        t = d["tmp"]
        c = cur.get(t)
        n = 2
        key = (d["base"], d.get("blk"))
        if not (c and c[0] == key and c[1] <= d["off"] <= c[1] + 3072):
            x = base_add(d, t)
            k(x); n += x.count("\n") + 1
            cur[t] = c = (key, d["off"])
        if d.get("lo"): k("s_mov_b32 exec_hi, 0")
        vm.issue(ld_text(d, t, d["off"] - c[1]), tag)
        if d.get("lo"): k("s_mov_b32 exec_hi, -1"); n += 2
        return n

    lg = LG()
    NR, RA = 8, 6
    A5 = [64, 96, 80, 112]

    def xreg(kb):
        if kb == 28: return f"v[{MB}:{MB+3}]"
        i = KO.index(kb)
        if i < 10: return f"v[{176+4*i}:{179+4*i}]"
        if i < 12: return f"v[{8+4*(i-10)}:{11+4*(i-10)}]"
        return f"a[{4*(i-12)}:{4*(i-12)+3}]"

    def x_d(kb):
        return dict(reg=xreg(kb), srd=40, base=5, off=kb * 1024, tmp=44)

    kbo = [7 * g + c for g in range(4) for c in range(3)] + [7 * g + c for g in range(4) for c in (3, 4)] + [7 * g + c for g in range(4) for c in (5, 6)]
    p5 = []
    for i in range(4): p5 += [(0, i), (2, i)]
    for i in range(4): p5 += [(1, i), (3, i)]
    for i in range(4, 25):
        p5 += [(0, i), (2, i), (1, i), (3, i)]
    for i in (25, 26, 27):
        p5 += [(1, i), (2, i), (3, i)]
    p5 += [(0, 25), (0, 26), (0, 27)]
    assert len(p5) == 112
    NT = N4 + 112
    land = [(f"v[{16+4*i}:{19+4*i}]", 110) for i in range(12)] \
        + [(xreg(kb), 146 + 2 * kb) for kb in range(28)] + [(f"v[{128+4*i}:{131+4*i}]", N4) for i in range(8)] \
        + [(f"v[{16+4*i}:{19+4*i}]", N4 + 16) for i in range(8)]
    assert len(land) == 56
    h_use = {}
    for s, (slot, i) in enumerate(p5):
        h_use.setdefault(i, N4 + s)

    def h_d(hi):
        i, b = hi >> 1, hi & 1
        g, c = divmod(kbo[i], 7)
        return dict(reg=land[hi][0], srd=68, base=10 + b, blk=g, off=c * 1024, tmp=44 + b)

    st_d = [dict(reg=f"v[{HP+4*q}:{HP+4*q+3}]", srd=40, base=7, off=q * 1024, tmp=14, lo=(q == 3)) for q in range(4)]

    items = []
    LEAD = C["LEAD"]
    XB = 4 + C["X_BURST"]
    for i in range(XB, 28):
        items.append((3 * i - LEAD, -1, 3 * (i & ~1) - 5, (lambda i=i: stream_ld(x_d(KO[i]), ("x", i)))))
    for q in range(4):
        items.append((60 - LEAD, -1, 57, (lambda q=q: stream_ld(st_d[q], "st"))))
    bars = sorted(C["BARS"])
    assert 48 <= bars[0] and 152 <= bars[-1] <= 160 - RA
    assert len(bars) == 3 and bars[1] <= 112 - RA
    for i in range(w_next[0], 40):
        items.append((bars[1] - LEAD + i * 0.01, -1, bars[1] - 4, ld_w))
    for i in range(40, 52):
        items.append((bars[-1] - LEAD - 10 + i * 0.01, bars[0], bars[-1] - 4, ld_w))
    for hi in range(56):
        part = 0 if hi < 24 else (1 if hi < 40 else 2)
        items.append((h_use[hi >> 1] - LEAD, max(C["HT"][part], land[hi][1]), h_use[hi >> 1] - 5, (lambda hi=hi: stream_ld(h_d(hi), ("h", hi >> 1)))))
    CS = 160

    def p1b_prefetch(V):
        o = []
        for a in range(2):
            for kbl in range(7):
                def f(a=a, kbl=kbl):
                    if kbl % 4 == 0:
                        k(f"s_add_u32 m0, s59, {(a*7+kbl)*1024}\ns_add_u32 s48, s{50+a}, {kbl*1024}")
                    V.issue(f"buffer_load_dwordx4 v4, s[40:43], s48 offen offset:{(kbl%4)*1024} lds", "wq")
                    return 2 + 2 * (kbl % 4 == 0)
                o.append(f)
        return o

    def cs_prefetch(V):
        k(f"v_lshrrev_b32 v0, 5, v1\nv_lshlrev_b32 v0, 4, v0")
        for q in range(4):
            V.issue(f"buffer_load_dwordx4 v[{CS+4*q}:{CS+4*q+3}], v0, s[40:43], s60 offen offset:{q*32}", "wq")
        return 10
    if layer == 0:
        for f in p1b_prefetch(vm):
            items.append((NT + 10, bars[-1], NT + 10, f))
        items.append((NT + 11, N4 + 10, NT + 11, lambda: cs_prefetch(vm)))
    items.sort(key=lambda t: t[0])
    queue = list(items)

    def issue_next(n):
        for idx, it in enumerate(queue):
            if it[1] <= n:
                queue.pop(idx); return it[3]()
        return 0

    def force(n):
        c = 0
        while any(it[2] <= n for it in queue):
            c += issue_next(n)
        return c

    def rd(f):
        slot = ((f + 48) % NS) * 1024
        base = [4, 5, 6][slot >> 16]
        r = WR + 4 * (f % NR)
        lg.issue(("w", f))
        k(f"ds_read_b128 v[{r}:{r+3}], v{base} offset:{slot & 0xffff}")

    fill = []
    vfill = []

    def epi_ops(ct, V, gaps=3, pk=False):
        a = A4 + 16 * ct
        hp = HP + 4 * (ct & 1)
        o = ["GAP"] * gaps
        if C["NOPK"] and not pk:
            for d in range(4):
                for r in (2 * d, 2 * d + 1):
                    o.append(f"v_mul_f32 v{a+r}, v{a+r}, v{a+8+r}")
                for r in (2 * d, 2 * d + 1):
                    o.append(f"v_mul_f32 v{a+r}, v{R2}, v{a+r}")
                o.append(f"v_cvt_pk_bf16_f32 v{hp+d}, v{a+2*d}, v{a+2*d+1}")
        else:
            for r in range(0, 8, 2):
                o.append(f"v_pk_mul_f32 v[{a+r}:{a+r+1}], v[{a+r}:{a+r+1}], v[{a+8+r}:{a+9+r}]")
            for r in range(0, 8, 2):
                o.append(f"v_pk_mul_f32 v[{a+r}:{a+r+1}], v[{a+r}:{a+r+1}], v[{R2}:{R2+1}]")
            for d in range(4):
                o.append(f"v_cvt_pk_bf16_f32 v{hp+d}, v{a+2*d}, v{a+2*d+1}")

        def st():
            k(f"s_add_u32 s14, s6, {ct*1024}")
            cur.pop(14, None)
            return 3 + hstore(V, f"buffer_store_dwordx4 v[{hp}:{hp+3}], v4, s[40:43], s14 offen", ("hst", ct), 2)
        o.append(st)
        return o

    def run(lst, room):
        used = 0
        while lst and used < room:
            f = lst.pop(0)
            if f == "GAP":
                break
            if callable(f): used += f() or 0
            else:
                k(f); used += f.count("\n") + 1
        return used

    def add_val(tag, ds):
        def w():
            s_ = vm.waitstr(tag)
            if s_: k(s_)
            return 1 if s_ else 0

        def b():
            chk_branch(ds); done_val.add(tag); return 1
        vfill.extend([w] + chk_ops([d["reg"] for d in ds]) + ["GAP", b])

    T0 = HP + 4
    stat_ops = [f"v_pk_add_f32 v[{HP+4*q}:{HP+4*q+1}], v[{HP+4*q}:{HP+4*q+1}], v[{HP+4*q+2}:{HP+4*q+3}]" for q in range(4)] + [
        f"v_pk_add_f32 v[{HP}:{HP+1}], v[{HP}:{HP+1}], v[{HP+4}:{HP+5}]",
        f"v_pk_add_f32 v[{HP+8}:{HP+9}], v[{HP+8}:{HP+9}], v[{HP+12}:{HP+13}]",
        f"v_pk_add_f32 v[{HP}:{HP+1}], v[{HP}:{HP+1}], v[{HP+8}:{HP+9}]",
        f"v_mov_b32 v{T0}, v{HP}", f"v_mov_b32 v{T0+1}, v{HP+1}", "GAP",
        f"v_permlane32_swap_b32 v{HP}, v{T0}", f"v_permlane32_swap_b32 v{HP+1}, v{T0+1}",
        f"v_pk_add_f32 v[{HP}:{HP+1}], v[{HP}:{HP+1}], v[{T0}:{T0+1}]",
        f"v_mul_f32 v{HP}, {f2h(-1.0/448)}, v{HP}",
        f"v_mul_f32 v{HP+1}, {f2h(1.0/448)}, v{HP+1}",
        f"v_fma_f32 v{HP+1}, -v{HP}, v{HP}, v{HP+1}",
        f"v_max_f32 v{HP+1}, 0, v{HP+1}",
        f"v_add_f32 v{HP+1}, {f2h(1e-5)}, v{HP+1}",
        f"v_rcp_f32 v{R2}, v{HP+1}",
        f"v_cvt_pk_bf16_f32 v{MB}, v{HP}, v{HP}",
        f"v_lshlrev_b32 v{T0}, 16, v{MB}",
        f"v_sub_f32 v{T0}, v{HP}, v{T0}",
        f"v_mov_b32 v{R2+1}, v{R2}",
        f"s_mov_b32 exec_lo, 0\nv_cvt_pk_bf16_f32 v{MB}, v{T0}, v{T0}\ns_mov_b32 exec_lo, -1",
        f"v_mov_b32 v{MB+1}, v{MB}", f"v_mov_b32 v{MB+2}, v{MB}", f"v_mov_b32 v{MB+3}, v{MB}",
    ]

    if C["NOPK"]:
        import re
        so = []
        for o in stat_ops:
            m = re.match(r"v_pk_add_f32 v\[(\d+):\d+\], v\[(\d+):\d+\], v\[(\d+):\d+\]", o)
            if m:
                d, x, y = map(int, m.groups())
                so += [f"v_add_f32 v{d}, v{x}, v{y}", f"v_add_f32 v{d+1}, v{x+1}, v{y+1}"]
            else: so.append(o)
        stat_ops = so
    if C["XACK"]: vm.wait("xst")
    stamp_mid(k, 9)
    pl = k.newlabel("pr")
    for f in range(RA): rd(f)
    spin(pl, [x_d(kb) for kb in KO[:4]], pl + "_b", True, [x_d(kb) for kb in KO[4:XB]])
    k(f"{pl}_b:")
    vm.done = len(vm.tags)
    for i in range(4, XB): vm.tags.append(("x", i))
    stamp_mid(k, 8)
    nxt = 0; pi = [0]
    NOROLE = k.name + "_norole"
    P1B = k.name + "_p1b"
    val = {}
    for i in range(4, 28, 2):
        val.setdefault(3 * i - (4 if i < 12 else 5), []).append((("x", i + 1), [x_d(KO[i]), x_d(KO[i + 1])]))
    for i in range(28):
        val.setdefault(h_use[i] - (5 if land[2 * i][0][0] == "a" or land[2 * i + 1][0][0] == "a" else 4), []).append((("h", i), [h_d(2 * i), h_d(2 * i + 1)]))
    val.setdefault(58, []).append(("st", st_d))
    done_val = set(("x", i) for i in range(4))
    for n in range(NT):
        if n in SS: common.stamp_mid(k, [i for i in range(1, 20) if i != 8][list(SS).index(n)])
        used = force(n)
        if n in bars:
            if n == bars[1]: vm.wait(("w", 9))
            if n == bars[-1]: vm.wait(("w", 12))
            k("s_barrier"); used += 2
        if n + RA < N4:
            rd(n + RA); used += 1
        for v in val.get(n, []): add_val(*v)
        used += run(vfill, 3)
        if "st" in done_val and stat_ops:
            fill.extend(stat_ops); stat_chk = stat_ops; stat_ops = None
        if n < N4:
            ct, kb = p4_fk(n)
            if n % 2 == 0:
                w = lg.waitstr(("w", min(n + 1, N4 - 1)))
                if w: k(w); used += 1
            r = WR + 4 * (n % NR)
            a = A4 + 16 * ct
            first = (kb == KO[0]) if ct < 3 else (kb == 0)
            if kb < 28: assert ("x", KO.index(kb) | 1) in done_val, n
            else: assert stat_ops is None and not any(o in stat_chk for o in fill if isinstance(o, str) and o != "GAP")
            c = "0" if first else f"v[{a}:{a+15}]"
            k(f"{MF} v[{a}:{a+15}], v[{r}:{r+3}], {xreg(kb)}, {c}")
            if n == 86: stamp_mid(k, 10)
            if n == 144: stamp_mid(k, 11)
            if kb == 28 and ct != 5:
                if ct == 6:
                    fill.extend(epi_ops(5, vm, gaps=1) + epi_ops(6, vm, gaps=0))
                else:
                    fill.extend(epi_ops(ct, vm, gaps=3 if ct in (0, 3) else 0))
            if n == 150:
                for d in range(8):
                    fill.append(f"v_lshlrev_b32 v{A5[0]+2*d}, 16, v{RES+d}")
                    fill.append(f"v_and_b32 v{A5[0]+2*d+1}, s61, v{RES+d}")
        else:
            slot, i = p5[n - N4]
            hi = 2 * i + (slot >> 1)
            u = (slot & 1) * 28 + kbo[i]
            assert ("h", i) in done_val, n
            a = A5[slot]
            c = "0" if (i == 0 and slot != 0) else f"v[{a}:{a+15}]"
            if n - N4 == 8:
                assert not fill
            k(f"{MF} v[{a}:{a+15}], {wdreg(u)}, {land[hi][0]}, {c}")
            if n == N4 + 48: stamp_mid(k, 13)
            if n == N4 + 80: stamp_mid(k, 14)
            if n == NT - 7:
                assert not vfill
                for s in range(1, 4):
                    k(f"""
                    s_xor_b32 s9, s3, {s}
                    s_mul_i32 s9, s9, {3*4096}
                    s_add_u32 s9, s9, {R5B + (s-1)*4096}
                    v_add_u32 v{4+s}, s9, v4
                    """)
                k(f"s_mul_i32 s9, s3, {3*4096}\ns_add_u32 s9, s9, {R5B}\nv_add_u32 v2, s9, v4")
            if n >= NT - 3:
                s = n - (NT - 3) + 1
                for q in range(4):
                    k(f"ds_write_b128 v{4+s}, v[{A5[s]+4*q}:{A5[s]+4*q+3}] offset:{q*1024}")
        if n == N4 - 1:
            stamp_mid(k, 12)
            k(f"s_cmp_eq_u32 s70, 0\ns_cbranch_scc1 {NOROLE}")
        if n >= nxt and queue and used <= C["BUD"] - 2:
            c = issue_next(n)
            if c:
                used += c
                pc = C["PACE"] if n < N4 else C["PACE5"]
                nxt = n + pc[pi[0] % len(pc)]; pi[0] += 1
        run(fill, C["BUD"] - used if not (N4 - 1 <= n < N4 + 8) else C["E56"])
    assert not fill and not vfill
    print("leftover", len(queue))
    while queue: issue_next(NT)
    stamp_mid(k, 16)
    if layer == 1:
        srd(k, 44, P_OUT, XBYTES)
        k(f"""
        v_and_b32 v7, 31, v1
        s_lshl_b32 s9, s66, 5
        v_add_u32 v7, s9, v7
        v_mul_u32_u24 v7, 896, v7
        v_lshrrev_b32 v3, 5, v1
        v_lshl_add_u32 v7, v3, 4, v7
        s_lshl_b32 s9, s67, 6
        """)
    reduce3(A5[0], 16, 2)
    PK = 8
    for d in range(8):
        k(f"v_cvt_pk_bf16_f32 v{PK+d}, v{A5[0]+2*d}, v{A5[0]+2*d+1}")
    dbg = f"s_sub_u32 s91, {BUDGET + 1}, s13\ns_add_u32 s91, s91, s92" if common.STAMP else ""
    if layer == 1:
        k(f"""
        v_permlane32_swap_b32 v{PK}, v{PK+2}
        v_permlane32_swap_b32 v{PK+1}, v{PK+3}
        v_permlane32_swap_b32 v{PK+4}, v{PK+6}
        v_permlane32_swap_b32 v{PK+5}, v{PK+7}
        buffer_store_dwordx4 v[{PK}:{PK+3}], v7, s[44:47], s9 offen
        buffer_store_dwordx4 v[{PK+4}:{PK+7}], v7, s[44:47], s9 offen offset:32
        {dbg}
        s_endpgm
        """)
    else:
        k(f"s_add_u32 s9, s12, {X2F}")
        for h in range(2):
            hstore(None, f"buffer_store_dwordx4 v[{PK+4*h}:{PK+4*h+3}], v4, s[40:43], s9 offen offset:{h*1024}", None, 3)
        stamp_mid(k, 17)
        RB, SB_ = 48 * 1024, 42 * 1024
        k(f"""
        {P1B}:
        v_add_u32 v13, s59, v4
        s_waitcnt vmcnt(2)
        """)
        for i in range(14):
            k(f"ds_read_b128 a[{4*i}:{4*i+3}], v13 offset:{i*1024}")
        k(f"""
        s_mul_i32 s10, s66, {28*1024}
        s_xor_b32 s11, s66, 1
        s_mul_i32 s11, s11, {28*1024}
        s_mul_i32 s9, s3, {7*1024}
        s_add_u32 s9, s9, {X2F}
        s_add_u32 s10, s10, s9
        s_add_u32 s11, s11, s9
        s_lshr_b32 s4, s66, 1
        s_and_b32 s12, s66, 1
        s_lshr_b32 s5, s67, 1
        s_mov_b32 s48, s13
        s_and_b32 s13, s67, 1
        v_and_b32 v2, 31, v1
        s_mov_b32 s14, 0x3f803f80
        """)
        qkv_setup(k, KVF1)
        k("s_mov_b32 s13, s48")
        for s in range(1, 4):
            k(f"""
            s_xor_b32 s9, s3, {s}
            s_mul_i32 s9, s9, {3*4096}
            s_add_u32 s9, s9, {(s-1)*4096}
            s_add_u32 s8, s9, {RB}
            v_add_u32 v{4+s}, s8, v4
            s_lshr_b32 s9, s9, 3
            s_add_u32 s9, s9, {SB_}
            v_lshl_add_u32 v{8+s}, v1, 3, s9
            """)
        k(f"s_mul_i32 s9, s3, {3*4096}\ns_add_u32 s8, s9, {RB}\nv_add_u32 v12, s8, v4\ns_lshr_b32 s9, s9, 3\ns_add_u32 s9, s9, {SB_}\nv_lshl_add_u32 v8, v1, 3, s9")
        if C["DBGP"] & 1: stamp_mid(k, 3)
        if C["X2ACK"]: k("s_waitcnt vmcnt(0)")
        if C["DBGP"] & 1: stamp_mid(k, 4)
        ko2 = [0, 2, 4, 6, 1, 3, 5]

        def x2_d(b, kbl):
            i = 2 * kbl + b
            return dict(reg=f"v[{176+4*i}:{179+4*i}]", srd=40, base=10 + b, off=kbl * 1024)
        pl = k.newlabel("pr")
        d8 = [x2_d(b, kbl) for b in range(2) for kbl in ko2[:4]]
        d6 = [x2_d(b, kbl) for b in range(2) for kbl in ko2[4:]]
        spin(pl, d8, pl + "_b", True, d6)
        k(f"{pl}_b:\ns_waitcnt lgkmcnt(0)")
        stamp_mid(k, 18)
        SS1 = 24
        dots = []
        for kbl in ko2:
            for b in range(2):
                r0 = 176 + 4 * (2 * kbl + b)
                for d in range(4):
                    fst = kbl == 0 and d == 0
                    dots.append(f"v_dot2_f32_bf16 v{SS1+2*b}, v{r0+d}, s14, {'0' if fst else 'v%d' % (SS1+2*b)}")
                    dots.append(f"v_dot2_f32_bf16 v{SS1+2*b+1}, v{r0+d}, v{r0+d}, {'0' if fst else 'v%d' % (SS1+2*b+1)}")
        seq = []
        for kbl in ko2[:4]:
            seq += [(s, kbl) for s in (0, 1, 2, 3)]
        for kbl in ko2[4:]:
            seq += [(s, kbl) for s in (1, 2, 3)]
        seq += [(0, kbl) for kbl in ko2[4:]]
        ck = chk_ops([d["reg"] for d in d6])
        for idx, (slot, kbl) in enumerate(seq):
            if idx == 12:
                k("s_waitcnt vmcnt(0)")
            if idx >= 12:
                for _ in range(4):
                    if ck: k(ck.pop(0))
            if idx == 16:
                chk_branch(d6)
            u = (slot & 1) * 7 + kbl
            a = A5[slot]
            c = "0" if kbl == 0 else f"v[{a}:{a+15}]"
            k(f"{MF} v[{a}:{a+15}], a[{4*u}:{4*u+3}], {x2_d(slot >> 1, kbl)['reg']}, {c}")
            if idx >= 25:
                s = idx - 24
                for q in range(4):
                    k(f"ds_write_b128 v{4+s}, v[{A5[s]+4*q}:{A5[s]+4*q+3}] offset:{q*1024}")
        stamp_mid(k, 15)
        R = 112
        for o in dots[:C["DSPLIT"]]: k(o)
        k("s_waitcnt lgkmcnt(0)\ns_barrier")
        rr = lambda j: [A5[1], A5[2], A5[3]][j]
        for j in range(3):
            for q in range(4):
                r = rr(j) + 4 * q
                k(f"ds_read_b128 v[{r}:{r+3}], v12 offset:{j*4096+q*1024}")
        for o in dots[C["DSPLIT"]:]: k(o)
        k("v_lshrrev_b32 v3, 5, v1")
        for s in range(1, 4):
            k(f"ds_write_b64 v{8+s}, v[{SS1+2*(s>>1)}:{SS1+2*(s>>1)+1}]")
        k("s_waitcnt lgkmcnt(0)\ns_barrier")
        for j in range(3):
            k(f"ds_read_b64 v[{16+2*j}:{17+2*j}], v8 offset:{j*512}")
        for j in range(3):
            for r in range(0, 16, 2):
                k(f"v_pk_add_f32 v[{A5[0]+r}:{A5[0]+r+1}], v[{A5[0]+r}:{A5[0]+r+1}], v[{rr(j)+r}:{rr(j)+r+1}]")
        k(f"""
        s_waitcnt lgkmcnt(0)
        v_pk_add_f32 v[16:17], v[16:17], v[18:19]
        v_pk_add_f32 v[{SS1}:{SS1+1}], v[{SS1}:{SS1+1}], v[20:21]
        v_pk_add_f32 v[30:31], v[16:17], v[{SS1}:{SS1+1}]
        v_mov_b32 v16, v30
        v_mov_b32 v17, v31
        s_nop 0
        v_permlane32_swap_b32 v30, v16
        v_permlane32_swap_b32 v31, v17
        v_pk_add_f32 v[30:31], v[30:31], v[16:17]
        """)
        stats_finish(k, 30, 31)
        qkv_epilogue(k, A5[0], CS)
        k(dbg)
        k("s_endpgm")
    if not UNI:
        k(f"{NOR1}:")
        if layer == 0: mark_next(0, C["MK1"], C["MKB1"])
        k(f"s_branch {XJOIN}")
    k(f"{NOROLE}:\ns_nop 15")
    V3 = VM(k)
    for f in epi_ops(5, V3, gaps=0, pk=True) + epi_ops(6, V3, gaps=0, pk=True):
        if callable(f): f()
        else: k(f)
    if layer == 0:
        k("s_waitcnt vmcnt(0)")
        for f in p1b_prefetch(V3): f()
        cs_prefetch(V3)
        m1 = 0 if UNI else C["MK1"]
        mark_next(m1, 32 - m1, C["MKB"])
        k(f"s_waitcnt vmcnt(0)\ns_barrier\ns_branch {P1B}")
    else:
        k("s_endpgm")
    for lb, ds in stubs:
        spin(lb, ds, lb + "_b")
        k(f"s_branch {lb}_b ; retry")
    KR = 64
    S = 80
    k(f"""
    {FB}:
    v_mov_b32 v14, 0xff800000
    s_mov_b32 s9, {kvf}
    {FB}_l1:
    buffer_load_dwordx4 v[{KR}:{KR+3}], v4, s[40:43], s9 offen
    buffer_load_dwordx4 v[{KR+4}:{KR+7}], v4, s[40:43], s9 offen offset:1024
    s_waitcnt vmcnt(0)
    {MF} v[{S}:{S+15}], v[{KR}:{KR+3}], v[{Q}:{Q+3}], 0
    {MF} v[{S}:{S+15}], v[{KR+4}:{KR+7}], v[{Q+4}:{Q+7}], v[{S}:{S+15}]
    """)
    for r in range(0, 16, 2):
        k(f"v_max3_f32 v14, v{S+r}, v{S+r+1}, v14")
    k(f"""
    s_add_u32 s9, s9, 4096
    s_cmp_lt_u32 s9, {kvf + 64*4096}
    s_cbranch_scc1 {FB}_l1
    v_mov_b32 v8, v14
    s_nop 1
    v_permlane32_swap_b32 v14, v8
    v_max_f32 v14, v14, v8
    """)
    for r in range(16):
        k(f"v_mov_b32 v{O+r}, 0")
    k(f"""
    s_mov_b32 s9, {kvf}
    {FB}_l2:
    buffer_load_dwordx4 v[{KR}:{KR+3}], v4, s[40:43], s9 offen
    buffer_load_dwordx4 v[{KR+4}:{KR+7}], v4, s[40:43], s9 offen offset:1024
    buffer_load_dwordx4 v[{KR+8}:{KR+11}], v4, s[40:43], s9 offen offset:2048
    buffer_load_dwordx4 v[{KR+12}:{KR+15}], v4, s[40:43], s9 offen offset:3072
    s_waitcnt vmcnt(0)
    {MF} v[{S}:{S+15}], v[{KR}:{KR+3}], v[{Q}:{Q+3}], 0
    {MF} v[{S}:{S+15}], v[{KR+4}:{KR+7}], v[{Q+4}:{Q+7}], v[{S}:{S+15}]
    """)
    for r in range(16):
        k(f"v_sub_f32 v{S+r}, v{S+r}, v14")
    for r in range(16):
        k(f"v_exp_f32 v{S+r}, v{S+r}")
    for d in range(8):
        k(f"v_cvt_pk_bf16_f32 v{P+d}, v{S+2*d}, v{S+2*d+1}")
    k(f"""
    {MF} v[{O}:{O+15}], v[{KR+8}:{KR+11}], v[{P}:{P+3}], v[{O}:{O+15}]
    {MF} v[{O}:{O+15}], v[{KR+12}:{KR+15}], v[{P+4}:{P+7}], v[{O}:{O+15}]
    s_add_u32 s9, s9, 4096
    s_cmp_lt_u32 s9, {kvf + 64*4096}
    s_nop 7
    s_cbranch_scc1 {FB}_l2
    s_nop 7
    v_mov_b32 v9, v{O+12}
    v_mov_b32 v8, v{O+12}
    s_nop 1
    v_permlane32_swap_b32 v9, v8
    v_rcp_f32 v9, v8
    s_nop 1
    s_branch {NORM}
    """)
    epilogue(k)
    return k, dict(grid=256, block=256, lds=LDS)
```

```python
from asmlib import *
from layout import *

P_X, P_WQ, P_WK, P_WV, P_WO, P_BX, P_WG, P_WU, P_WD, P_OUT, P_DBG, P_WS = [16 + 2 * i for i in range(12)]
S_WS = 40
S_WAVE = 3


STAMP = False
STAMP_BASE = 0x3000000
_stamp_slot = [0]


NMID = 20
def stamp_mid(k, idx):
    if STAMP:
        k(f"s_memtime s[96:97]\ns_waitcnt lgkmcnt(0)\ns_mov_b32 s{72+idx}, s96")


def prologue(k, nwg, pf=None):
    if STAMP:
        k("s_memtime s[92:93]\ns_memrealtime s[94:95]")
        for i in range(NMID): k(f"s_mov_b32 s{72+i}, 0")
    k(f"""
    s_cmp_ge_u32 s2, {nwg}
    s_cbranch_scc1 {k.name}_end
    s_load_dwordx16 s[16:31], s[0:1], 0
    s_load_dwordx8 s[32:39], s[0:1], 64
    """)
    if pf: k(code_pf(k, *pf))
    k(f"""
    v_and_b32 v1, 63, v0
    v_lshrrev_b32 v2, 6, v0
    s_nop 0
    v_readfirstlane_b32 s3, v2
    """)


def code_pf(k, S, T, frm, to, tag, lanes=5, U=None):
    lb = f"{k.name}_{tag}"
    k(f"s_getpc_b64 s[{S}:{S+1}]\n{lb}:")
    if frm is None:
        frm = lb
    else:
        k(f"s_add_u32 s{S}, s{S}, {frm}-{lb}\ns_addc_u32 s{S+1}, s{S+1}, 0")
    k(f"""
    s_lshr_b32 s{S+2}, s2, 3
    s_mul_i32 s{S+2}, s{S+2}, {4 * lanes * 128}
    """)
    if U is None: U = T + 1
    k(f"""
    v_lshrrev_b32 v{T}, 6, v0
    v_mul_u32_u24 v{T}, {lanes}, v{T}
    v_and_b32 v{U}, 63, v0
    v_add_u32 v{T}, v{T}, v{U}
    v_lshlrev_b32 v{T}, 7, v{T}
    v_sub_u32 v{U}, {lanes - 1}, v{U}
    v_and_b32 v{U}, 0x40000000, v{U}
    v_add3_u32 v{T}, v{T}, v{U}, s{S+2}
    s_and_b32 s{S+1}, s{S+1}, 0xffff
    s_mov_b32 s{S+2}, {to}-{frm}
    s_mov_b32 s{S+3}, 0x20000
    """)
    return f"buffer_load_dword v{T}, v{T}, s[{S}:{S+3}], 0 offen"


def wait_ptrs(k):
    k("s_waitcnt lgkmcnt(0)")
    srd(k, S_WS, P_WS, WS_USED)


def srd(k, s, ptr, size):
    k(f"""
    s_mov_b32 s{s}, s{ptr}
    s_and_b32 s{s+1}, s{ptr+1}, 0xffff
    s_mov_b32 s{s+2}, {size}
    s_mov_b32 s{s+3}, 0x20000
    """)


def epilogue(k):
    k.name = k.kname
    if STAMP:
        k.lines = [(f"s_branch {k.name}_stamp" if l == "s_endpgm" else l) for l in k.lines]
        k(f"""
        {k.name}_stamp:
        s_mov_b64 exec, -1
        s_waitcnt vmcnt(0) lgkmcnt(0)
        s_memtime s[96:97]
        s_memrealtime s[98:99]
        s_load_dwordx2 s[8:9], s[0:1], 80
        s_waitcnt lgkmcnt(0)
        s_mov_b32 s4, s{P_WS}
        s_and_b32 s5, s{P_WS+1}, 0xffff
        s_mov_b32 s6, 0x4000000
        s_mov_b32 s7, 0x20000
        s_lshr_b32 s8, s8, 9
        s_and_b32 s8, s8, 31
        s_lshl_b32 s8, s8, 8
        s_add_u32 s8, s8, s2
        s_lshl_b32 s8, s8, 2
        s_add_u32 s8, s8, s3
        s_lshl_b32 s8, s8, 7
        s_add_u32 s8, s8, {STAMP_BASE}
        v_mov_b32 v0, s92
        v_mov_b32 v1, s96
        v_mov_b32 v2, s94
        v_mov_b32 v3, s98
        """)
        for i in range(NMID): k(f"v_mov_b32 v{4+i}, s{72+i}")
        k("v_mov_b32 v24, 0\ns_mov_b64 exec, 1")
        for q in range(6):
            k(f"buffer_store_dwordx4 v[{4*q}:{4*q+3}], v24, s[4:7], s8 offen offset:{16*q}")
        k("s_endpgm")
    k(f"""
    {k.name}_end:
    s_endpgm
    """)


class VM:
    def __init__(self, k):
        self.k = k; self.tags = []; self.done = 0

    def issue(self, text, tag=None):
        self.k(text); self.tags.append(tag)

    def count_after(self, tag):
        idx = max(i for i, t in enumerate(self.tags) if t == tag)
        return len(self.tags) - 1 - idx, idx

    def wait(self, tag, extra=""):
        n, idx = self.count_after(tag)
        if idx < self.done and not extra:
            return
        n = min(n, 63)
        self.done = max(self.done, idx + 1)
        self.k(f"s_waitcnt vmcnt({n}) {extra}".strip())

    def waitstr(self, tag):
        n, idx = self.count_after(tag)
        if idx < self.done:
            return None
        n = min(n, 63)
        self.done = max(self.done, idx + 1)
        return f"s_waitcnt vmcnt({n})"


class LG:
    def __init__(self):
        self.tags = []; self.done = 0

    def issue(self, tag):
        self.tags.append(tag)

    def waitstr(self, tag):
        idx = max(i for i, t in enumerate(self.tags) if t == tag)
        if idx < self.done:
            return None
        n = len(self.tags) - 1 - idx
        n = min(n, 15)
        self.done = idx + 1
        return f"s_waitcnt lgkmcnt({n})"

    def all_done(self):
        self.done = len(self.tags)


def ws_sub_srd(k, s, off, size):
    k(f"""
    s_add_u32 s{s}, s{P_WS}, {off}
    s_addc_u32 s{s+1}, s{P_WS+1}, 0
    s_and_b32 s{s+1}, s{s+1}, 0xffff
    s_mov_b32 s{s+2}, {size}
    s_mov_b32 s{s+3}, 0x20000
    """)
```

```python
from common import *
import common
from k_p1 import f2h, stats_finish, qkv_setup, qkv_epilogue

MF = "v_mfma_f32_32x32x16_bf16"
SC = " sc1"
BUDGET = 200000

DEF = dict(
    X_BURST=6, LEAD=28,
    PACE=(2, 3), BARS=(106, 106, 154), BUD=6,
    KVROT=0, ROT=0, FE=4, MAP='H2', DUAL=0, PACE5=(2,), W_PRE=0,
    SS=(), CPF=15, NOPK=1, E56=6, WD1=0, WD2=12, WD2S=16, BGAP=2, OACK=1, XACK=1, X2ACK=0, DBGP=0, CPL=(64, 64), QSC='', OSC='', XP=0, P5T=8, ODLY=0, XDLY=0, MK1=16, MKB=11, UNI=2, MKB1=99, DSPLIT=32,
    HT=(150, 200, 252),
)


def gen_mega(name, layer, **over):
    C = dict(DEF); C.update(over)
    k = Kernel(name)
    SS = C["SS"]

    def stamp_mid(k, idx):
        if SS and idx not in (0, 8): return
        common.stamp_mid(k, idx)
    prologue(k, 256, (44, 15, None, name + "_end", "pc", C["CPL"][0]) if C["CPF"] & 4 else None)
    kvf = KVF if layer == 0 else KVF1
    mk, hf = (MK0, HF) if layer == 0 else (MK1, HF1)
    Q, O, SA, SB, P = 16, 48, 112, 128, 144
    NS = 160
    LDS = NS * 1024
    RES = 248
    if C["MAP"] == "H2":
        k("""
        s_bfe_u32 s4, s2, 0x20001
        s_lshl_b32 s4, s4, 6
        s_lshr_b32 s5, s2, 6
        s_lshl_b32 s5, s5, 4
        s_add_u32 s4, s4, s5
        s_and_b32 s5, s2, 1
        s_lshl_b32 s5, s5, 3
        s_add_u32 s4, s4, s5
        s_bfe_u32 s5, s2, 0x30003
        s_add_u32 s4, s4, s5
        """)
    else:
        k("""
        s_and_b32 s4, s2, 7
        s_lshl_b32 s4, s4, 5
        s_lshr_b32 s5, s2, 3
        s_add_u32 s4, s4, s5
        """)
    k(f"""
    s_lshr_b32 s5, s4, 2
    s_and_b32 s6, s4, 3
    s_lshl_b32 s6, s6, 3
    v_lshlrev_b32 v4, 4, v1
    v_and_b32 v2, 31, v1
    v_lshrrev_b32 v3, 5, v1
    s_lshl_b32 s8, s3, 16
    s_add_u32 s8, s8, {kvf}
    v_lshrrev_b32 v5, 3, v2
    v_lshlrev_b32 v5, 11, v5
    v_and_b32 v6, 7, v1
    v_add_u32 v6, s6, v6
    v_lshl_add_u32 v6, v3, 5, v6
    v_lshl_add_u32 v13, v6, 4, v5
    s_lshl_b32 s7, s5, 15
    s_lshl_b32 s14, s3, 13
    s_add_u32 s49, s7, s14
    s_add_u32 s49, s49, {mk + O_OFF}
    s_add_u32 s7, s7, {QF}
    s_lshr_b32 s14, s2, 3
    s_and_b32 s14, s14, {15 if C["KVROT"] else 0}
    s_lshl_b32 s14, s14, 12
    s_add_u32 s9, s8, s14
    """)
    for jj in range(4):
        k(f"""
        s_add_u32 s14, s3, {jj}
        s_and_b32 s14, s14, 3
        s_lshl_b32 s14, s14, 13
        s_add_u32 s{10+jj}, s7, s14
        """)
    wait_ptrs(k)
    stamp_mid(k, 0)
    vm = VM(k)
    order = [1, 2, 3, 0]
    NRING = 4

    def ab(t):
        return 16 * (t % NRING)

    def ld_kv(t, parts=(0, 1, 2, 3)):
        if parts[0] == 0:
            if t: k(f"s_add_u32 s9, s9, 4096\ns_pack_lh_b32_b16 s9, s9, s8")
        for f in parts:
            vm.issue(f"buffer_load_dwordx4 a[{ab(t)+4*f}:{ab(t)+4*f+3}], v4, s[40:43], s9 offen offset:{f*1024}", ("k" if f < 2 else "v", t))

    def ld_q(jj):
        for h in range(2):
            vm.issue(f"buffer_load_dwordx4 v[{Q+8*jj+4*h}:{Q+8*jj+4*h+3}], v13, s[40:43], s{10+jj} offen offset:{h*1024}", ("q", jj))

    ld_kv(0, (0, 1))
    ld_q(1)
    ld_q(2)
    vm.issue(f"buffer_load_dwordx4 a[8:11], v4, s[40:43], s9 offen offset:2048", ("v", 0))
    vm.issue(f"buffer_load_dwordx4 a[12:15], v4, s[40:43], s9 offen offset:3072", ("v", 0))
    ld_q(3)
    ld_q(0)
    ld_kv(1)
    steps = [(t, jj) for t in range(16) for jj in order]
    Sb = [SA, SB]

    def qk(s, half):
        t, jj = steps[s]
        S = Sb[s & 1]
        c = "0" if half == 0 else f"v[{S}:{S+15}]"
        return f"{MF} v[{S}:{S+15}], a[{ab(t)+4*half}:{ab(t)+4*half+3}], v[{Q+8*jj+4*half}:{Q+8*jj+4*half+3}], {c}"

    def pv(s, half):
        t, jj = steps[s]
        o = O + 16 * jj
        c = "0" if (t == 0 and half == 0) else f"v[{o}:{o+15}]"
        return f"{MF} v[{o}:{o+15}], a[{ab(t)+8+4*half}:{ab(t)+8+4*half+3}], v[{P+4*half}:{P+4*half+3}], {c}"

    def need_qk(s):
        t, jj = steps[s]
        if t >= 1:
            vm.wait(("v", t))
        vm.wait(("k", t)); vm.wait(("q", jj))

    for jj in range(1, 4):
        k(f"""
        s_add_u32 s14, s3, {jj}
        s_and_b32 s14, s14, 3
        s_mul_i32 s14, s14, {3*4096}
        s_add_u32 s14, s14, {(jj-1)*4096}
        v_add_u32 v{5+jj}, s14, v4
        s_xor_b32 s14, s3, {jj}
        s_mul_i32 s14, s14, {3*4096}
        s_add_u32 s14, s14, {(jj-1)*4096}
        v_add_u32 v{9+jj}, s14, v4
        """)
    k(f"""
    s_mul_i32 s14, s3, {3*4096}
    v_add_u32 v5, s14, v4
    """)
    srd(k, 68, P_WS, WS_USED)
    k(f"""
    s_and_b32 s14, s4, 15
    s_lshl_b32 s63, s3, 12
    s_mul_i32 s64, s14, {WGS*1024}
    s_add_u32 s64, s64, s63
    s_add_u32 s64, s64, {WGUF}
    s_add_u32 s63, s63, {48*1024}
    s_and_b32 s15, s14, 7
    s_cmp_lt_u32 s15, 7
    s_cselect_b32 s70, s70, 0
    s_lshr_b32 s44, s4, 4
    s_add_u32 s45, s44, s15
    s_and_b32 s44, s44, {3 if C["ROT"] else 0}
    s_lshl_b32 s57, s44, 15
    s_lshl_b32 s15, s15, 1
    s_and_b32 s67, s3, 1
    s_add_u32 s67, s67, s15
    s_xor_b32 s65, s67, 1
    s_lshl_b32 s46, s67, 15
    s_lshl_b32 s47, s65, 15
    s_lshl_b32 s15, s3, 13
    s_add_u32 s44, s15, {WOF}
    s_add_u32 s46, s46, s44
    s_add_u32 s47, s47, s44
    s_mul_i32 s62, s67, {112*1024}
    s_mul_i32 s65, s65, {112*1024}
    s_mul_i32 s48, s3, {28*1024}
    s_add_u32 s7, s48, {WDF}
    s_add_u32 s62, s62, s7
    s_add_u32 s65, s65, s7
    s_lshr_b32 s44, s4, 4
    s_lshl_b32 s44, s44, 2
    s_add_u32 s6, s44, s3
    s_mul_i32 s5, s6, {28*1024}
    s_add_u32 s5, s5, {mk + X1_OFF}
    s_lshl_b32 s7, s6, 12
    s_add_u32 s7, s7, {mk + ST_OFF}
    s_mul_i32 s6, s6, 112
    s_mul_i32 s13, s14, 7
    s_add_u32 s6, s6, s13
    s_lshl_b32 s6, s6, 10
    s_add_u32 s6, s6, {hf}
    s_lshr_b32 s13, s14, 3
    s_lshl_b32 s13, s13, 1
    s_add_u32 s44, s44, s13
    s_lshr_b32 s13, s3, 1
    s_add_u32 s66, s44, s13
    s_xor_b32 s11, s66, 1
    s_lshl_b32 s50, s66, 15
    s_lshl_b32 s51, s11, 15
    s_add_u32 s15, s15, {mk + O_OFF}
    s_add_u32 s50, s50, s15
    s_add_u32 s51, s51, s15
    s_mul_i32 s10, s66, {112*1024}
    s_mul_i32 s11, s11, {112*1024}
    s_add_u32 s48, s48, {hf}
    s_add_u32 s10, s10, s48
    s_add_u32 s11, s11, s48
    s_mul_i32 s12, s66, 28
    s_lshl_b32 s13, s67, 1
    s_add_u32 s12, s12, s13
    s_lshl_b32 s12, s12, 10
    s_lshl_b32 s56, s66, 12
    s_lshr_b32 s13, s67, 2
    s_lshl_b32 s13, s13, 10
    s_add_u32 s56, s56, s13
    s_bfe_u32 s13, s67, 0x10001
    s_lshl_b32 s13, s13, 9
    s_add_u32 s56, s56, s13
    s_and_b32 s13, s67, 1
    s_lshl_b32 s13, s13, 3
    s_add_u32 s56, s56, s13
    s_add_u32 s56, s56, {mk + ST_OFF}
    s_mov_b32 s13, {BUDGET}
    s_mov_b32 s61, 0xffff0000
    v_mov_b32 v{RES}, -1
    v_mov_b32 v{RES+1}, -1
    v_mov_b32 v{RES+2}, -1
    v_mov_b32 v{RES+3}, -1
    """)
    for g in range(4):
        k(f"""
        s_add_u32 s14, s45, {g}
        s_and_b32 s14, s14, 3
        s_mul_i32 s{52+g}, s14, {7168 if C["ROT"] else 0}
        """)
        if not C["ROT"]: k(f"s_mov_b32 s{52+g}, {7168*g}")
    if layer == 0:
        k(f"""
        s_lshl_b32 s14, s66, 5
        v_add_u32 v14, s14, v2
        v_mul_u32_u24 v14, 896, v14
        v_lshl_add_u32 v14, v3, 3, v14
        s_min_u32 s58, s67, 13
        s_lshl_b32 s58, s58, 6
        """)
    if layer == 0 and C["CPF"] & 8:
        cpf_ld = code_pf(k, 20, 9, "mb_kernel", "mb_kernel_end", "pc2", C["CPL"][1], 252)
    k(f"""
    s_mov_b32 s14, {f2h(2.0**-60)}
    s_mov_b32 s15, {f2h(2.0**60)}
    """)

    def wdreg(u):
        return f"a[{64+4*u}:{67+4*u}]" if u < 48 else f"v[{216+4*(u-48)}:{219+4*(u-48)}]"

    def woreg(a, kk):
        i = a * 8 + kk
        return f"v[{152+4*i}:{155+4*i}]"

    pf = []
    for i in range(28):
        q = i & 3
        pre = ""
        if q == 0:
            pre = (f"s_add_u32 s57, s57, 16384\ns_cmp_eq_u32 s57, {7*16384}\ns_cselect_b32 s57, 0, s57\n" if i else "") \
                + "s_add_u32 m0, s63, s57\ns_add_u32 s48, s64, s57"
        pf.append((pre, f"buffer_load_dwordx4 v4, s[40:43], s48 offen offset:{q*1024} lds", ("w", 6)))
    for u in range(56):
        a, kbl = divmod(u, 28)
        g, c = divmod(kbl, 7)
        pre = f"s_add_u32 s48, s{62 if a == 0 else 65}, s{52+g}" if c == 0 else ("s_add_u32 s48, s48, 4096" if c == 4 else "")
        pf.append((pre, f"buffer_load_dwordx4 {wdreg(u)}, v4, s[68:71], s48 offen offset:{(c%4)*1024}", "wd"))
    for a in range(2):
        for kk in range(8):
            pre = f"s_add_u32 s48, s{46+a}, 4096" if kk == 4 else ""
            pf.append((pre, f"buffer_load_dwordx4 {woreg(a, kk)}, v4, s[68:71], s{46+a if kk < 4 else 48} offen offset:{(kk%4)*1024}", "wo"))
    late = []
    for u in range(56 - C["WD1"] - C["WD2"], 56):
        a, kbl = divmod(u, 28)
        g, c = divmod(kbl, 7)
        first = u in (56 - C["WD1"] - C["WD2"], 56 - C["WD2"])
        pre = ""
        if c in (0, 4) or first:
            pre = f"s_add_u32 s48, s{62 if a == 0 else 65}, s{52+g}" + ("\ns_add_u32 s48, s48, 4096" if c >= 4 else "")
        late.append((pre, pf[28 + u][1], "wd"))
    del pf[28 + 56 - len(late): 28 + 56]
    if layer == 1 and C["XP"] & 1: pf = [x for x in pf if x[2] != "wd"]; late = []
    if layer == 1 and C["XP"] & 2: pf = [x for x in pf if x[2] != "wo"]
    if layer == 1 and C["XP"] & 4: pf = [x for i, x in enumerate(pf) if x[2] != ("w", 6) or i >= 24]
    fills = []
    if layer == 0 and C["CPF"] & 8:
        fills.append(("", cpf_ld, "cpf"))
    for ct in range(7):
        fills.append((f"s_add_u32 s44, s6, {ct*1024}", f"buffer_store_dwordx4 v[{RES}:{RES+3}], v4, s[40:43], s44 offen{SC}", "fill"))
    if layer == 0:
        for h in range(2):
            fills.append((f"s_add_u32 s44, s12, {X2F + h*1024}", f"buffer_store_dwordx4 v[{RES}:{RES+3}], v4, s[68:71], s44 offen{SC}", "fill"))
        resl = [("", f"buffer_load_dwordx2 v[{RES+2*q}:{RES+2*q+1}], v14, s[52:55], s58 offen offset:{q*16}", "res") for q in range(4)]
    else:
        resl = [(f"s_add_u32 s44, s12, {X2F}" if h == 0 else "", f"buffer_load_dwordx4 v[{RES+4*h}:{RES+4*h+3}], v4, s[68:71], s44 offen offset:{h*1024}", "res") for h in range(2)]
    staged = [None]

    def hstore(V, text, tag, bit):
        if V: V.issue(text + SC, tag)
        else: k(text + SC)
        if C["DUAL"] >> bit & 1:
            if V: V.issue(text, tag)
            else: k(text)
            return 2
        return 0

    def prep():
        if pf and pf[0][0]:
            k(pf[0][0]); pf[0] = ("",) + pf[0][1:]

    def side(lst):
        if not lst: return
        p, ins, tag = lst.pop(0)
        k(p); vm.issue(ins, tag)

    def lds_wr(jj):
        o = O + 16 * jj
        return [f"ds_write_b128 v{5+jj}, v[{o+4*q}:{o+4*q+3}] offset:{q*1024}" for q in range(4)]

    prep()
    need_qk(0)
    stamp_mid(k, 1)
    k(qk(0, 0))
    ld_kv(2, (0, 1))
    k(qk(0, 1))
    vm.issue(f"buffer_load_dwordx4 a[40:43], v4, s[40:43], s9 offen offset:2048", ("v", 2))
    vm.issue(f"buffer_load_dwordx4 a[44:47], v4, s[40:43], s9 offen offset:3072", ("v", 2))
    k("s_nop 7")
    n = len(steps)
    nb = [1]
    for s in range(n):
        t, jj = steps[s]
        S = Sb[s & 1]
        e = lambda i: f"v_exp_f32 v{S+i}, v{S+i}"
        c = lambda d: f"v_cvt_pk_bf16_f32 v{P+d}, v{S+2*d}, v{S+2*d+1}"
        if s + 1 < n:
            need_qk(s + 1)
            k(qk(s + 1, 0))
        if t + 3 < 16:
            ld_kv(t + 3, ((s & 3),))
        else:
            side(pf)
        for i in range(4): k(e(i))
        if s > 0:
            k(pv(s - 1, 1))
        side(pf)
        for i in range(4, 8): k(e(i))
        if s + 1 < n:
            k(qk(s + 1, 1))
        prep()
        for d in range(4): k(c(d))
        for i in range(8, 11): k(e(i))
        vm.wait(("v", t))
        k(pv(s, 0))
        if fills and s % C["FE"] == 0:
            side(fills)
        elif len(pf) > (n - 1 - s) + min(12, n - 1 - s) and s >= nb[0]:
            side(pf); nb[0] = s + C["BGAP"]
        extra = []
        if t == 15 and s & 3 >= 2:
            extra = lds_wr(order[(s & 3) - 2])
        if s == n - 1:
            extra = extra + lds_wr(3)
        for i in range(11, 16):
            k(e(i))
            if extra: k(extra.pop(0))
        for d in range(4, 8):
            k(c(d))
            if extra: k(extra.pop(0))
    assert not pf and not fills, (len(pf), len(fills))
    stamp_mid(k, 2)
    k(pv(n - 1, 1))
    if layer == 0:
        srd(k, 44, P_X, XBYTES)
        resl = [(p, i.replace("s[52:55]", "s[44:47]"), t) for p, i, t in resl]
    while resl: side(resl)
    k("s_waitcnt lgkmcnt(0)\ns_barrier")
    stamp_mid(k, 3)
    R = 64
    for j in range(3):
        for q in range(4):
            r = R + 16 * j + 4 * q
            k(f"ds_read_b128 v[{r}:{r+3}], v5 offset:{j*4096+q*1024}")
    for j in range(3):
        k(f"s_waitcnt lgkmcnt({8-4*j})")
        for r in ([12] + [x for x in range(0, 16, 2) if x != 12] if j == 2 else range(0, 16, 2)):
            k(f"v_pk_add_f32 v[{O+r}:{O+r+1}], v[{O+r}:{O+r+1}], v[{R+16*j+r}:{R+16*j+r+1}]")
            if j == 2 and r == 12:
                k(f"v_mov_b32 v9, v{O+12}\nv_mov_b32 v8, v{O+12}")
            if j == 2 and r == 2:
                k("v_permlane32_swap_b32 v9, v8")
            if j == 2 and r == 4:
                k("v_rcp_f32 v9, v8\nv_cmp_nle_f32 vcc, s14, v8\nv_cmp_nge_f32 s[46:47], s15, v8")
            if j == 2 and r == 10:
                k("s_or_b64 vcc, vcc, s[46:47]")
    FB, NORM = k.name + "_fb", k.name + "_norm"
    k(f"""
    s_cbranch_vccnz {FB}
    {NORM}:
    """)
    for h in range(2):
        for r in range(8 * h, 8 * h + 8, 2):
            k(f"v_pk_mul_f32 v[{O+r}:{O+r+1}], v[{O+r}:{O+r+1}], v[8:9] op_sel:[0,1] op_sel_hi:[1,1]")
        for d in range(4 * h, 4 * h + 4):
            k(f"v_cvt_pk_bf16_f32 v{P+d}, v{O+2*d}, v{O+2*d+1}")
        hstore(vm, f"buffer_store_dwordx4 v[{P+4*h}:{P+4*h+3}], v13, s[40:43], s49 offen offset:{h*1024}", "ost", 0)
    stamp_mid(k, 4)
    stubs = []

    def chk_ops(regs):
        o = []
        for i, r in enumerate(regs):
            kind, b = r[0], int(r[2:r.index(":")])
            if kind == "a":
                o += [f"v_accvgpr_read_b32 v2, a{b}", f"v_accvgpr_read_b32 v7, a{b+2}"]
                p, q = "v2", "v7"
            else:
                p, q = f"v{b}", f"v{b+2}"
            o.append(f"v_max_u32 v3, {p}, {q}" if i == 0 else f"v_max3_u32 v3, {p}, {q}, v3")
        o.append("v_cmp_eq_u32 vcc, -1, v3")
        return o

    def ld_text(d, sreg, imm):
        t = f"buffer_load_dwordx4 {d['reg']}, v4, s[{d['srd']}:{d['srd']+3}], s{sreg} offen offset:{imm}{SC}"
        return t

    def base_add(d, sreg):
        if d.get("blk") is None:
            return f"s_add_u32 s{sreg}, s{d['base']}, {d['off']}"
        t = f"s_add_u32 s{sreg}, s{d['base']}, s{52+d['blk']}"
        return t + (f"\ns_add_u32 s{sreg}, s{sreg}, {d['off']}" if d["off"] else "")

    def spin(lb, ds, back, inline=False, more=()):
        mk_ = "" if inline else " ; retry"
        k(f"{lb}:")
        prev = None
        for d in list(ds) + list(more):
            if prev and prev[0] == (d["base"], d.get("blk")) and prev[1] <= d["off"] <= prev[1] + 3072:
                imm = d["off"] - prev[1]
            else:
                k(base_add(d, 15)); prev = ((d["base"], d.get("blk")), d["off"]); imm = 0
            if d.get("lo"): k("s_mov_b32 exec_hi, 0")
            k(ld_text(d, 15, imm) + mk_)
            if d.get("lo"): k("s_mov_b32 exec_hi, -1")
        k(f"s_sub_i32 s13, s13, 1\ns_cmp_lt_i32 s13, 0\ns_waitcnt vmcnt({len(more)}){mk_}")
        for o in chk_ops([d["reg"] for d in ds]): k(o + mk_)
        k(f"s_cbranch_scc1 {back}{mk_}\ns_cbranch_vccnz {lb}{mk_}")

    def chk_branch(ds):
        lb = k.newlabel("st")
        k(f"s_cbranch_vccnz {lb}\n{lb}_b:")
        stubs.append((lb, ds))

    def reduce3(A, R, rb, extra=None):
        k("s_waitcnt lgkmcnt(0)\ns_barrier")
        if extra: extra(0)
        for j in range(3):
            for q in range(4):
                r = R + 16 * j + 4 * q
                k(f"ds_read_b128 v[{r}:{r+3}], v{rb} offset:{j*4096+q*1024}")
        if extra: extra(1)
        for j in range(3):
            k(f"s_waitcnt lgkmcnt({8-4*j})")
            for r in range(0, 16, 2):
                k(f"v_pk_add_f32 v[{A+r}:{A+r+1}], v[{A+r}:{A+r+1}], v[{R+16*j+r}:{R+16*j+r+1}]")

    def mark_next(first, cnt, batch=99):
        k(f"""
        s_lshr_b32 s9, s4, 3
        s_lshl_b32 s9, s9, 2
        s_add_u32 s9, s9, s3
        s_lshl_b32 s9, s9, 15
        s_add_u32 s9, s9, {MK1 + first*1024}
        v_mov_b32 v16, -1
        v_mov_b32 v17, -1
        v_mov_b32 v18, -1
        v_mov_b32 v19, -1
        """)
        for i in range(cnt):
            if i and i % 4 == 0: k("s_add_u32 s9, s9, 4096")
            if i and i % batch == 0: k("s_waitcnt vmcnt(0)")
            k(f"buffer_store_dwordx4 v[16:19], v4, s[40:43], s9 offen offset:{(i%4)*1024}{SC}")

    NOR1, XJOIN = k.name + "_nor1", k.name + "_xjoin"
    AO = [80, 96, 112, 128]
    UNI = C["UNI"]
    OS = 68 if UNI == 1 else 40
    k("s_barrier" if UNI else f"s_barrier\ns_cmp_eq_u32 s70, 0\ns_cbranch_scc1 {NOR1}")
    vm.wait("res")
    for d in range(8):
        k(f"v_lshlrev_b32 v{AO[0]+2*d}, 16, v{RES+d}")
        k(f"v_and_b32 v{AO[0]+2*d+1}, s61, v{RES+d}")

    def o_d(b, kk):
        i = 2 * kk + b
        return dict(reg=f"v[{16+4*i}:{19+4*i}]", srd=OS, base=50 + b, off=kk * 1024)
    for _ in range(C["WD1"]): side(late)
    if C["OACK"]: vm.wait("ost")
    for _ in range(C["ODLY"]): k("s_nop 15")
    stamp_mid(k, 5)
    pl = k.newlabel("pr")
    od = [[o_d(b, kk) for kk in range(8)] for b in (1, 0)]
    spin(pl, od[0], pl + "_b", True, od[1])
    k(f"{pl}_b:")
    stamp_mid(k, 6)
    seq = []
    for s in (3, 2, 1, 0): seq += [(s, kk) for kk in range(8)]
    owr = {8 * (4 - s) + 1 + 2 * q: [(s, q)] for s in (1, 2, 3) for q in range(4)}
    for idx, (slot, kk) in enumerate(seq):
        if idx == 0: vm.done = len(vm.tags); n0 = len(vm.tags)
        if idx == 11:
            k(f"s_waitcnt vmcnt({len(vm.tags) - n0})")
        if 11 <= idx <= 13:
            for o in chk_ops([d["reg"] for d in od[1]])[3 * (idx - 11): 3 * (idx - 11) + 3]: k(o)
        if idx == 16:
            chk_branch(od[1])
            if C["DBGP"] & 2: stamp_mid(k, 0)
        a = AO[slot]
        c = "0" if (kk == 0 and slot) else f"v[{a}:{a+15}]"
        k(f"{MF} v[{a}:{a+15}], {woreg(slot & 1, kk)}, {o_d(slot >> 1, kk)['reg']}, {c}")
        if idx >= C["WD2S"] and late:
            side(late)
            if len(late) > 28 - idx: side(late)
        for s, q in owr.get(idx, []):
            k(f"ds_write_b128 v{9+s}, v[{AO[s]+4*q}:{AO[s]+4*q+3}] offset:{q*1024}")
    assert not late
    if C["DBGP"] & 2: stamp_mid(k, 1)
    k(f"s_add_u32 s9, s12, {mk + X1_OFF}")
    if UNI == 2:
        k(f"""
        s_lshr_b32 s15, s4, 3
        s_lshl_b32 s15, s15, 2
        s_add_u32 s15, s15, s3
        s_lshl_b32 s15, s15, 12
        s_add_u32 s15, s15, {DUMMY}
        s_cmp_eq_u32 s70, 0
        s_cselect_b32 s9, s15, s9
        s_add_u32 s15, s15, 2048
        s_cmp_eq_u32 s70, 0
        s_cselect_b32 s56, s15, s56
        """)
    reduce3(AO[0], 16, 5, (lambda ph: stamp_mid(k, 3) if ph == 0 else None) if C["DBGP"] & 2 else None)
    for h in range(2):
        for d in range(4 * h, 4 * h + 4):
            k(f"v_cvt_pk_bf16_f32 v{RES+d}, v{AO[0]+2*d}, v{AO[0]+2*d+1}")
        hstore(vm, f"buffer_store_dwordx4 v[{RES+4*h}:{RES+4*h+3}], v4, s[{OS}:{OS+3}], s9 offen offset:{h*1024}", "xst", 1)
    def row_stats(A, T, soff, V):
        pr = lambda i: f"v[{A+2*i}:{A+2*i+1}]"
        k(f"v_pk_add_f32 v[{T}:{T+1}], {pr(0)}, {pr(1)}")
        k(f"v_pk_mul_f32 v[{T+2}:{T+3}], {pr(0)}, {pr(0)}")
        k(f"v_pk_fma_f32 v[{T+2}:{T+3}], {pr(1)}, {pr(1)}, v[{T+2}:{T+3}]")
        for i in range(2, 8):
            k(f"v_pk_add_f32 v[{T}:{T+1}], v[{T}:{T+1}], {pr(i)}")
            k(f"v_pk_fma_f32 v[{T+2}:{T+3}], {pr(i)}, {pr(i)}, v[{T+2}:{T+3}]")
        k(f"""
        v_add_f32 v{T}, v{T}, v{T+1}
        v_add_f32 v{T+1}, v{T+2}, v{T+3}
        v_mov_b32 v{T+2}, v{T}
        v_mov_b32 v{T+3}, v{T+1}
        s_nop 0
        v_permlane32_swap_b32 v{T}, v{T+2}
        v_permlane32_swap_b32 v{T+1}, v{T+3}
        s_mov_b32 exec_hi, 0
        v_pk_add_f32 v[{T}:{T+1}], v[{T}:{T+1}], v[{T+2}:{T+3}]
        """)
        t = f"buffer_store_dwordx2 v[{T}:{T+1}], v4, s[{OS}:{OS+3}], s{soff} offen{SC}"
        if V: V.issue(t, "sst")
        else: k(t)
        k("s_mov_b32 exec_hi, -1")
    if C["DBGP"] & 2: stamp_mid(k, 4)
    row_stats(AO[0], 6, 56, vm)
    k(f"{XJOIN}:\ns_barrier")
    stamp_mid(k, 7)
    w_next = [28]

    def ld_w():
        i = w_next[0]; w_next[0] += 1
        G, q = i >> 2, i & 3
        if q == 0:
            off = (16 * G + 48) % NS - 48
            k(f"s_{'add' if off >= 0 else 'sub'}_u32 m0, s63, {abs(off)*1024}\ns_add_u32 s48, s64, {16*G*1024}")
        vm.issue(f"buffer_load_dwordx4 v4, s[40:43], s48 offen offset:{q*1024} lds", ("w", G))
        return 2 + 2 * (q == 0)
    for _ in range(C['W_PRE']): ld_w()
    A4, WR, HP, MB, R2 = 16, 128, 160, 168, 172
    k(f"""
    v_add_u32 v5, 0x10000, v4
    v_add_u32 v6, 0x20000, v4
    v_mov_b32 v{HP+12}, 0
    v_mov_b32 v{HP+13}, 0
    v_mov_b32 v{HP+14}, 0
    v_mov_b32 v{HP+15}, 0
    """)
    R5B = 96 * 1024
    if layer == 0:
        k(f"""
        s_mul_i32 s50, s67, {28*1024}
        s_xor_b32 s51, s67, 1
        s_mul_i32 s51, s51, {28*1024}
        s_mul_i32 s15, s3, {7*1024}
        s_add_u32 s15, s15, {WQF}
        s_add_u32 s50, s50, s15
        s_add_u32 s51, s51, s15
        s_lshl_b32 s60, s67, 7
        s_add_u32 s60, s60, {CSQ}
        s_mul_i32 s59, s3, {14*1024}
        s_cmp_eq_u32 s3, 3
        s_cselect_b32 s59, {144*1024}, s59
        """)
    cur = {}

    def stream_ld(d, tag):
        t = d["tmp"]
        c = cur.get(t)
        n = 2
        key = (d["base"], d.get("blk"))
        if not (c and c[0] == key and c[1] <= d["off"] <= c[1] + 3072):
            x = base_add(d, t)
            k(x); n += x.count("\n") + 1
            cur[t] = c = (key, d["off"])
        if d.get("lo"): k("s_mov_b32 exec_hi, 0")
        vm.issue(ld_text(d, t, d["off"] - c[1]), tag)
        if d.get("lo"): k("s_mov_b32 exec_hi, -1"); n += 2
        return n

    lg = LG()
    NR, RA = 8, 6
    A5 = [64, 96, 80, 112]

    def xreg(kb):
        if kb == 28: return f"v[{MB}:{MB+3}]"
        i = KO.index(kb)
        if i < 10: return f"v[{176+4*i}:{179+4*i}]"
        if i < 12: return f"v[{8+4*(i-10)}:{11+4*(i-10)}]"
        return f"a[{4*(i-12)}:{4*(i-12)+3}]"

    def x_d(kb):
        return dict(reg=xreg(kb), srd=40, base=5, off=kb * 1024, tmp=44)

    kbo = [7 * g + c for g in range(4) for c in range(3)] + [7 * g + c for g in range(4) for c in (3, 4)] + [7 * g + c for g in range(4) for c in (5, 6)]
    p5 = []
    for i in range(4): p5 += [(0, i), (2, i)]
    for i in range(4): p5 += [(1, i), (3, i)]
    TL = C["P5T"]
    for i in range(4, 28 - TL):
        p5 += [(0, i), (2, i), (1, i), (3, i)]
    for sl in (3, 2, 1, 0):
        p5 += [(sl, i) for i in range(28 - TL, 28)]
    wr_at = {}
    for j, sl in enumerate((3, 2, 1)):
        e = 112 - (3 - j) * TL
        for q in range(4):
            wr_at.setdefault(min(e + 1 + q * max(1, (TL - 1) // 4 + 1), 111), []).append((sl, q))
    assert len(p5) == 112
    NT = N4 + 112
    land = [(f"v[{16+4*i}:{19+4*i}]", 110) for i in range(12)] \
        + [(xreg(kb), 146 + 2 * kb) for kb in range(28)] + [(f"v[{128+4*i}:{131+4*i}]", N4) for i in range(8)] \
        + [(f"v[{16+4*i}:{19+4*i}]", N4 + 16) for i in range(8)]
    assert len(land) == 56
    h_use = {}
    for s, (slot, i) in enumerate(p5):
        h_use.setdefault(2 * i + (slot >> 1), N4 + s)
    h_ord = sorted(range(56), key=lambda hi: h_use[hi])
    h_pos = {hi: p for p, hi in enumerate(h_ord)}

    def h_d(hi):
        i, b = hi >> 1, hi & 1
        g, c = divmod(kbo[i], 7)
        return dict(reg=land[h_pos[hi]][0], srd=68, base=10 + b, blk=g, off=c * 1024, tmp=44 + b)

    st_d = [dict(reg=f"v[{HP+4*q}:{HP+4*q+3}]", srd=40, base=7, off=q * 1024, tmp=14, lo=(q == 3)) for q in range(4)]

    items = []
    LEAD = C["LEAD"]
    XB = 4 + C["X_BURST"]
    for i in range(XB, 28):
        items.append((3 * i - LEAD, -1, 3 * (i & ~1) - 5, (lambda i=i: stream_ld(x_d(KO[i]), ("x", i)))))
    for q in range(4):
        items.append((60 - LEAD, -1, 57, (lambda q=q: stream_ld(st_d[q], "st"))))
    bars = sorted(C["BARS"])
    assert 48 <= bars[0] and 152 <= bars[-1] <= 160 - RA
    assert len(bars) == 3 and bars[1] <= 112 - RA
    for i in range(w_next[0], 40):
        items.append((bars[1] - LEAD + i * 0.01, -1, bars[1] - 4, ld_w))
    for i in range(40, 52):
        items.append((bars[-1] - LEAD - 10 + i * 0.01, bars[0], bars[-1] - 4, ld_w))
    for p, hi in enumerate(h_ord):
        part = 0 if hi < 24 else (1 if hi < 40 else 2)
        u0 = h_use[h_ord[p & ~1]]
        items.append((u0 - LEAD + p * 0.001, max(C["HT"][part], land[p][1]), u0 - 5, (lambda hi=hi, p=p: stream_ld(h_d(hi), ("h", p >> 1)))))
    CS = 160

    def p1b_prefetch(V):
        o = []
        for a in range(2):
            for kbl in range(7):
                def f(a=a, kbl=kbl):
                    if kbl % 4 == 0:
                        k(f"s_add_u32 m0, s59, {(a*7+kbl)*1024}\ns_add_u32 s48, s{50+a}, {kbl*1024}")
                    V.issue(f"buffer_load_dwordx4 v4, s[40:43], s48 offen offset:{(kbl%4)*1024} lds", "wq")
                    return 2 + 2 * (kbl % 4 == 0)
                o.append(f)
        return o

    def cs_prefetch(V):
        k(f"v_lshrrev_b32 v0, 5, v1\nv_lshlrev_b32 v0, 4, v0")
        for q in range(4):
            V.issue(f"buffer_load_dwordx4 v[{CS+4*q}:{CS+4*q+3}], v0, s[40:43], s60 offen offset:{q*32}", "wq")
        return 10
    if layer == 0:
        for f in p1b_prefetch(vm):
            items.append((NT + 10, bars[-1], NT + 10, f))
        items.append((NT + 11, N4 + 10, NT + 11, lambda: cs_prefetch(vm)))
    items.sort(key=lambda t: t[0])
    queue = list(items)

    def issue_next(n):
        for idx, it in enumerate(queue):
            if it[1] <= n:
                queue.pop(idx); return it[3]()
        return 0

    def force(n):
        c = 0
        while any(it[2] <= n for it in queue):
            c += issue_next(n)
        return c

    def rd(f):
        slot = ((f + 48) % NS) * 1024
        base = [4, 5, 6][slot >> 16]
        r = WR + 4 * (f % NR)
        lg.issue(("w", f))
        k(f"ds_read_b128 v[{r}:{r+3}], v{base} offset:{slot & 0xffff}")

    fill = []
    vfill = []

    def epi_ops(ct, V, gaps=3, pk=False):
        a = A4 + 16 * ct
        hp = HP + 4 * (ct & 1)
        o = ["GAP"] * gaps
        if C["NOPK"] and not pk:
            for d in range(4):
                for r in (2 * d, 2 * d + 1):
                    o.append(f"v_mul_f32 v{a+r}, v{a+r}, v{a+8+r}")
                for r in (2 * d, 2 * d + 1):
                    o.append(f"v_mul_f32 v{a+r}, v{R2}, v{a+r}")
                o.append(f"v_cvt_pk_bf16_f32 v{hp+d}, v{a+2*d}, v{a+2*d+1}")
        else:
            for r in range(0, 8, 2):
                o.append(f"v_pk_mul_f32 v[{a+r}:{a+r+1}], v[{a+r}:{a+r+1}], v[{a+8+r}:{a+9+r}]")
            for r in range(0, 8, 2):
                o.append(f"v_pk_mul_f32 v[{a+r}:{a+r+1}], v[{a+r}:{a+r+1}], v[{R2}:{R2+1}]")
            for d in range(4):
                o.append(f"v_cvt_pk_bf16_f32 v{hp+d}, v{a+2*d}, v{a+2*d+1}")

        def st():
            k(f"s_add_u32 s14, s6, {ct*1024}")
            cur.pop(14, None)
            return 3 + hstore(V, f"buffer_store_dwordx4 v[{hp}:{hp+3}], v4, s[40:43], s14 offen", ("hst", ct), 2)
        o.append(st)
        return o

    def run(lst, room):
        used = 0
        while lst and used < room:
            f = lst.pop(0)
            if f == "GAP":
                break
            if callable(f): used += f() or 0
            else:
                k(f); used += f.count("\n") + 1
        return used

    def add_val(tag, ds):
        def w():
            s_ = vm.waitstr(tag)
            if s_: k(s_)
            return 1 if s_ else 0

        def b():
            chk_branch(ds); done_val.add(tag); return 1
        vfill.extend([w] + chk_ops([d["reg"] for d in ds]) + ["GAP", b])

    T0 = HP + 4
    stat_ops = [f"v_pk_add_f32 v[{HP+4*q}:{HP+4*q+1}], v[{HP+4*q}:{HP+4*q+1}], v[{HP+4*q+2}:{HP+4*q+3}]" for q in range(4)] + [
        f"v_pk_add_f32 v[{HP}:{HP+1}], v[{HP}:{HP+1}], v[{HP+4}:{HP+5}]",
        f"v_pk_add_f32 v[{HP+8}:{HP+9}], v[{HP+8}:{HP+9}], v[{HP+12}:{HP+13}]",
        f"v_pk_add_f32 v[{HP}:{HP+1}], v[{HP}:{HP+1}], v[{HP+8}:{HP+9}]",
        f"v_mov_b32 v{T0}, v{HP}", f"v_mov_b32 v{T0+1}, v{HP+1}", "GAP",
        f"v_permlane32_swap_b32 v{HP}, v{T0}", f"v_permlane32_swap_b32 v{HP+1}, v{T0+1}",
        f"v_pk_add_f32 v[{HP}:{HP+1}], v[{HP}:{HP+1}], v[{T0}:{T0+1}]",
        f"v_mul_f32 v{HP}, {f2h(-1.0/448)}, v{HP}",
        f"v_mul_f32 v{HP+1}, {f2h(1.0/448)}, v{HP+1}",
        f"v_fma_f32 v{HP+1}, -v{HP}, v{HP}, v{HP+1}",
        f"v_max_f32 v{HP+1}, 0, v{HP+1}",
        f"v_add_f32 v{HP+1}, {f2h(1e-5)}, v{HP+1}",
        f"v_rcp_f32 v{R2}, v{HP+1}",
        f"v_cvt_pk_bf16_f32 v{MB}, v{HP}, v{HP}",
        f"v_lshlrev_b32 v{T0}, 16, v{MB}",
        f"v_sub_f32 v{T0}, v{HP}, v{T0}",
        f"v_mov_b32 v{R2+1}, v{R2}",
        f"s_mov_b32 exec_lo, 0\nv_cvt_pk_bf16_f32 v{MB}, v{T0}, v{T0}\ns_mov_b32 exec_lo, -1",
        f"v_mov_b32 v{MB+1}, v{MB}", f"v_mov_b32 v{MB+2}, v{MB}", f"v_mov_b32 v{MB+3}, v{MB}",
    ]

    if C["NOPK"]:
        import re
        so = []
        for o in stat_ops:
            m = re.match(r"v_pk_add_f32 v\[(\d+):\d+\], v\[(\d+):\d+\], v\[(\d+):\d+\]", o)
            if m:
                d, x, y = map(int, m.groups())
                so += [f"v_add_f32 v{d}, v{x}, v{y}", f"v_add_f32 v{d+1}, v{x+1}, v{y+1}"]
            else: so.append(o)
        stat_ops = so
    if C["XACK"]: vm.wait("xst" if C["XACK"] == 1 else "sst")
    for _ in range(C["XDLY"]): k("s_nop 15")
    stamp_mid(k, 9)
    pl = k.newlabel("pr")
    for f in range(RA): rd(f)
    spin(pl, [x_d(kb) for kb in KO[:4]], pl + "_b", True, [x_d(kb) for kb in KO[4:XB]])
    k(f"{pl}_b:")
    vm.done = len(vm.tags)
    for i in range(4, XB): vm.tags.append(("x", i))
    stamp_mid(k, 8)
    nxt = 0; pi = [0]
    NOROLE = k.name + "_norole"
    P1B = k.name + "_p1b"
    val = {}
    for i in range(4, 28, 2):
        val.setdefault(3 * i - (4 if i < 12 else 5), []).append((("x", i + 1), [x_d(KO[i]), x_d(KO[i + 1])]))
    for i in range(28):
        val.setdefault(h_use[h_ord[2 * i]] - (5 if land[2 * i][0][0] == "a" or land[2 * i + 1][0][0] == "a" else 4), []).append((("h", i), [h_d(h_ord[2 * i]), h_d(h_ord[2 * i + 1])]))
    val.setdefault(58, []).append(("st", st_d))
    done_val = set(("x", i) for i in range(4))
    for n in range(NT):
        if n in SS: common.stamp_mid(k, [i for i in range(1, 20) if i != 8][list(SS).index(n)])
        used = force(n)
        if n in bars:
            if n == bars[1]: vm.wait(("w", 9))
            if n == bars[-1]: vm.wait(("w", 12))
            k("s_barrier"); used += 2
        if n + RA < N4:
            rd(n + RA); used += 1
        for v in val.get(n, []): add_val(*v)
        used += run(vfill, 3)
        if "st" in done_val and stat_ops:
            fill.extend(stat_ops); stat_chk = stat_ops; stat_ops = None
        if n < N4:
            ct, kb = p4_fk(n)
            if n % 2 == 0:
                w = lg.waitstr(("w", min(n + 1, N4 - 1)))
                if w: k(w); used += 1
            r = WR + 4 * (n % NR)
            a = A4 + 16 * ct
            first = (kb == KO[0]) if ct < 3 else (kb == 0)
            if kb < 28: assert ("x", KO.index(kb) | 1) in done_val, n
            else: assert stat_ops is None and not any(o in stat_chk for o in fill if isinstance(o, str) and o != "GAP")
            c = "0" if first else f"v[{a}:{a+15}]"
            k(f"{MF} v[{a}:{a+15}], v[{r}:{r+3}], {xreg(kb)}, {c}")
            if n == 86: stamp_mid(k, 10)
            if n == 144: stamp_mid(k, 11)
            if kb == 28 and ct != 5:
                if ct == 6:
                    fill.extend(epi_ops(5, vm, gaps=1) + epi_ops(6, vm, gaps=0))
                else:
                    fill.extend(epi_ops(ct, vm, gaps=3 if ct in (0, 3) else 0))
            if n == 150:
                for d in range(8):
                    fill.append(f"v_lshlrev_b32 v{A5[0]+2*d}, 16, v{RES+d}")
                    fill.append(f"v_and_b32 v{A5[0]+2*d+1}, s61, v{RES+d}")
        else:
            slot, i = p5[n - N4]
            hi = 2 * i + (slot >> 1)
            u = (slot & 1) * 28 + kbo[i]
            assert ("h", h_pos[hi] >> 1) in done_val, n
            a = A5[slot]
            c = "0" if (i == 0 and slot != 0) else f"v[{a}:{a+15}]"
            if n - N4 == 8:
                assert not fill
            k(f"{MF} v[{a}:{a+15}], {wdreg(u)}, {land[h_pos[hi]][0]}, {c}")
            if n == N4 + 48: stamp_mid(k, 13)
            if n == N4 + 80: stamp_mid(k, 14)
            if n - N4 == min(wr_at) - 3:
                assert all(land[p][0][0] == "v" for p in range(56) if ("h", p >> 1) not in done_val)
                for s in range(1, 4):
                    k(f"""
                    s_xor_b32 s9, s3, {s}
                    s_mul_i32 s9, s9, {3*4096}
                    s_add_u32 s9, s9, {R5B + (s-1)*4096}
                    v_add_u32 v{4+s}, s9, v4
                    """)
                k(f"s_mul_i32 s9, s3, {3*4096}\ns_add_u32 s9, s9, {R5B}\nv_add_u32 v2, s9, v4")
            for s, q in wr_at.get(n - N4, []):
                k(f"ds_write_b128 v{4+s}, v[{A5[s]+4*q}:{A5[s]+4*q+3}] offset:{q*1024}"); used += 2
        if n == N4 - 1:
            stamp_mid(k, 12)
            k(f"s_cmp_eq_u32 s70, 0\ns_cbranch_scc1 {NOROLE}")
        if n >= nxt and queue and used <= C["BUD"] - 2:
            c = issue_next(n)
            if c:
                used += c
                pc = C["PACE"] if n < N4 else C["PACE5"]
                nxt = n + pc[pi[0] % len(pc)]; pi[0] += 1
        run(fill, C["BUD"] - used if not (N4 - 1 <= n < N4 + 8) else C["E56"])
    assert not fill and not vfill
    print("leftover", len(queue))
    while queue: issue_next(NT)
    stamp_mid(k, 16)
    if layer == 1:
        srd(k, 44, P_OUT, XBYTES)
        k(f"""
        v_and_b32 v7, 31, v1
        s_lshl_b32 s9, s66, 5
        v_add_u32 v7, s9, v7
        v_mul_u32_u24 v7, 896, v7
        v_lshrrev_b32 v3, 5, v1
        v_lshl_add_u32 v7, v3, 4, v7
        s_lshl_b32 s9, s67, 6
        """)
    reduce3(A5[0], 16, 2)
    PK = 8
    for d in range(8):
        k(f"v_cvt_pk_bf16_f32 v{PK+d}, v{A5[0]+2*d}, v{A5[0]+2*d+1}")
    dbg = f"s_sub_u32 s91, {BUDGET + 1}, s13\ns_add_u32 s91, s91, s92" if common.STAMP else ""
    if layer == 1:
        k(f"""
        v_permlane32_swap_b32 v{PK}, v{PK+2}
        v_permlane32_swap_b32 v{PK+1}, v{PK+3}
        v_permlane32_swap_b32 v{PK+4}, v{PK+6}
        v_permlane32_swap_b32 v{PK+5}, v{PK+7}
        buffer_store_dwordx4 v[{PK}:{PK+3}], v7, s[44:47], s9 offen{C['OSC']}
        buffer_store_dwordx4 v[{PK+4}:{PK+7}], v7, s[44:47], s9 offen offset:32{C['OSC']}
        {dbg}
        s_endpgm
        """)
    else:
        k(f"s_add_u32 s9, s12, {X2F}")
        for h in range(2):
            hstore(None, f"buffer_store_dwordx4 v[{PK+4*h}:{PK+4*h+3}], v4, s[40:43], s9 offen offset:{h*1024}", None, 3)
        k(f"s_add_u32 s56, s56, {ST2 - MK0 - ST_OFF}")
        row_stats(A5[0], 16, 56, None)
        stamp_mid(k, 17)
        RB = 48 * 1024
        SV = 32
        k(f"""
        {P1B}:
        v_add_u32 v13, s59, v4
        s_waitcnt vmcnt(3)
        """)
        for i in range(14):
            k(f"ds_read_b128 a[{4*i}:{4*i+3}], v13 offset:{i*1024}")
        k(f"""
        s_mul_i32 s10, s66, {28*1024}
        s_xor_b32 s11, s66, 1
        s_mul_i32 s11, s11, {28*1024}
        s_mul_i32 s9, s3, {7*1024}
        s_add_u32 s9, s9, {X2F}
        s_add_u32 s10, s10, s9
        s_add_u32 s11, s11, s9
        s_lshl_b32 s56, s66, 12
        s_add_u32 s56, s56, {ST2}
        s_lshr_b32 s4, s66, 1
        s_and_b32 s12, s66, 1
        s_lshr_b32 s5, s67, 1
        s_mov_b32 s48, s13
        s_and_b32 s13, s67, 1
        v_and_b32 v2, 31, v1
        v_mov_b32 v{SV+12}, 0
        v_mov_b32 v{SV+13}, 0
        v_mov_b32 v{SV+14}, 0
        v_mov_b32 v{SV+15}, 0
        """)
        qkv_setup(k, KVF1)
        k("s_mov_b32 s13, s48")
        for s in range(1, 4):
            k(f"""
            s_xor_b32 s9, s3, {s}
            s_mul_i32 s9, s9, {3*4096}
            s_add_u32 s9, s9, {RB + (s-1)*4096}
            v_add_u32 v{4+s}, s9, v4
            """)
        k(f"s_mul_i32 s9, s3, {3*4096}\ns_add_u32 s9, s9, {RB}\nv_add_u32 v12, s9, v4")
        if C["DBGP"] & 1: stamp_mid(k, 3)
        if C["X2ACK"]: k(f"s_waitcnt vmcnt({C['X2ACK'] - 1})")
        if C["DBGP"] & 1: stamp_mid(k, 4)
        ko2 = [0, 2, 4, 6, 1, 3, 5]

        def x2_d(b, kbl):
            i = 2 * kbl + b
            return dict(reg=f"v[{176+4*i}:{179+4*i}]", srd=40, base=10 + b, off=kbl * 1024)
        pl = k.newlabel("pr")
        d8 = [x2_d(1, kbl) for kbl in range(7)]
        d6 = [x2_d(0, kbl) for kbl in range(7)]
        ds4 = [dict(reg=f"v[{SV+4*q}:{SV+4*q+3}]", srd=40, base=56, off=q * 1024, lo=(q == 3)) for q in range(4)]
        spin(pl, d8, pl + "_b", True, d6 + ds4)
        k(f"{pl}_b:\ns_waitcnt lgkmcnt(0)")
        stamp_mid(k, 18)
        ad = lambda d, x, y: [f"v_add_f32 v{d}, v{x}, v{y}", f"v_add_f32 v{d+1}, v{x+1}, v{y+1}"]
        so = []
        for q in range(4): so += ad(SV + 4 * q, SV + 4 * q, SV + 4 * q + 2)
        so += ad(SV, SV, SV + 4) + ad(SV + 8, SV + 8, SV + 12) + ad(30, SV, SV + 8)
        so += [f"v_mov_b32 v{SV}, v30", f"v_mov_b32 v{SV+1}, v31", "v_lshrrev_b32 v3, 5, v1", "GAP",
               f"v_permlane32_swap_b32 v30, v{SV}", f"v_permlane32_swap_b32 v31, v{SV+1}"] + ad(30, 30, SV)
        so += [f"v_mul_f32 v30, {f2h(1.0/448)}, v30", f"v_mul_f32 v31, {f2h(1.0/448)}, v31", "v_fma_f32 v31, -v30, v30, v31",
               "v_max_f32 v31, 0, v31", f"v_add_f32 v31, {f2h(1e-5)}, v31", "v_rsq_f32 v31, v31"]
        seq = []
        for s in (3, 2, 1, 0):
            seq += [(s, kbl) for kbl in range(7)]
        qwr = {7 * (4 - s) + [1, 3, 5, 6][q]: [(s, q)] for s in (1, 2, 3) for q in range(4)}
        ck = chk_ops([d["reg"] for d in d6])
        ck2 = chk_ops([d["reg"] for d in ds4])
        for idx, (slot, kbl) in enumerate(seq):
            if idx == 10: k("s_waitcnt vmcnt(4)")
            if idx in (10, 11):
                for _ in range(4):
                    if ck: k(ck.pop(0))
            if idx == 14: chk_branch(d6)
            if idx == 15:
                k("s_waitcnt vmcnt(0)")
                for o in ck2: k(o)
            if idx == 17: chk_branch(ds4)
            u = (slot & 1) * 7 + kbl
            a = A5[slot]
            c = "0" if kbl == 0 else f"v[{a}:{a+15}]"
            k(f"{MF} v[{a}:{a+15}], a[{4*u}:{4*u+3}], {x2_d(slot >> 1, kbl)['reg']}, {c}")
            if 17 <= idx: run(so, 4)
            for s, q in qwr.get(idx, []):
                k(f"ds_write_b128 v{4+s}, v[{A5[s]+4*q}:{A5[s]+4*q+3}] offset:{q*1024}")
        run(so, 99)
        stamp_mid(k, 15)
        reduce3(A5[0], 176, 12)
        qkv_epilogue(k, A5[0], CS, '', C['QSC'])
        k(dbg)
        k("s_endpgm")
    if not UNI:
        k(f"{NOR1}:")
        if layer == 0: mark_next(0, C["MK1"], C["MKB1"])
        k(f"s_branch {XJOIN}")
    k(f"{NOROLE}:\ns_nop 15")
    V3 = VM(k)
    for f in epi_ops(5, V3, gaps=0, pk=True) + epi_ops(6, V3, gaps=0, pk=True):
        if callable(f): f()
        else: k(f)
    if layer == 0:
        k("s_waitcnt vmcnt(0)")
        for f in p1b_prefetch(V3): f()
        cs_prefetch(V3)
        m1 = 0 if UNI else C["MK1"]
        mark_next(m1, 32 - m1, C["MKB"])
        k(f"s_waitcnt vmcnt(0)\ns_barrier\ns_branch {P1B}")
    else:
        k("s_endpgm")
    for lb, ds in stubs:
        spin(lb, ds, lb + "_b")
        k(f"s_branch {lb}_b ; retry")
    KR = 64
    S = 80
    k(f"""
    {FB}:
    v_mov_b32 v14, 0xff800000
    s_mov_b32 s9, {kvf}
    {FB}_l1:
    buffer_load_dwordx4 v[{KR}:{KR+3}], v4, s[40:43], s9 offen
    buffer_load_dwordx4 v[{KR+4}:{KR+7}], v4, s[40:43], s9 offen offset:1024
    s_waitcnt vmcnt(0)
    {MF} v[{S}:{S+15}], v[{KR}:{KR+3}], v[{Q}:{Q+3}], 0
    {MF} v[{S}:{S+15}], v[{KR+4}:{KR+7}], v[{Q+4}:{Q+7}], v[{S}:{S+15}]
    """)
    for r in range(0, 16, 2):
        k(f"v_max3_f32 v14, v{S+r}, v{S+r+1}, v14")
    k(f"""
    s_add_u32 s9, s9, 4096
    s_cmp_lt_u32 s9, {kvf + 64*4096}
    s_cbranch_scc1 {FB}_l1
    v_mov_b32 v8, v14
    s_nop 1
    v_permlane32_swap_b32 v14, v8
    v_max_f32 v14, v14, v8
    """)
    for r in range(16):
        k(f"v_mov_b32 v{O+r}, 0")
    k(f"""
    s_mov_b32 s9, {kvf}
    {FB}_l2:
    buffer_load_dwordx4 v[{KR}:{KR+3}], v4, s[40:43], s9 offen
    buffer_load_dwordx4 v[{KR+4}:{KR+7}], v4, s[40:43], s9 offen offset:1024
    buffer_load_dwordx4 v[{KR+8}:{KR+11}], v4, s[40:43], s9 offen offset:2048
    buffer_load_dwordx4 v[{KR+12}:{KR+15}], v4, s[40:43], s9 offen offset:3072
    s_waitcnt vmcnt(0)
    {MF} v[{S}:{S+15}], v[{KR}:{KR+3}], v[{Q}:{Q+3}], 0
    {MF} v[{S}:{S+15}], v[{KR+4}:{KR+7}], v[{Q+4}:{Q+7}], v[{S}:{S+15}]
    """)
    for r in range(16):
        k(f"v_sub_f32 v{S+r}, v{S+r}, v14")
    for r in range(16):
        k(f"v_exp_f32 v{S+r}, v{S+r}")
    for d in range(8):
        k(f"v_cvt_pk_bf16_f32 v{P+d}, v{S+2*d}, v{S+2*d+1}")
    k(f"""
    {MF} v[{O}:{O+15}], v[{KR+8}:{KR+11}], v[{P}:{P+3}], v[{O}:{O+15}]
    {MF} v[{O}:{O+15}], v[{KR+12}:{KR+15}], v[{P+4}:{P+7}], v[{O}:{O+15}]
    s_add_u32 s9, s9, 4096
    s_cmp_lt_u32 s9, {kvf + 64*4096}
    s_nop 7
    s_cbranch_scc1 {FB}_l2
    s_nop 7
    v_mov_b32 v9, v{O+12}
    v_mov_b32 v8, v{O+12}
    s_nop 1
    v_permlane32_swap_b32 v9, v8
    v_rcp_f32 v9, v8
    s_nop 1
    s_branch {NORM}
    """)
    epilogue(k)
    return k, dict(grid=256, block=256, lds=LDS)
```

```python
from common import *
import struct, math


def f2h(x):
    return "0x%08x" % struct.unpack("<I", struct.pack("<f", x))[0]


QSCALE = (28 ** -0.5) * math.log2(math.e)
MF = "v_mfma_f32_32x32x16_bf16"


def stats_finish(k, s1, s2):
    k(f"""
    v_mul_f32 v{s1}, {f2h(1.0/448)}, v{s1}
    v_mul_f32 v{s2}, {f2h(1.0/448)}, v{s2}
    v_fma_f32 v{s2}, -v{s1}, v{s1}, v{s2}
    v_max_f32 v{s2}, 0, v{s2}
    v_add_f32 v{s2}, {f2h(1e-5)}, v{s2}
    v_rsq_f32 v{s2}, v{s2}
    """)


def qkv_setup(k, kvf=KVF):
    k(f"""
    s_lshl_b32 s6, s4, 1
    s_add_u32 s6, s6, s12
    s_lshl_b32 s7, s5, 1
    s_add_u32 s62, s7, s13
    s_lshl_b32 s8, s6, 4
    s_add_u32 s8, s8, s62
    s_lshl_b32 s8, s8, 11
    s_add_u32 s60, s8, {QF}
    v_lshlrev_b32 v50, 4, v1
    s_lshl_b32 s9, s6, 12
    s_add_u32 s9, s9, {kvf}
    s_and_b32 s6, s62, 7
    s_lshr_b32 s7, s6, 2
    s_lshl_b32 s7, s7, 10
    s_and_b32 s8, s6, 1
    s_lshl_b32 s8, s8, 9
    s_add_u32 s7, s7, s8
    s_and_b32 s8, s6, 2
    s_lshl_b32 s8, s8, 2
    s_add_u32 s7, s7, s8
    s_lshl_b32 s8, s6, 6
    s_add_u32 s8, s8, 2048
    s_cmp_ge_u32 s62, 8
    s_cselect_b32 s7, s8, s7
    s_cselect_b64 vcc, -1, 0
    s_add_u32 s61, s9, s7
    v_lshrrev_b32 v51, 4, v2
    v_lshlrev_b32 v51, 10, v51
    v_bfe_u32 v52, v2, 2, 1
    v_lshl_add_u32 v51, v52, 9, v51
    v_and_b32 v52, 3, v2
    v_lshl_add_u32 v51, v52, 1, v51
    v_bfe_u32 v52, v2, 3, 1
    v_lshl_add_u32 v51, v52, 3, v51
    v_lshlrev_b32 v52, 4, v2
    v_cndmask_b32 v51, v52, v51, vcc
    """)


def qkv_epilogue(k, ACC, CS, sfx='', sc=''):
    k(f"""
    v_mul_f32 v36, {f2h(QSCALE)}, v31
    v_cmp_eq_u32 vcc, 1, v3
    v_sub_f32 v30, 0, v30
    v_cndmask_b32 v37, v36, v31, vcc
    """)
    for r in range(16):
        k(f"v_fmac_f32 v{ACC+r}, v30, v{CS+r}")
    for r in range(16):
        k(f"v_mul_f32 v{ACC+r}, v{36 if r < 12 else 37}, v{ACC+r}")
    PKD = 40
    for d in range(8):
        k(f"v_cvt_pk_bf16_f32 v{PKD+d}, v{ACC+2*d}, v{ACC+2*d+1}")
    k(f"""
    buffer_store_dwordx4 v[{PKD}:{PKD+3}], v50, s[40:43], s60 offen{sc}
    buffer_store_dwordx4 v[{PKD+4}:{PKD+7}], v50, s[40:43], s60 offen offset:1024{sc}
    s_and_b32 s10, s62, 7
    v_mov_b32 v48, v{PKD+6}
    v_mov_b32 v49, v{PKD+7}
    s_mov_b32 exec_lo, 0
    s_cmp_lg_u32 s10, 7
    s_cbranch_scc1 {k.name}_kv1{sfx}
    s_cmp_ge_u32 s62, 8
    s_cselect_b32 s10, 0x3f80, 0
    v_mov_b32 v48, s10
    v_mov_b32 v49, 0
    {k.name}_kv1{sfx}:
    s_cmp_ge_u32 s62, 8
    s_cbranch_scc1 {k.name}_v{sfx}
    buffer_store_dwordx2 v[48:49], v51, s[40:43], s61 offen{sc}
    s_branch {k.name}_kvd{sfx}
    {k.name}_v{sfx}:
    buffer_store_short v48, v51, s[40:43], s61 offen{sc}
    buffer_store_short_d16_hi v48, v51, s[40:43], s61 offen offset:16{sc}
    buffer_store_short v49, v51, s[40:43], s61 offen offset:32{sc}
    buffer_store_short_d16_hi v49, v51, s[40:43], s61 offen offset:48{sc}
    {k.name}_kvd{sfx}:
    s_mov_b64 exec, -1
    """)


def gen_p1a(name, MAP='H2', NF=(2, 4), PSC=' sc1', ND=5, KP=16, PREPOS=0, NTP=' nt', NTX='', NTW='', MKSC=' sc1', QSC='', CPL=(2, 5)):
    import os
    DBG = os.environ.get("DBG2", "").split(",")
    k = Kernel(name)
    prologue(k, 256, (44, 62, None, "ma_kernel", "pc", CPL[0]))
    WB = 57344
    PB = WB + 512 * 128
    STB = PB + 28 * 1024
    LDS = STB + 512
    LN = k.name
    k("""
    s_bfe_u32 s4, s2, 0x20001
    s_lshl_b32 s4, s4, 3
    s_and_b32 s5, s2, 1
    s_add_u32 s4, s4, s5
    s_lshr_b32 s5, s2, 3
    s_and_b32 s6, s5, 3
    s_lshl_b32 s6, s6, 1
    s_add_u32 s4, s4, s6
    """)
    k(f"""
    s_lshr_b32 s5, s5, 2
    v_and_b32 v2, 31, v1
    v_lshrrev_b32 v3, 5, v1
    v_lshrrev_b32 v4, 3, v1
    v_and_b32 v5, 7, v1
    v_lshrrev_b32 v6, 4, v1
    v_lshlrev_b32 v50, 4, v1
    """)
    k(f"""
    s_lshl_b32 s6, s4, 6
    s_lshl_b32 s7, s3, 4
    s_add_u32 s6, s6, s7
    v_add_u32 v7, s6, v4
    v_mul_u32_u24 v7, 896, v7
    v_xor_b32 v8, v5, v6
    v_lshl_add_u32 v8, v8, 4, v7
    v_xor_b32 v9, v5, v6
    v_xor_b32 v9, 4, v9
    v_lshl_add_u32 v9, v9, 4, v7
    v_add_u32 v9, {8*896}, v9
    """)
    k(f"""
    s_mul_i32 s6, s5, 112
    s_mul_i32 s7, s3, {8*896}
    s_add_u32 s6, s6, s7
    v_mul_u32_u24 v10, 896, v4
    v_lshl_add_u32 v10, v5, 4, v10
    v_add_u32 v10, s6, v10
    """)
    k(f"""
    s_lshl_b32 s6, s3, 6
    v_add_u32 v11, s6, v1
    v_lshlrev_b32 v12, 7, v11
    v_add_u32 v12, {WB+112}, v12
    v_mul_u32_u24 v11, 56, v11
    s_and_b32 s7, s5, 3
    s_lshl_b32 s7, s7, 4
    v_add_u32 v11, s7, v11
    v_add_u32 v14, {256*56}, v11
    s_lshl_b32 s9, s3, 11
    s_lshl_b32 s10, s3, 10
    s_add_u32 s10, s10, {WB}
    s_and_b32 s6, s2, 7
    s_lshl_b32 s7, s5, 3
    s_add_u32 s6, s6, s7
    s_lshl_b32 s6, s6, 2
    s_add_u32 s6, s6, s3
    s_lshl_b32 s6, s6, 14
    s_add_u32 s15, s6, {MK0}
    s_cmp_eq_u32 s5, 7
    s_cselect_b32 s69, 0, s5
    s_lshl_b32 s69, s69, 13
    s_bfe_u32 s70, s2, 0x20003
    s_mul_i32 s70, s70, 7
    s_lshr_b32 s70, s70, 1
    s_lshl_b32 s70, s70, 12
    v_mov_b32 v56, -1
    v_mov_b32 v57, -1
    v_mov_b32 v58, -1
    v_mov_b32 v59, -1
    """)
    k("s_waitcnt lgkmcnt(0)")
    stamp_mid(k, 0)
    vm = VM(k)
    srd(k, S_WS, P_WS, WS_USED)
    srd(k, 44, P_X, XBYTES)
    srd(k, 48, P_WQ, D * D * 2)

    def ldx(cnt):
        for _ in range(cnt):
            k("s_add_u32 m0, s9, s69\ns_lshr_b32 s11, s69, 6")
            vm.issue(f"buffer_load_dwordx4 v8, s[44:47], s11 offen{NTX} lds", "x")
            k("s_add_u32 m0, m0, 1024\ns_add_u32 s69, s69, 8192")
            vm.issue(f"buffer_load_dwordx4 v9, s[44:47], s11 offen{NTX} lds", "x")
            k("s_cmp_eq_u32 s69, 57344\ns_cselect_b32 s69, 0, s69")

    def ldw(cnt):
        k("s_mov_b32 exec_lo, 0x7f7f7f7f\ns_mov_b32 exec_hi, 0x7f7f7f7f")
        for _ in range(cnt):
            k("s_add_u32 m0, s10, s70\ns_mul_i32 s11, s70, 7")
            vm.issue(f"buffer_load_dwordx4 v10, s[48:51], s11 offen{NTW} lds", "w")
            k("s_add_u32 s70, s70, 4096\ns_cmp_eq_u32 s70, 57344\ns_cselect_b32 s70, 0, s70")
        k("s_mov_b64 exec, -1")
    ldx(NF[0]); ldw(NF[1])
    k(f"""
    s_and_b32 s6, s2, 7
    s_bfe_u32 s7, s2, 0x20003
    s_mul_i32 s66, s5, 3
    s_add_u32 s66, s66, s7
    s_sub_u32 s66, s66, 1
    s_lshl_b32 s66, s66, 3
    s_add_u32 s66, s66, s6
    s_cmp_eq_u32 s7, 0
    s_cselect_b32 s66, 255, s66
    s_mov_b32 s59, 0x20000
    s_cmp_ge_u32 s66, 112
    s_cbranch_scc1 {LN}_u1
    s_mov_b32 s63, 0
    s_cmp_lt_u32 s3, 2
    s_cselect_b32 s56, s{P_WG}, s{P_WU}
    s_cselect_b32 s57, s{P_WG+1}, s{P_WU+1}
    s_mov_b32 s58, {D*F*2}
    s_mov_b32 s65, {F*2}
    s_and_b32 s6, s66, 3
    s_mul_i32 s6, s6, 112
    s_and_b32 s7, s3, 1
    s_mul_i32 s7, s7, 56
    s_add_u32 s6, s6, s7
    s_mul_i32 s64, s6, {F*2}
    s_lshr_b32 s67, s66, 2
    s_and_b32 s68, s66, 3
    s_branch {LN}_u9
    {LN}_u1:
    s_mov_b32 s65, {D*2}
    s_cmp_ge_u32 s66, 168
    s_cbranch_scc1 {LN}_u2
    s_mov_b32 s63, 1
    s_mov_b32 s56, s{P_WD}
    s_mov_b32 s57, s{P_WD+1}
    s_mov_b32 s58, {D*F*2}
    s_sub_u32 s6, s66, 112
    s_branch {LN}_u3
    {LN}_u2:
    s_mov_b32 s63, 2
    s_mov_b32 s56, s{P_WO}
    s_mov_b32 s57, s{P_WO+1}
    s_mov_b32 s58, {D*D*2}
    s_sub_u32 s6, s66, 168
    s_cmp_lt_u32 s66, 182
    s_cbranch_scc1 {LN}_u3
    s_mov_b32 s63, 3
    s_mov_b32 s58, 0
    s_mov_b32 s6, 0
    {LN}_u3:
    s_mul_i32 s68, s6, 9363
    s_lshr_b32 s68, s68, 16
    s_mul_i32 s7, s68, 7
    s_sub_u32 s67, s6, s7
    s_mul_i32 s6, s68, 224
    s_mul_i32 s7, s3, 56
    s_add_u32 s6, s6, s7
    s_mul_i32 s64, s6, {D*2}
    {LN}_u9:
    s_and_b32 s57, s57, 0xffff
    s_lshl_b32 s6, s67, 7
    s_add_u32 s64, s64, s6
    v_mul_lo_u32 v13, v4, s65
    v_lshl_add_u32 v13, v5, 4, v13
    s_lshl_b32 s65, s65, 3
    s_mul_i32 s6, s3, {7*1024}
    s_add_u32 s6, s6, {PB}
    """)
    k(f"""
    s_mov_b32 s66, s6
    s_cmp_lt_u32 s5, 4
    s_cselect_b32 s52, s{P_WK}, s{P_WV}
    s_cselect_b32 s53, s{P_WK+1}, s{P_WV+1}
    s_and_b32 s53, s53, 0xffff
    s_mov_b32 s54, {D*DH*2}
    s_mov_b32 s55, 0x20000
    v_and_b32 v55, 15, v1
    v_lshrrev_b32 v54, 3, v55
    v_lshlrev_b32 v54, 10, v54
    v_and_b32 v15, 7, v55
    v_lshl_add_u32 v54, v15, 7, v54
    v_bfe_u32 v15, v55, 1, 2
    v_xor_b32 v15, v15, v6
    v_lshl_add_u32 v54, v15, 5, v54
    v_add_u32 v54, s9, v54
    v_bfe_u32 v15, v55, 3, 1
    v_lshl_add_u32 v54, v15, 4, v54
    v_xor_b32 v61, 16, v54
    s_lshl_b32 s6, s3, 7
    s_add_u32 s6, s6, {STB}
    v_lshl_add_u32 v55, v55, 3, s6
    """)
    k(f"""
    s_mov_b32 s71, 0x3f803f80
    s_lshr_b32 s12, s3, 1
    s_and_b32 s13, s3, 1
    s_lshl_b32 s6, s12, 5
    v_add_u32 v32, s6, v2
    v_lshlrev_b32 v53, 3, v32
    v_add_u32 v53, {STB}, v53
    v_lshrrev_b32 v33, 3, v32
    v_lshlrev_b32 v33, 10, v33
    v_and_b32 v34, 7, v32
    v_lshl_add_u32 v33, v34, 7, v33
    v_bfe_u32 v34, v32, 1, 3
    """)
    for q in range(4):
        k(f"""
        v_add_u32 v32, {2*q}, v3
        v_xor_b32 v32, v32, v34
        v_lshl_add_u32 v{24+q}, v32, 4, v33
        """)
    k(f"""
    v_bfe_u32 v32, v1, 2, 2
    v_bfe_u32 v33, v1, 4, 1
    v_and_b32 v34, 3, v1
    v_lshl_add_u32 v33, v33, 2, v34
    v_lshlrev_b32 v34, 3, v33
    s_mul_i32 s6, s13, 56
    v_add_u32 v34, s6, v34
    s_lshl_b32 s7, s13, 3
    s_add_u32 s7, s7, 112
    v_mov_b32 v29, s7
    v_cmp_eq_u32 vcc, 7, v33
    v_cndmask_b32 v34, v34, v29, vcc
    v_add_u32 v34, {WB}, v34
    v_lshl_add_u32 v29, v3, 2, v32
    v_lshl_add_u32 v29, v29, 7, v34
    v_lshl_add_u32 v28, v3, 3, v32
    v_lshl_add_u32 v28, v28, 7, v34
    """)
    k("s_mov_b32 s14, s9")
    qkv_setup(k)
    k(f"""
    s_mov_b32 s9, s14
    v_mov_b32 v32, s71
    v_mov_b32 v33, s71
    v_mov_b32 v34, s71
    v_mov_b32 v35, s71
    """)
    k(f"""
    v_bfe_u32 v60, v1, 2, 2
    v_lshl_add_u32 v60, v3, 2, v60
    v_and_b32 v15, 3, v1
    v_lshlrev_b32 v15, 3, v15
    v_lshl_add_u32 v60, v60, 7, v15
    v_bfe_u32 v15, v1, 4, 1
    s_mov_b32 s61x, 0xffff0000
    s_mov_b32 s24, s40
    s_mov_b32 s25, s41
    s_mov_b32 s26, s42
    s_mov_b32 s27, 0x20000
    s_cmp_lg_u32 s63, 0
    s_cbranch_scc1 {LN}_a1
    v_mul_u32_u24 v15, 14336, v15
    s_lshl_b32 s6, s3, 5
    s_add_u32 s6, s6, {PB}
    v_add3_u32 v60, v60, v15, s6
    s_lshl_b32 s6, s67, 2
    s_add_u32 s6, s6, s3
    s_mul_i32 s8, s6, 9363
    s_lshr_b32 s8, s8, 16
    s_mul_i32 s7, s8, 7
    s_sub_u32 s7, s6, s7
    s_mul_i32 s8, s8, {WGS*1024}
    s_add_u32 s8, s8, {WGUF}
    s_sub_u32 s28, s7, 3
    s_lshr_b32 s29, s28, 1
    s_mul_i32 s29, s29, 58
    s_and_b32 s28, s28, 1
    s_add_u32 s28, s28, s29
    s_add_u32 s28, s28, 87
    s_mul_i32 s29, s68, 14
    s_add_u32 s29, s29, s28
    s_mul_i32 s30, s68, 18
    s_add_u32 s30, s30, s7
    s_cmp_lt_u32 s7, 3
    s_cselect_b32 s29, s30, s29
    s_cselect_b32 s30, 3, 2
    s_cselect_b32 s31, 12, 0
    s_lshl_b32 s30, s30, 10
    s_add_u32 s29, s29, s31
    s_lshl_b32 s29, s29, 10
    s_add_u32 s16, s29, s8
    """.replace("s61x", "s32"))
    for j in range(1, 7):
        k(f"s_add_u32 s{16+j}, s{15+j}, s30")
    k(f"""
    s_mul_i32 s29, s68, 3
    s_add_u32 s29, s29, s7
    s_lshl_b32 s29, s29, 10
    s_add_u32 s29, s29, s8
    s_add_u32 s30, s7, 84
    s_add_u32 s31, s28, 56
    s_cmp_lt_u32 s7, 3
    s_cselect_b32 s22, s29, s22
    s_cselect_b32 s30, s30, s31
    s_lshl_b32 s30, s30, 10
    s_add_u32 s30, s30, s8
    s_lshl_b32 s31, s68, 2
    s_add_u32 s23, s30, s31
    s_branch {LN}_a9
    {LN}_a1:
    v_lshl_add_u32 v60, v15, 5, v60
    s_mul_i32 s6, s12, {7*2048}
    s_lshl_b32 s7, s13, 6
    s_add_u32 s6, s6, s7
    s_add_u32 s6, s6, {PB}
    v_add_u32 v60, s6, v60
    s_lshl_b32 s6, s67, 1
    s_add_u32 s6, s6, s13
    s_mul_i32 s7, s6, 112
    s_mul_i32 s8, s68, 14
    s_add_u32 s7, s7, s8
    s_mul_i32 s8, s12, 7
    s_add_u32 s7, s7, s8
    s_lshl_b32 s7, s7, 10
    s_add_u32 s16, s7, {WDF}
    s_lshl_b32 s7, s6, 5
    s_lshl_b32 s8, s68, 4
    s_add_u32 s7, s7, s8
    s_lshl_b32 s8, s12, 3
    s_add_u32 s7, s7, s8
    s_lshl_b32 s7, s7, 10
    s_add_u32 s7, s7, {WOF}
    s_cmp_eq_u32 s63, 2
    s_cselect_b32 s16, s7, s16
    s_cmp_lg_u32 s63, 3
    s_cbranch_scc1 {LN}_a2
    s_and_b32 s6, s2, 3
    s_mul_i32 s7, s6, {7*2048}
    v_add_u32 v60, s7, v29
    s_mul_i32 s7, s62, 28
    s_mul_i32 s6, s6, 7
    s_add_u32 s7, s7, s6
    s_lshl_b32 s7, s7, 10
    s_add_u32 s16, s7, {WQF}
    s_and_b32 s6, s2, 0x1c
    s_or_b32 s6, s6, s12
    s_cmp_eq_u32 s6, 0
    s_cselect_b32 s26, s26, 0
    {LN}_a2:
    """)
    for j in range(1, 8):
        k(f"s_add_u32 s{16+j}, s{15+j}, 1024")
    k(f"{LN}_a9:")
    stamp_mid(k, 7)
    vm.issue("buffer_load_dwordx4 v[16:19], v11, s[52:55], 0 offen", "kv")
    vm.issue("buffer_load_dwordx4 v[20:23], v14, s[52:55], 0 offen", "kv")
    ldx(7 - NF[0])
    ldw(14 - NF[1])
    stamp_mid(k, 1)
    def preblk():
        cpf = code_pf(k, 44, 220, "ma_kernel", "mb_kernel_end", "pc2", CPL[1])
        k(f"s_bfe_u32 s6, s2, 0x20003\ns_cmp_eq_u32 s6, 0\ns_cbranch_scc1 {LN}_mk1")
        for i in range(7):
            k(f"s_add_u32 m0, s66, {i*1024}\ns_nop 0")
            vm.issue(f"buffer_load_dwordx4 v13, s[56:59], s64 offen{NTP} lds", "pre")
            k("s_add_u32 s64, s64, s65")
        k(f"{LN}_mk1b:")
        vm.issue(cpf, "cpf")
        stamp_mid(k, 8)
    if PREPOS == 0: preblk()
    vm.wait("kv")
    k("ds_write_b128 v12, v[16:19]\nds_write_b128 v12, v[20:23] offset:32768")
    SR = 128
    T = 184
    vm.wait("x")
    stamp_mid(k, 10)
    for c in range(7):
        for h in range(2):
            r = SR + 8 * c + 4 * h
            k(f"ds_read_b128 v[{r}:{r+3}], v{61 if h else 54} offset:{c*8192}")
    for c in range(ND):
        k(f"s_waitcnt lgkmcnt({12-2*c})")
        for d in range(8):
            r = SR + 8 * c + d
            z = c == 0 and d == 0
            k(f"v_dot2_f32_bf16 v30, v{r}, s71, {'0' if z else 'v30'}")
            k(f"v_dot2_f32_bf16 v31, v{r}, v{r}, {'0' if z else 'v31'}")
    if PREPOS == 1: preblk()
    sv = []
    for i, r in enumerate(range(SR + 8 * ND, SR + 56)):
        t = 40 + 2 * (i & 1)
        sv += [f"v_lshlrev_b32 v{t}, 16, v{r}", f"v_and_b32 v{t+1}, s32, v{r}",
               f"v_add_f32 v30, v30, v{t}", f"v_fmac_f32 v31, v{t}, v{t}",
               f"v_add_f32 v30, v30, v{t+1}", f"v_fmac_f32 v31, v{t+1}, v{t+1}"]
    ad = ["v_add_f32 v30, v30, v36", "v_add_f32 v31, v31, v37"]
    sv += [
           "v_mov_b32 v36, v30", "v_mov_b32 v37, v31", "GAP",
           "v_permlane32_swap_b32 v30, v36", "v_permlane32_swap_b32 v31, v37", *ad,
           "v_mov_b32 v36, v30", "v_mov_b32 v37, v31", "GAP",
           "v_permlane16_swap_b32 v30, v36", "v_permlane16_swap_b32 v31, v37", *ad,
           f"v_mul_f32 v30, {f2h(1.0/448)}, v30", f"v_mul_f32 v31, {f2h(1.0/448)}, v31", "v_fma_f32 v31, -v30, v30, v31",
           "v_max_f32 v31, 0, v31", f"v_add_f32 v31, {f2h(1e-5)}, v31", "v_rsq_f32 v31, v31", "GAP", "W"]
    stamp_mid(k, 2)
    ACC, CS, RING = 64, 80, 96
    lg = LG()

    def reads(kb):
        r = RING + 8 * (kb % 4)
        return [f"ds_read_b64_tr_b16 v[{r}:{r+1}], v28 offset:{kb*2048}",
                f"ds_read_b64_tr_b16 v[{r+2}:{r+3}], v28 offset:{kb*2048+512}",
                f"ds_read_b128 v[{r+4}:{r+7}], v{24+(kb&3)} offset:{(kb>>2)*8192}"]

    def ds(lg, text, tag):
        lg.issue(tag); k(text)

    def put(lg, sv, n):
        while sv and n > 0:
            o = sv.pop(0); n -= 1
            if o == "GAP": return
            if o == "W": ds(lg, "ds_write_b64 v55, v[30:31]", "stw")
            else: k(o)

    def step(lg, sv, kb, side, more=()):
        w = lg.waitstr(("f", kb))
        if w: k(w)
        r = RING + 8 * (kb % 4)
        c0 = "0" if kb == 0 else f"v[{ACC}:{ACC+15}]"
        c1 = "0" if kb == 0 else f"v[{CS}:{CS+15}]"
        if kb + 3 < 28: side = [(x, ("f", kb + 3)) for x in reads(kb + 3)] + side
        h = (len(side) + 1) // 2
        room = max(0, min((11 - len(side) - 2 * len(more)) // 2, -(-len(sv) // max(1, 2 * (24 - kb))) + 1))
        k(f"{MF} v[{ACC}:{ACC+15}], v[{r}:{r+3}], v[{r+4}:{r+7}], {c0}")
        for o, t in side[:h]: ds(lg, o, t)
        put(lg, sv, room)
        k(f"{MF} v[{CS}:{CS+15}], v[{r}:{r+3}], v[32:35], {c1}")
        for o, t in side[h:]: ds(lg, o, t)
        for f in more: f()
        put(lg, sv, room)
    vm.wait("w")
    k(f"s_waitcnt lgkmcnt(0)\ns_barrier")
    stamp_mid(k, 3)
    for kb in range(3):
        for r in reads(kb): ds(lg, r, ("f", kb))
    for kb in range(KP):
        step(lg, sv, kb, [])
    stamp_mid(k, 4)
    k(f"s_cmp_eq_u32 s63, 3\ns_cbranch_scc1 {LN}_np")
    vm.wait("pre")
    k(f"{LN}_np:")
    k(f"s_barrier\ns_cmp_eq_u32 s63, 2\ns_cbranch_scc1 {LN}_t2")
    stamp_mid(k, 6)

    def finish(offs, sfx):
        import copy
        l2 = copy.deepcopy(lg); s2 = list(sv)
        trs = []
        for j, (o0, o1) in enumerate(offs):
            trs += [(f"ds_read_b64_tr_b16 v[{T+4*j}:{T+4*j+1}], v60 offset:{o0}", ("t", j)),
                    (f"ds_read_b64_tr_b16 v[{T+4*j+2}:{T+4*j+3}], v60 offset:{o1}", ("t", j))]

        def st(j):
            def f():
                w = l2.waitstr(("t", j))
                if w: k(w)
                if sfx == "o" and j & 1:
                    k(f"v_cndmask_b32 v{T+4*j+2}, 0, v{T+4*j+2}, vcc\nv_cndmask_b32 v{T+4*j+3}, 0, v{T+4*j+3}, vcc")
                k(f"buffer_store_dwordx4 v[{T+4*j}:{T+4*j+3}], v50, s[24:27], s{16+j} offen{PSC}")
            return f
        sts = [st(j) for j in range(len(offs))]
        if sfx == "o": k("s_mov_b32 vcc_lo, -1\ns_mov_b32 vcc_hi, 0")
        for kb in range(KP, 28):
            side, trs = trs[:4], trs[4:]
            more = [sts.pop(0)] if (sts and kb >= KP + 2) else []
            if kb == 26:
                assert not s2, len(s2)
                k((l2.waitstr("stw") or "") + "\ns_barrier")
                side = side + [("ds_read_b64 v[30:31], v53", "st")]
            step(l2, s2, kb, side, more)
        for f in sts: f()
        if sfx == "":
            k(f"s_cmp_lg_u32 s63, 0\ns_nop 9\ns_cbranch_scc1 {LN}_nc")
            for j in range(7):
                for d in range(4):
                    k(f"v_dot2_f32_bf16 v{16+(d&1)}, v{T+4*j+d}, s71, {'0' if (j == 0 and d < 2) else 'v%d' % (16+(d&1))}")
            k(f"""
            v_add_f32 v16, v16, v17
            v_mov_b32 v17, v16
            s_nop 1
            v_permlane32_swap_b32 v16, v17
            v_add_f32 v16, v16, v17
            v_cvt_pk_bf16_f32 v17, v16, v16
            v_lshlrev_b32 v17, 16, v17
            v_sub_f32 v17, v16, v17
            v_cvt_pk_bf16_f32 v16, v16, v17
            buffer_store_dword v16, v50, s[24:27], s23 offen sc1
            {LN}_nc:
            """)
        k(l2.waitstr("st") or "")
        qkv_epilogue(k, ACC, CS, sfx, QSC)
    finish([(j * 2048, j * 2048 + 1024) for j in range(7)], "")
    stamp_mid(k, 5)

    def mk(i0, i1):
        for i in range(i0, i1):
            if i % 4 == 0 or i == i0: k(f"s_add_u32 s14, s15, {(i & ~3)*1024}")
            k(f"buffer_store_dwordx4 v[56:59], v50, s[40:43], s14 offen offset:{(i%4)*1024}{MKSC}")
    k(f"""
    s_bfe_u32 s6, s2, 0x20003
    s_cmp_lg_u32 s6, 0
    s_cbranch_scc1 {LN}_fin
    s_lshl_b32 s6, s62, 7
    s_add_u32 s6, s6, {CSQ}
    v_lshlrev_b32 v13, 4, v3
    """)
    for q in range(4):
        k(f"buffer_store_dwordx4 v[{CS+4*q}:{CS+4*q+3}], v13, s[24:27], s6 offen offset:{q*32}")
    mk(7, 16)
    k(f"""
    s_sub_u32 s14, s15, {MK0}
    s_lshr_b32 s14, s14, 4
    s_add_u32 s14, s14, {ST2}
    buffer_store_dwordx4 v[56:59], v50, s[40:43], s14 offen{MKSC}
    """)
    k(f"{LN}_fin:\ns_endpgm\n{LN}_t2:")
    finish([((28*(jj>>1)+16*(jj&1))*128, (28*(jj>>1)+16*(jj&1)+8)*128) for jj in range(8)], "o")
    k(f"s_endpgm\n{LN}_mk1:")
    mk(0, 7)
    k(f"s_branch {LN}_mk1b")
    epilogue(k)
    return k, dict(grid=256, block=256, lds=LDS)
```

```python
import re

TRANS = ("v_exp_f32", "v_log_f32", "v_rcp_f32", "v_rsq_f32", "v_sqrt_f32", "v_sin_f32", "v_cos_f32",
         "v_exp_f16", "v_rcp_iflag_f32")

_reg_re = re.compile(r"^(-?)(?:abs\()?([vas])(?:(\d+)|\[(\d+):(\d+)\])\)?$")


def parse_reg(tok):
    tok = tok.strip()
    if tok in ("vcc",):
        return [("s", "vcc_lo"), ("s", "vcc_hi")]
    if tok in ("vcc_lo", "vcc_hi", "m0", "exec_lo", "exec_hi"):
        return [("s", tok)]
    if tok == "exec":
        return [("s", "exec_lo"), ("s", "exec_hi")]
    m = _reg_re.match(tok)
    if not m:
        return []
    k = m.group(2)
    if m.group(3) is not None:
        return [(k, int(m.group(3)))]
    return [(k, i) for i in range(int(m.group(4)), int(m.group(5)) + 1)]


class Ins:
    __slots__ = ("text", "op", "ops", "mods", "cls", "dst", "src", "srcC", "srcAB", "passes", "label", "target", "nop")

    def __init__(self, text):
        self.text = text
        self.label = None
        self.target = None
        self.nop = 0
        self.srcC = []
        self.srcAB = []
        self.passes = 0
        t = text.split(";")[0].strip()
        if t.endswith(":"):
            self.label = t[:-1]
            self.op = "label"; self.cls = "label"; self.dst = []; self.src = []; self.ops = []; self.mods = ""
            return
        if t.startswith("."):
            self.op = "directive"; self.cls = "label"; self.dst = []; self.src = []; self.ops = []; self.mods = ""
            return
        sp = t.split(None, 1)
        op = sp[0]
        rest = sp[1] if len(sp) > 1 else ""
        parts = []
        depth = 0; cur = ""
        for ch in rest:
            if ch in "[(":
                depth += 1
            if ch in "])":
                depth -= 1
            if ch == "," and depth == 0:
                parts.append(cur.strip()); cur = ""
            else:
                cur += ch
        if cur.strip():
            parts.append(cur.strip())
        mods = ""
        if parts:
            last = parts[-1].split(None, 1)
            if len(last) > 1 and not op.startswith("s_waitcnt"):
                parts[-1] = last[0]; mods = last[1]
        self.op = op; self.ops = parts; self.mods = mods
        base = op
        for suf in ("_e32", "_e64", "_dpp", "_sdwa"):
            if base.endswith(suf):
                base = base[: -len(suf)]
        R = [parse_reg(p) for p in parts]
        dst = []; src = []
        if op.startswith("v_mfma"):
            self.cls = "mfma"
            dst = R[0]; self.srcAB = R[1] + R[2]; self.srcC = R[3]; src = R[1] + R[2] + R[3]
            self.passes = 8 if "32x32x16" in op else 4
        elif op.startswith("v_"):
            self.cls = "trans" if base in TRANS else "valu"
            if base.startswith("v_cmp"):
                dst = R[0]; src = sum(R[1:], [])
                if base.startswith("v_cmpx"):
                    dst = dst + parse_reg("exec")
            elif base in ("v_permlane32_swap_b32", "v_permlane16_swap_b32", "v_swap_b32"):
                dst = R[0] + R[1]; src = R[0] + R[1]
            elif base in ("v_fmac_f32", "v_dot2c_f32_bf16", "v_pk_fmac_f16", "v_writelane_b32"):
                dst = R[0]; src = sum(R, [])
            elif base in ("v_add_co_u32", "v_sub_co_u32", "v_addc_co_u32", "v_subb_co_u32", "v_subrev_co_u32", "v_div_scale_f32", "v_mad_u64_u32"):
                dst = R[0] + R[1]; src = sum(R[2:], [])
            elif base == "v_nop":
                pass
            else:
                dst = R[0]; src = sum(R[1:], [])
                if "UNUSED_PRESERVE" in mods or op.endswith("_dpp"):
                    src = src + R[0]
                if base == "v_cndmask_b32" and len(parts) == 3:
                    src = src + parse_reg("vcc")
        elif op.startswith("buffer_") or op.startswith("global_"):
            self.cls = "vmem"
            if op in ("buffer_wbl2", "buffer_inv"):
                pass
            elif op.startswith("buffer_load"):
                if re.search(r"\blds\b", mods):
                    src = sum(R, []) + parse_reg("m0")
                    self.cls = "vmem_lds"
                else:
                    dst = R[0]; src = sum(R[1:], [])
                    if "d16" in op:
                        src = src + R[0]
            elif op.startswith("buffer_store"):
                src = sum(R, []); self.cls = "vmem_st"
            elif op.startswith("buffer_atomic"):
                src = sum(R, [])
                if "sc0" in mods:
                    dst = R[0]
                else:
                    self.cls = "vmem_st"
            elif op.startswith("global_load_lds"):
                src = sum(R, []) + parse_reg("m0"); self.cls = "vmem_lds"
            elif op.startswith("global_load"):
                dst = R[0]; src = sum(R[1:], [])
            elif op.startswith("global_store"):
                src = sum(R, []); self.cls = "vmem_st"
            elif op.startswith("global_atomic"):
                if "sc0" in mods:
                    dst = R[0]; src = sum(R[1:], [])
                else:
                    src = sum(R, []); self.cls = "vmem_st"
            else:
                raise ValueError(op)
        elif op.startswith("ds_"):
            self.cls = "ds"
            if op.startswith("ds_read") or op.startswith("ds_bpermute") or op.startswith("ds_permute") or op.startswith("ds_swizzle"):
                dst = R[0]; src = sum(R[1:], [])
            else:
                src = sum(R, [])
        elif op.startswith("s_"):
            self.cls = "salu"
            if op.startswith("s_load") or op.startswith("s_buffer_load") or op in ("s_memtime", "s_memrealtime"):
                self.cls = "smem"; dst = R[0]; src = sum(R[1:], [])
            elif op == "s_nop":
                self.nop = int(parts[0], 0) + 1
            elif op.startswith("s_cbranch") or op == "s_branch":
                self.target = parts[0]
                if "vcc" in op: src = parse_reg("vcc")
                if "exec" in op: src = parse_reg("exec")
            elif op.startswith("s_cmp") or op.startswith("s_bitcmp"):
                src = sum(R, [])
            elif op in ("s_waitcnt", "s_barrier", "s_endpgm", "s_setprio", "s_sleep", "s_setreg_b32", "s_setreg_imm32_b32"):
                pass
            elif "saveexec" in op:
                dst = R[0] + parse_reg("exec"); src = sum(R[1:], []) + parse_reg("exec")
            else:
                dst = R[0]; src = sum(R[1:], [])
                if op in ("s_addk_i32", "s_mulk_i32"):
                    src = src + R[0]
        else:
            raise ValueError("unknown op " + text)
        self.dst = dst; self.src = src

    def ws(self):
        if self.cls == "label":
            return 0
        return self.nop if self.nop else 1


def is_valu(i):
    return i.cls in ("valu", "trans")


def required_gap(p, c):
    need = 0
    pd = set(p.dst); cs = set(c.src); cd = set(c.dst)
    if is_valu(p):
        vd = {r for r in pd if r[0] in "va"}
        sd = {r for r in pd if r[0] == "s"}
        if c.cls == "mfma" and vd & cs:
            need = max(need, 2)
        if p.op.startswith("v_dot"):
            if c.op == p.op:
                ab = set(parse_reg(c.ops[1]) + parse_reg(c.ops[2]))
                if vd & ab:
                    need = max(need, 3)
            elif vd & (cs | cd):
                need = max(need, 3)
        if p.cls == "trans" and is_valu(c) and c.cls != "trans" and vd & (cs | cd):
            need = max(need, 1)
        if p.cls == "trans" and c.cls == "trans" and vd & cs:
            need = max(need, 1)
        if p.cls == "trans" and c.cls in ("vmem", "vmem_st", "vmem_lds", "ds") and vd & cs:
            need = max(need, 1)
        if is_valu(c):
            if (c.op.startswith("v_readlane") or c.op.startswith("v_readfirstlane")) and vd & cs:
                need = max(need, 1)
            if c.op.startswith("v_permlane") and vd & cs:
                need = max(need, 2)
            if c.op.endswith("_dpp") and vd & cs:
                need = max(need, 2)
            if sd & cs:
                need = max(need, 4 if c.op.startswith(("v_readlane", "v_writelane")) else 2)
            if ("sdwa" in p.op or ("op_sel" in p.mods and not p.op.startswith("v_pk_"))) and vd & (cs | cd):
                need = max(need, 1)
            if any(r[1] in ("exec_lo", "exec_hi") for r in sd):
                if c.op.endswith("_dpp"): need = max(need, 5)
                if c.op.startswith(("v_readlane", "v_readfirstlane", "v_writelane", "v_permlane")): need = max(need, 4)
        if c.cls in ("vmem", "vmem_st", "vmem_lds") and sd & cs:
            need = max(need, 5)
        if c.cls == "mfma" and any(r[1] in ("exec_lo", "exec_hi") for r in sd):
            need = max(need, 4)
        if c.cls == "salu" and sd & cs:
            need = max(need, 1)
        if c.op.startswith("s_cbranch_vcc") and any(r[1] in ("vcc_lo", "vcc_hi") for r in sd):
            need = max(need, 5)
    if p.cls == "mfma":
        P = p.passes
        big = {8: 12, 4: 8}[P]
        ovl = {8: 10, 4: 6}[P]
        if c.cls == "mfma":
            if pd & set(c.srcAB):
                need = max(need, big)
            if pd & set(c.srcC):
                if not (p.dst == c.srcC and p.passes == c.passes):
                    need = max(need, ovl)
            elif pd & cd:
                need = max(need, ovl)
        elif is_valu(c):
            if pd & (cs | cd):
                need = max(need, big)
            if set(p.srcC) & cd:
                need = max(need, {8: 7, 4: 3}[P])
        elif c.cls in ("vmem", "vmem_st", "vmem_lds", "ds"):
            if pd & (cs | cd):
                need = max(need, big)
            if set(p.srcC) & cd:
                need = max(need, {8: 7, 4: 3}[P])
    if p.cls == "salu" and ("s", "m0") in pd and c.cls == "vmem_lds":
        need = max(need, 1)
    if p.cls == "vmem_st" and re.search(r"x[34]$", p.op):
        data = set(parse_reg(p.ops[0] if p.op.startswith("buffer") else p.ops[1]))
        if data & cd:
            need = max(need, 2 if is_valu(c) else 1)
    if p.cls == "ds" and p.op.startswith("ds_write") and ("b128" in p.op or "b96" in p.op):
        pass
    return need


MAXW = 20


def insert_nops(ins):
    out = []
    for c in ins:
        if c.cls != "label":
            dist = 0
            need_extra = 0
            for p in reversed(out):
                if dist >= MAXW:
                    break
                if p.cls == "label":
                    continue
                g = required_gap(p, c)
                if g > dist:
                    need_extra = max(need_extra, g - dist)
                dist += p.ws()
            while need_extra > 0:
                n = min(need_extra, 16)
                out.append(Ins(f"s_nop {n-1}"))
                need_extra -= n
        out.append(c)
    return out


def check_branch_hazards(ins):
    labels = {i.label: n for n, i in enumerate(ins) if i.label}
    errs = []
    for n, b in enumerate(ins):
        if b.target and b.target in labels:
            pre = [i for i in ins[max(0, n - 40): n + 1] if i.cls != "label"]
            t = labels[b.target]
            post = [i for i in ins[t: t + 40] if i.cls != "label"]
            seq = pre + post
            for ci in range(len(pre), len(seq)):
                dist = 0
                for pi in range(ci - 1, -1, -1):
                    if dist >= MAXW:
                        break
                    if pi < len(pre):
                        g = required_gap(seq[pi], seq[ci])
                        if g > dist:
                            errs.append(f"branch hazard: {seq[pi].text} -> {seq[ci].text} need {g} have {dist} via {b.text}")
                    dist += seq[pi].ws()
    return errs


def check_waitcnt(ins, name=""):
    labels = {i.label: n for n, i in enumerate(ins) if i.label}
    errs = []

    def sim(seq, vm, lg):
        for i in seq:
            if i.cls == "label" or "; retry" in i.text:
                continue
            if i.op == "s_waitcnt":
                txt = " ".join(i.ops) + " " + i.mods
                m = re.search(r"vmcnt\((\d+)\)", txt)
                if m:
                    n = int(m.group(1))
                    while len(vm) > n:
                        vm.pop(0)
                m = re.search(r"lgkmcnt\((\d+)\)", txt)
                if m:
                    n = int(m.group(1))
                    if n == 0:
                        lg.clear()
                    else:
                        if any(k == "smem" for k, _ in lg):
                            pass
                        else:
                            while len(lg) > n:
                                lg.pop(0)
                continue
            touched = set(i.src) | set(i.dst)
            for k, d in vm:
                tv = set(i.src) if i.cls == "vmem" else touched
                if d & tv:
                    errs.append(f"{name}: vmcnt hazard: {i.text} touches pending load regs {sorted(d & touched)[:4]}")
            for k, d in lg:
                if d & touched:
                    errs.append(f"{name}: lgkmcnt hazard: {i.text} touches pending regs {sorted(d & touched)[:4]}")
            if i.cls in ("vmem", "vmem_st", "vmem_lds"):
                vm.append(("d16" if "d16" in i.op else "v", set(i.dst)))
            elif i.cls == "ds":
                lg.append(("ds", set(i.dst)))
            elif i.cls == "smem":
                lg.append(("smem", set(i.dst)))
    vm = []; lg = []
    pos = 0
    for n, b in enumerate(ins):
        if "; retry" in b.text:
            continue
        if b.target and b.target in labels and labels[b.target] < n:
            sim(ins[pos:n + 1], vm, lg)
            pos = n + 1
            vm2 = list(vm); lg2 = list(lg)
            sim(ins[labels[b.target]: n + 1], vm2, lg2)
        elif b.op in ("s_endpgm", "s_branch"):
            sim(ins[pos:n + 1], vm, lg)
            pos = n + 1
            vm = []; lg = []
    sim(ins[pos:], vm, lg)
    return errs


class Kernel:
    def __init__(self, name, vgpr=256, agpr=0, sgpr=102):
        self.name = name
        self.kname = name
        self.lines = []
        self.vgpr = vgpr; self.agpr = agpr; self.sgpr = sgpr
        self._lab = 0

    def __call__(self, s):
        for l in s.strip().split("\n"):
            l = l.strip()
            if l and not l.startswith(";"):
                self.lines.append(l)

    def newlabel(self, base="L"):
        self._lab += 1
        return f"{self.name}_{base}{self._lab}"

    def finish(self):
        ins = [Ins(l) for l in self.lines]
        ins = insert_nops(ins)
        errs = check_branch_hazards(ins) + check_waitcnt(ins, self.name)
        maxv = max([r[1] for i in ins for r in i.dst + i.src if r[0] == "v"] + [0])
        maxa = max([r[1] for i in ins for r in i.dst + i.src if r[0] == "a"] + [-1])
        maxs = max([r[1] for i in ins for r in i.dst + i.src if r[0] == "s" and isinstance(r[1], int)] + [0])
        acc = (maxv + 1 + 3) // 4 * 4
        nfv = acc + maxa + 1 if maxa >= 0 else maxv + 1
        if errs:
            print("\n".join(errs[:30]))
            raise SystemExit(f"{self.name}: {len(errs)} hazard errors")
        body = "\n".join(("" if i.cls == "label" and i.label else "  ") + i.text for i in ins)
        txt = f""".text
.globl {self.kname}
.p2align 12
.p2align 8
.type {self.kname},@function
{self.kname}:
{body}
.section .rodata,"a"
.p2align 6
.amdhsa_kernel {self.kname}
  .amdhsa_next_free_vgpr {nfv}
  .amdhsa_next_free_sgpr {max(maxs + 1, 16)}
  .amdhsa_accum_offset {acc}
  .amdhsa_group_segment_fixed_size 0
  .amdhsa_kernarg_size 96
  .amdhsa_user_sgpr_count 2
  .amdhsa_user_sgpr_kernarg_segment_ptr 1
  .amdhsa_system_sgpr_workgroup_id_x 1
.end_amdhsa_kernel
"""
        self.stats = dict(nins=sum(1 for i in ins if i.cls != "label"), vgpr=maxv + 1, agpr=maxa + 1, sgpr=maxs + 1,
                          nops=sum(1 for i in ins if i.op == "s_nop"))
        return txt


def vr(b, n=1):
    return f"v{b}" if n == 1 else f"v[{b}:{b+n-1}]"


def ar(b, n=1):
    return f"a{b}" if n == 1 else f"a[{b}:{b+n-1}]"


def sr(b, n=1):
    return f"s{b}" if n == 1 else f"s[{b}:{b+n-1}]"


def interleave(main, fill, start=0, per=None):
    out = []
    fi = 0
    for n, m in enumerate(main):
        out.append(m)
        if n >= start:
            k = per[n - start] if isinstance(per, (list, tuple)) else per
            for _ in range(k):
                if fi < len(fill):
                    out.append(fill[fi]); fi += 1
    out.extend(fill[fi:])
    return out
```

```python
from common import *
import common
from k_p1 import f2h, stats_finish, qkv_setup, qkv_epilogue

MF = "v_mfma_f32_32x32x16_bf16"
SC = " sc1"
BUDGET = 200000

DEF = dict(
    X_BURST=6, LEAD=28,
    PACE=(2, 3), BARS=(106, 106, 154), BUD=6,
    KVROT=0, ROT=0, FE=4, MAP='H2', DUAL=0, PACE5=(2,), W_PRE=0,
    SS=(), CPF=15, NOPK=1, E56=6, WD1=0, WD2=12, WD2S=16, BGAP=2, OACK=1, XACK=1, X2ACK=0, DBGP=0, KVSC=None, FUSE=1, STL=1, G0=0, NV=6, FP=(8, 16), CPL=(64, 64), QSC='', OSC='', XP=0, P5T=8, ODLY=0, XDLY=0, MK1=16, MKB=11, UNI=2, MKB1=99, DSPLIT=32,
    HT=(150, 200, 252),
)


def gen_mega(name, layer, k=None, **over):
    C = dict(DEF); C.update(over)
    FUSE = C["FUSE"]
    F1 = FUSE and layer == 1
    SS = C["SS"]

    def stamp_mid(k, idx):
        if SS and idx not in (0, 8): return
        if FUSE and layer != C["STL"] and idx not in ((15, 17, 18) if layer == 0 else (0, 1)): return
        common.stamp_mid(k, idx)
    if F1:
        k.name = name
        k(f"{name}:")
    else:
        k = Kernel(name)
        prologue(k, 256, (44, 15, None, "mm_l1" if FUSE else name + "_end", "pc", C["CPL"][0]) if C["CPF"] & 4 else None)
    QB = 20 if F1 else 10
    kvf = KVF if layer == 0 else KVF1
    mk, hf = (MK0, HF) if layer == 0 else (MK1, HF1)
    Q, O, SA, SB, P = 16, 48, 112, 128, 144
    NS = 160
    LDS = NS * 1024
    RES = 248
    if C["MAP"] == "H2":
        k("""
        s_bfe_u32 s4, s2, 0x20001
        s_lshl_b32 s4, s4, 6
        s_lshr_b32 s5, s2, 6
        s_lshl_b32 s5, s5, 4
        s_add_u32 s4, s4, s5
        s_and_b32 s5, s2, 1
        s_lshl_b32 s5, s5, 3
        s_add_u32 s4, s4, s5
        s_bfe_u32 s5, s2, 0x30003
        s_add_u32 s4, s4, s5
        """)
    else:
        k("""
        s_and_b32 s4, s2, 7
        s_lshl_b32 s4, s4, 5
        s_lshr_b32 s5, s2, 3
        s_add_u32 s4, s4, s5
        """)
    k(f"""
    s_lshr_b32 s5, s4, 2
    s_and_b32 s6, s4, 3
    s_lshl_b32 s6, s6, 3
    v_lshlrev_b32 v4, 4, v1
    v_and_b32 v2, 31, v1
    v_lshrrev_b32 v3, 5, v1
    s_lshl_b32 s8, s3, 16
    s_add_u32 s8, s8, {kvf}
    v_lshrrev_b32 v5, 3, v2
    v_lshlrev_b32 v5, 11, v5
    v_and_b32 v6, 7, v1
    v_add_u32 v6, s6, v6
    v_lshl_add_u32 v6, v3, 5, v6
    v_lshl_add_u32 v13, v6, 4, v5
    s_lshl_b32 s7, s5, 15
    s_lshl_b32 s14, s3, 13
    s_add_u32 s49, s7, s14
    s_add_u32 s49, s49, {mk + O_OFF}
    s_add_u32 s7, s7, {QF1 if F1 else QF}
    s_lshr_b32 s14, s2, 3
    s_and_b32 s14, s14, {15 if C["KVROT"] else 0}
    s_lshl_b32 s14, s14, 12
    s_add_u32 s9, s8, s14
    """)
    for jj in range(4):
        k(f"""
        s_add_u32 s14, s3, {jj}
        s_and_b32 s14, s14, 3
        s_lshl_b32 s14, s14, 13
        s_add_u32 s{QB+jj}, s7, s14
        """)
    stubs = []
    flag_ld = f"buffer_load_dword v252, v15, s[40:43], s36 offen{SC}"
    flag_ops = """v_cmp_eq_u32 vcc, 0, v252
    s_nop 0
    s_and_b32 s28, vcc_lo, 0xffff
    s_lshl_b32 s29, s28, 16
    s_or_b32 s28, s28, s29
    s_lshr_b32 s28, s28, s32"""
    if F1:
        k(f"""
        s_mov_b32 s36, {FLG}
        v_sub_u32 v15, 15, v1
        v_and_b32 v15, 0x40000000, v15
        v_lshl_add_u32 v15, v1, 7, v15
        s_mov_b32 s28, 0
        s_lshr_b32 s14, s4, 4
        s_add_u32 s14, s14, {C["G0"]}
        s_and_b32 s32, s14, 15
        s_lshl_b32 s9, s32, 14
        s_lshl_b32 s14, s3, 12
        s_add_u32 s9, s9, s14
        s_mov_b32 s33, s9
        s_lshr_b32 s37, s4, 4
        s_lshl_b32 s37, s37, 7
        s_add_u32 s37, s37, {FLG}
        """)
        ws_sub_srd(k, 24, KVF1, 64 * 4096)
    else:
        wait_ptrs(k)
        stamp_mid(k, 0)
    KS = 24 if F1 else 40
    NV = C["NV"]
    vm = VM(k)
    order = [1, 2, 3, 0]
    NRING = 4

    def ab(t):
        return 16 * (t % NRING)

    def ld_kv(t, parts=(0, 1, 2, 3)):
        if parts[0] == 0:
            if F1:
                if t: k("s_add_u32 s9, s9, 16384\ns_and_b32 s9, s9, 0x3ffff")
                if t >= NV:
                    lb = k.newlabel("tw")
                    k(f"s_bitcmp1_b32 s28, {t}\ns_cbranch_scc0 {lb}\n{lb}_b:")
                    stubs.append((lb, t))
            elif t: k(f"s_add_u32 s9, s9, 4096\ns_pack_lh_b32_b16 s9, s9, s8")
        for f in parts:
            vm.issue(f"buffer_load_dwordx4 a[{ab(t)+4*f}:{ab(t)+4*f+3}], v4, s[{KS}:{KS+3}], s9 offen offset:{f*1024}{SC if F1 and t < NV else ''}", ("k" if f < 2 else "v", t))

    def ld_q(jj):
        for h in range(2):
            vm.issue(f"buffer_load_dwordx4 v[{Q+8*jj+4*h}:{Q+8*jj+4*h+3}], v13, s[40:43], s{QB+jj} offen offset:{h*1024}{SC if F1 else ''}", ("q", jj))

    def first_loads():
        ld_kv(0, (0, 1))
        ld_q(1)
        ld_q(2)
        ld_kv(0, (2, 3))
        ld_q(3)
        ld_q(0)
        if not F1: ld_kv(1)
    if not F1: first_loads()
    steps = [(t, jj) for t in range(16) for jj in order]
    Sb = [SA, SB]

    def qk(s, half):
        t, jj = steps[s]
        S = Sb[s & 1]
        c = "0" if half == 0 else f"v[{S}:{S+15}]"
        return f"{MF} v[{S}:{S+15}], a[{ab(t)+4*half}:{ab(t)+4*half+3}], v[{Q+8*jj+4*half}:{Q+8*jj+4*half+3}], {c}"

    def pv(s, half):
        t, jj = steps[s]
        o = O + 16 * jj
        c = "0" if (t == 0 and half == 0) else f"v[{o}:{o+15}]"
        return f"{MF} v[{o}:{o+15}], a[{ab(t)+8+4*half}:{ab(t)+8+4*half+3}], v[{P+4*half}:{P+4*half+3}], {c}"

    def need_qk(s):
        t, jj = steps[s]
        if t >= 1:
            vm.wait(("v", t))
        vm.wait(("k", t)); vm.wait(("q", jj))
        if F1 and t == 0:
            ds = [dict(reg=f"v[{Q+8*jj+4*h}:{Q+8*jj+4*h+3}]", srd=40, base=QB + jj, off=h * 1024, voff=13, stmp=45) for h in range(2)]
            if s == 0: ds += kv_d(0, (0, 1))
            for o in chk_ops([d["reg"] for d in ds], (2, 254)): k(o)
            chk_branch(ds)
        if F1 and 1 <= t < NV and s % 4 == 0:
            ds = kv_d(t, (0, 1, 2, 3))
            for o in chk_ops([d["reg"] for d in ds], (2, 254)): k(o)
            chk_branch(ds)

    def kv_d(t, parts):
        return [dict(reg=f"a[{ab(t)+4*f}:{ab(t)+4*f+3}]", srd=24, base=33, off=f * 1024, stmp=45, tile=t, tmps=(2, 254)) for f in parts]

    for jj in range(1, 4):
        k(f"""
        s_add_u32 s14, s3, {jj}
        s_and_b32 s14, s14, 3
        s_mul_i32 s14, s14, {3*4096}
        s_add_u32 s14, s14, {(jj-1)*4096}
        v_add_u32 v{5+jj}, s14, v4
        s_xor_b32 s14, s3, {jj}
        s_mul_i32 s14, s14, {3*4096}
        s_add_u32 s14, s14, {(jj-1)*4096}
        v_add_u32 v{9+jj}, s14, v4
        """)
    k(f"""
    s_mul_i32 s14, s3, {3*4096}
    v_add_u32 v5, s14, v4
    """)
    srd(k, 68, P_WS, WS_USED)
    k(f"""
    s_and_b32 s14, s4, 15
    s_lshl_b32 s63, s3, 12
    s_mul_i32 s64, s14, {WGS*1024}
    s_add_u32 s64, s64, s63
    s_add_u32 s64, s64, {WGUF}
    s_add_u32 s63, s63, {48*1024}
    s_and_b32 s15, s14, 7
    s_cmp_lt_u32 s15, 7
    s_cselect_b32 s70, s70, 0
    s_lshr_b32 s44, s4, 4
    s_add_u32 s45, s44, s15
    s_and_b32 s44, s44, {3 if C["ROT"] else 0}
    s_lshl_b32 s57, s44, 15
    s_lshl_b32 s15, s15, 1
    s_and_b32 s67, s3, 1
    s_add_u32 s67, s67, s15
    s_xor_b32 s65, s67, 1
    s_lshl_b32 s46, s67, 15
    s_lshl_b32 s47, s65, 15
    s_lshl_b32 s15, s3, 13
    s_add_u32 s44, s15, {WOF}
    s_add_u32 s46, s46, s44
    s_add_u32 s47, s47, s44
    s_mul_i32 s62, s67, {112*1024}
    s_mul_i32 s65, s65, {112*1024}
    s_mul_i32 s48, s3, {28*1024}
    s_add_u32 s7, s48, {WDF}
    s_add_u32 s62, s62, s7
    s_add_u32 s65, s65, s7
    s_lshr_b32 s44, s4, 4
    s_lshl_b32 s44, s44, 2
    s_add_u32 s6, s44, s3
    s_mul_i32 s5, s6, {28*1024}
    s_add_u32 s5, s5, {mk + X1_OFF}
    s_lshl_b32 s7, s6, 12
    s_add_u32 s7, s7, {mk + ST_OFF}
    s_mul_i32 s6, s6, 112
    s_mul_i32 s13, s14, 7
    s_add_u32 s6, s6, s13
    s_lshl_b32 s6, s6, 10
    s_add_u32 s6, s6, {hf}
    s_lshr_b32 s13, s14, 3
    s_lshl_b32 s13, s13, 1
    s_add_u32 s44, s44, s13
    s_lshr_b32 s13, s3, 1
    s_add_u32 s66, s44, s13
    s_xor_b32 s11, s66, 1
    s_lshl_b32 s50, s66, 15
    s_lshl_b32 s51, s11, 15
    s_add_u32 s15, s15, {mk + O_OFF}
    s_add_u32 s50, s50, s15
    s_add_u32 s51, s51, s15
    s_mul_i32 s10, s66, {112*1024}
    s_mul_i32 s11, s11, {112*1024}
    s_add_u32 s48, s48, {hf}
    s_add_u32 s10, s10, s48
    s_add_u32 s11, s11, s48
    s_mul_i32 s12, s66, 28
    s_lshl_b32 s13, s67, 1
    s_add_u32 s12, s12, s13
    s_lshl_b32 s12, s12, 10
    s_lshl_b32 s56, s66, 12
    s_lshr_b32 s13, s67, 2
    s_lshl_b32 s13, s13, 10
    s_add_u32 s56, s56, s13
    s_bfe_u32 s13, s67, 0x10001
    s_lshl_b32 s13, s13, 9
    s_add_u32 s56, s56, s13
    s_and_b32 s13, s67, 1
    s_lshl_b32 s13, s13, 3
    s_add_u32 s56, s56, s13
    s_add_u32 s56, s56, {mk + ST_OFF}
    s_mov_b32 s13, {BUDGET}
    s_mov_b32 s61, 0xffff0000
    v_mov_b32 v{RES}, -1
    v_mov_b32 v{RES+1}, -1
    v_mov_b32 v{RES+2}, -1
    v_mov_b32 v{RES+3}, -1
    """)
    for g in range(4):
        k(f"""
        s_add_u32 s14, s45, {g}
        s_and_b32 s14, s14, 3
        s_mul_i32 s{52+g}, s14, {7168 if C["ROT"] else 0}
        """)
        if not C["ROT"]: k(f"s_mov_b32 s{52+g}, {7168*g}")
    if layer == 0:
        k(f"""
        s_lshl_b32 s14, s66, 5
        v_add_u32 v14, s14, v2
        v_mul_u32_u24 v14, 896, v14
        v_lshl_add_u32 v14, v3, 3, v14
        s_min_u32 s58, s67, 13
        s_lshl_b32 s58, s58, 6
        """)
    if layer == 0 and C["CPF"] & 8:
        cpf_ld = code_pf(k, 20, 9, *(("mm_l1", "mm_kernel_end") if FUSE else ("mb_kernel", "mb_kernel_end")), "pc2", C["CPL"][1], 252)
    k(f"""
    s_mov_b32 s14, {f2h(2.0**-60)}
    s_mov_b32 s15, {f2h(2.0**60)}
    """)

    def wdreg(u):
        return f"a[{64+4*u}:{67+4*u}]" if u < 48 else f"v[{216+4*(u-48)}:{219+4*(u-48)}]"

    def woreg(a, kk):
        i = a * 8 + kk
        return f"v[{152+4*i}:{155+4*i}]"

    pf = []
    for i in range(28):
        q = i & 3
        pre = ""
        if q == 0:
            pre = (f"s_add_u32 s57, s57, 16384\ns_cmp_eq_u32 s57, {7*16384}\ns_cselect_b32 s57, 0, s57\n" if i else "") \
                + "s_add_u32 m0, s63, s57\ns_add_u32 s48, s64, s57"
        pf.append((pre, f"buffer_load_dwordx4 v4, s[40:43], s48 offen offset:{q*1024} lds", ("w", 6)))
    for u in range(56):
        a, kbl = divmod(u, 28)
        g, c = divmod(kbl, 7)
        pre = f"s_add_u32 s48, s{62 if a == 0 else 65}, s{52+g}" if c == 0 else ("s_add_u32 s48, s48, 4096" if c == 4 else "")
        pf.append((pre, f"buffer_load_dwordx4 {wdreg(u)}, v4, s[68:71], s48 offen offset:{(c%4)*1024}", "wd"))
    for a in range(2):
        for kk in range(8):
            pre = f"s_add_u32 s48, s{46+a}, 4096" if kk == 4 else ""
            pf.append((pre, f"buffer_load_dwordx4 {woreg(a, kk)}, v4, s[68:71], s{46+a if kk < 4 else 48} offen offset:{(kk%4)*1024}", "wo"))
    late = []
    for u in range(56 - C["WD1"] - C["WD2"], 56):
        a, kbl = divmod(u, 28)
        g, c = divmod(kbl, 7)
        first = u in (56 - C["WD1"] - C["WD2"], 56 - C["WD2"])
        pre = ""
        if c in (0, 4) or first:
            pre = f"s_add_u32 s48, s{62 if a == 0 else 65}, s{52+g}" + ("\ns_add_u32 s48, s48, 4096" if c >= 4 else "")
        late.append((pre, pf[28 + u][1], "wd"))
    del pf[28 + 56 - len(late): 28 + 56]
    if F1 or (layer == 1 and C["XP"] & 1): pf = [x for x in pf if x[2] != "wd"]; late = []
    if layer == 1 and C["XP"] & 2: pf = [x for x in pf if x[2] != "wo"]
    if layer == 1 and C["XP"] & 4: pf = [x for i, x in enumerate(pf) if x[2] != ("w", 6) or i >= 24]
    fills = []
    if layer == 0 and C["CPF"] & 8:
        fills.append(("", cpf_ld, "cpf"))
    for ct in range(7):
        fills.append((f"s_add_u32 s44, s6, {ct*1024}", f"buffer_store_dwordx4 v[{RES}:{RES+3}], v4, s[40:43], s44 offen{SC}", "fill"))
    if layer == 0:
        for h in range(2):
            fills.append((f"s_add_u32 s44, s12, {X2F + h*1024}", f"buffer_store_dwordx4 v[{RES}:{RES+3}], v4, s[68:71], s44 offen{SC}", "fill"))
        resl = [("", f"buffer_load_dwordx2 v[{RES+2*q}:{RES+2*q+1}], v14, s[52:55], s58 offen offset:{q*16}", "res") for q in range(4)]
    else:
        resl = [(f"s_add_u32 s44, s12, {X2F}" if h == 0 else "", f"buffer_load_dwordx4 v[{RES+4*h}:{RES+4*h+3}], v4, s[68:71], s44 offen offset:{h*1024}{SC if F1 else ''}", "res") for h in range(2)]
    staged = [None]

    def hstore(V, text, tag, bit):
        if V: V.issue(text + SC, tag)
        else: k(text + SC)
        if C["DUAL"] >> bit & 1:
            if V: V.issue(text, tag)
            else: k(text)
            return 2
        return 0

    def prep():
        if pf and pf[0][0]:
            k(pf[0][0]); pf[0] = ("",) + pf[0][1:]

    def side(lst):
        if not lst: return
        p, ins, tag = lst.pop(0)
        k(p); vm.issue(ins, tag)

    def lds_wr(jj):
        o = O + 16 * jj
        return [f"ds_write_b128 v{5+jj}, v[{o+4*q}:{o+4*q+3}] offset:{q*1024}" for q in range(4)]

    def chk_ops(regs, tm=(2, 7)):
        o = []
        for i, r in enumerate(regs):
            kind, b = r[0], int(r[2:r.index(":")])
            if kind == "a":
                o += [f"v_accvgpr_read_b32 v{tm[0]}, a{b}", f"v_accvgpr_read_b32 v{tm[1]}, a{b+2}"]
                p, q = f"v{tm[0]}", f"v{tm[1]}"
            else:
                p, q = f"v{b}", f"v{b+2}"
            o.append(f"v_max_u32 v3, {p}, {q}" if i == 0 else f"v_max3_u32 v3, {p}, {q}, v3")
        o.append("v_cmp_eq_u32 vcc, -1, v3")
        return o

    def ld_text(d, sreg, imm):
        t = f"buffer_load_dwordx4 {d['reg']}, v{d.get('voff', 4)}, s[{d['srd']}:{d['srd']+3}], s{sreg} offen offset:{imm}{SC}"
        return t

    def base_add(d, sreg):
        if "tile" in d:
            return f"s_add_u32 s{sreg}, s33, {d['tile'] * 16384 + d['off']}\ns_and_b32 s{sreg}, s{sreg}, 0x3ffff"
        if d.get("blk") is None:
            return f"s_add_u32 s{sreg}, s{d['base']}, {d['off']}"
        t = f"s_add_u32 s{sreg}, s{d['base']}, s{52+d['blk']}"
        return t + (f"\ns_add_u32 s{sreg}, s{sreg}, {d['off']}" if d["off"] else "")

    def spin(lb, ds, back, inline=False, more=()):
        mk_ = "" if inline else " ; retry"
        k(f"{lb}:")
        prev = None
        for d in list(ds) + list(more):
            if prev and prev[0] == (d["base"], d.get("blk")) and prev[1] <= d["off"] <= prev[1] + 3072:
                imm = d["off"] - prev[1]
            else:
                k(base_add(d, d.get("stmp", 15))); prev = ((d["base"], d.get("blk")), d["off"]); imm = 0
            if d.get("lo"): k("s_mov_b32 exec_hi, 0")
            k(ld_text(d, d.get("stmp", 15), imm) + mk_)
            if d.get("lo"): k("s_mov_b32 exec_hi, -1")
        k(f"s_sub_i32 s13, s13, 1\ns_cmp_lt_i32 s13, 0\ns_waitcnt vmcnt({len(more)}){mk_}")
        for o in chk_ops([d["reg"] for d in ds], ds[-1].get("tmps", (2, 7))): k(o + mk_)
        k(f"s_cbranch_scc1 {back}{mk_}\ns_cbranch_vccnz {lb}{mk_}")

    def chk_branch(ds):
        lb = k.newlabel("st")
        k(f"s_cbranch_vccnz {lb}\n{lb}_b:")
        stubs.append((lb, ds))

    def raise_flag(tg):
        lb = k.newlabel("nf")
        k(f"""
        s_cmp_lg_u32 s3, 0
        s_cbranch_scc1 {lb}{tg}
        v_readfirstlane_b32 s29, v253{tg}
        s_nop 0
        s_cmp_lg_u32 s29, 15
        s_cbranch_scc1 {lb}{tg}
        s_mov_b64 exec, 1
        buffer_store_dword v14, v14, s[40:43], s37 offen{SC}{tg}
        v_mov_b32 v253, 0{tg}
        s_mov_b64 exec, -1
        {lb}:
        """)
    if F1:
        k(f"""
        s_waitcnt vmcnt(0)
        s_barrier
        s_cmp_lg_u32 s3, 0
        s_cbranch_scc1 {name}_nf
        v_mov_b32 v14, 0
        v_mov_b32 v253, 1
        s_mov_b64 exec, 1
        buffer_atomic_add v253, v14, s[40:43], s37 offen offset:2048 sc0{SC}
        s_mov_b64 exec, -1
        {name}_nf:
        """)
        stamp_mid(k, 0)
        first_loads()
    prep()
    need_qk(0)
    if F1: raise_flag("")
    stamp_mid(k, 1)
    k(qk(0, 0))
    ld_kv(1 if F1 else 2, (0, 1))
    k(qk(0, 1))
    ld_kv(1 if F1 else 2, (2, 3))
    k("s_nop 7")
    n = len(steps)
    nb = [1]
    for s in range(n):
        t, jj = steps[s]
        S = Sb[s & 1]
        e = lambda i: f"v_exp_f32 v{S+i}, v{S+i}"
        c = lambda d: f"v_cvt_pk_bf16_f32 v{P+d}, v{S+2*d}, v{S+2*d+1}"
        if s + 1 < n:
            need_qk(s + 1)
            k(qk(s + 1, 0))
        if F1 and s < 8:
            if s < 4: ld_kv(2, (s,))
            else: ld_kv(3 + ((s - 4) >> 1), (2 * (s & 1), 2 * (s & 1) + 1))
        elif t + 3 < 16:
            ld_kv(t + 3, ((s & 3),))
        else:
            side(pf)
        for i in range(4): k(e(i))
        if s > 0:
            k(pv(s - 1, 1))
        side(pf)
        for i in range(4, 8): k(e(i))
        if s + 1 < n:
            k(qk(s + 1, 1))
        prep()
        for d in range(4): k(c(d))
        for i in range(8, 11): k(e(i))
        vm.wait(("v", t))
        if F1 and s == 0:
            ds = kv_d(0, (2, 3))
            for o in chk_ops([d["reg"] for d in ds], (2, 254)): k(o)
            chk_branch(ds)
        if F1 and s - 3 in C["FP"]:
            vm.wait(("flag", s - 3)); k(flag_ops)
        k(pv(s, 0))
        if F1 and s in C["FP"]:
            vm.issue(flag_ld, ("flag", s))
        if fills and s % C["FE"] == 0:
            side(fills)
        elif len(pf) > (n - 1 - s) + min(12, n - 1 - s) and s >= nb[0]:
            side(pf); nb[0] = s + C["BGAP"]
        extra = []
        if t == 15 and s & 3 >= 2:
            extra = lds_wr(order[(s & 3) - 2])
        if s == n - 1:
            extra = extra + lds_wr(3)
        for i in range(11, 16):
            k(e(i))
            if extra: k(extra.pop(0))
        for d in range(4, 8):
            k(c(d))
            if extra: k(extra.pop(0))
    assert not pf and not fills, (len(pf), len(fills))
    stamp_mid(k, 2)
    k(pv(n - 1, 1))
    if layer == 0:
        srd(k, 44, P_X, XBYTES)
        resl = [(p, i.replace("s[52:55]", "s[44:47]"), t) for p, i, t in resl]
    while resl: side(resl)
    k("s_waitcnt lgkmcnt(0)\ns_barrier")
    stamp_mid(k, 3)
    R = 64
    for j in range(3):
        for q in range(4):
            r = R + 16 * j + 4 * q
            k(f"ds_read_b128 v[{r}:{r+3}], v5 offset:{j*4096+q*1024}")
    for j in range(3):
        k(f"s_waitcnt lgkmcnt({8-4*j})")
        for r in ([12] + [x for x in range(0, 16, 2) if x != 12] if j == 2 else range(0, 16, 2)):
            k(f"v_pk_add_f32 v[{O+r}:{O+r+1}], v[{O+r}:{O+r+1}], v[{R+16*j+r}:{R+16*j+r+1}]")
            if j == 2 and r == 12:
                k(f"v_mov_b32 v9, v{O+12}\nv_mov_b32 v8, v{O+12}")
            if j == 2 and r == 2:
                k("v_permlane32_swap_b32 v9, v8")
            if j == 2 and r == 4:
                k("v_rcp_f32 v9, v8\nv_cmp_nle_f32 vcc, s14, v8\nv_cmp_nge_f32 s[46:47], s15, v8")
            if j == 2 and r == 10:
                k("s_or_b64 vcc, vcc, s[46:47]")
    FB, NORM = k.name + "_fb", k.name + "_norm"
    k(f"""
    s_cbranch_vccnz {FB}
    {NORM}:
    """)
    for h in range(2):
        for r in range(8 * h, 8 * h + 8, 2):
            k(f"v_pk_mul_f32 v[{O+r}:{O+r+1}], v[{O+r}:{O+r+1}], v[8:9] op_sel:[0,1] op_sel_hi:[1,1]")
        for d in range(4 * h, 4 * h + 4):
            k(f"v_cvt_pk_bf16_f32 v{P+d}, v{O+2*d}, v{O+2*d+1}")
        hstore(vm, f"buffer_store_dwordx4 v[{P+4*h}:{P+4*h+3}], v13, s[40:43], s49 offen offset:{h*1024}", "ost", 0)
    stamp_mid(k, 4)
    def reduce3(A, R, rb, extra=None):
        k("s_waitcnt lgkmcnt(0)\ns_barrier")
        if extra: extra(0)
        R = R if isinstance(R, list) else [R, R + 16, R + 32]
        for j in range(3):
            for q in range(4):
                r = R[j] + 4 * q
                k(f"ds_read_b128 v[{r}:{r+3}], v{rb} offset:{j*4096+q*1024}")
        if extra: extra(1)
        for j in range(3):
            k(f"s_waitcnt lgkmcnt({8-4*j})")
            for r in range(0, 16, 2):
                k(f"v_pk_add_f32 v[{A+r}:{A+r+1}], v[{A+r}:{A+r+1}], v[{R[j]+r}:{R[j]+r+1}]")

    def mark_next(first, cnt, batch=99):
        k(f"""
        s_lshr_b32 s9, s4, 3
        s_lshl_b32 s9, s9, 2
        s_add_u32 s9, s9, s3
        s_lshl_b32 s9, s9, 15
        s_add_u32 s9, s9, {MK1 + first*1024}
        v_mov_b32 v16, -1
        v_mov_b32 v17, -1
        v_mov_b32 v18, -1
        v_mov_b32 v19, -1
        """)
        for i in range(cnt):
            if i and i % 4 == 0: k("s_add_u32 s9, s9, 4096")
            if i and i % batch == 0: k("s_waitcnt vmcnt(0)")
            k(f"buffer_store_dwordx4 v[16:19], v4, s[40:43], s9 offen offset:{(i%4)*1024}{SC}")

    NOR1, XJOIN = k.name + "_nor1", k.name + "_xjoin"
    AO = [80, 96, 112, 128]
    UNI = C["UNI"]
    OS = 68 if UNI == 1 else 40
    k("s_barrier" if UNI else f"s_barrier\ns_cmp_eq_u32 s70, 0\ns_cbranch_scc1 {NOR1}")
    vm.wait("res")
    for d in range(8):
        k(f"v_lshlrev_b32 v{AO[0]+2*d}, 16, v{RES+d}")
        k(f"v_and_b32 v{AO[0]+2*d+1}, s61, v{RES+d}")

    def o_d(b, kk):
        i = 2 * kk + b
        return dict(reg=f"v[{16+4*i}:{19+4*i}]", srd=OS, base=50 + b, off=kk * 1024)
    for _ in range(C["WD1"]): side(late)
    if C["OACK"]: vm.wait("ost")
    for _ in range(C["ODLY"]): k("s_nop 15")
    stamp_mid(k, 5)
    pl = k.newlabel("pr")
    od = [[o_d(b, kk) for kk in range(8)] for b in (1, 0)]
    spin(pl, od[0], pl + "_b", True, od[1])
    k(f"{pl}_b:")
    stamp_mid(k, 6)
    seq = []
    for s in (3, 2, 1, 0): seq += [(s, kk) for kk in range(8)]
    owr = {8 * (4 - s) + 1 + 2 * q: [(s, q)] for s in (1, 2, 3) for q in range(4)}
    for idx, (slot, kk) in enumerate(seq):
        if idx == 0: vm.done = len(vm.tags); n0 = len(vm.tags)
        if idx == 11:
            k(f"s_waitcnt vmcnt({len(vm.tags) - n0})")
        if 11 <= idx <= 13:
            for o in chk_ops([d["reg"] for d in od[1]])[3 * (idx - 11): 3 * (idx - 11) + 3]: k(o)
        if idx == 16:
            chk_branch(od[1])
            if C["DBGP"] & 2: stamp_mid(k, 0)
        a = AO[slot]
        c = "0" if (kk == 0 and slot) else f"v[{a}:{a+15}]"
        k(f"{MF} v[{a}:{a+15}], {woreg(slot & 1, kk)}, {o_d(slot >> 1, kk)['reg']}, {c}")
        if idx >= C["WD2S"] and late:
            side(late)
            if len(late) > 28 - idx: side(late)
        for s, q in owr.get(idx, []):
            k(f"ds_write_b128 v{9+s}, v[{AO[s]+4*q}:{AO[s]+4*q+3}] offset:{q*1024}")
    assert not late
    if C["DBGP"] & 2: stamp_mid(k, 1)
    k(f"s_add_u32 s9, s12, {mk + X1_OFF}")
    if UNI == 2:
        k(f"""
        s_lshr_b32 s15, s4, 3
        s_lshl_b32 s15, s15, 2
        s_add_u32 s15, s15, s3
        s_lshl_b32 s15, s15, 12
        s_add_u32 s15, s15, {DUMMY}
        s_cmp_eq_u32 s70, 0
        s_cselect_b32 s9, s15, s9
        s_add_u32 s15, s15, 2048
        s_cmp_eq_u32 s70, 0
        s_cselect_b32 s56, s15, s56
        """)
    reduce3(AO[0], 16, 5, (lambda ph: stamp_mid(k, 3) if ph == 0 else None) if C["DBGP"] & 2 else None)
    for h in range(2):
        for d in range(4 * h, 4 * h + 4):
            k(f"v_cvt_pk_bf16_f32 v{RES+d}, v{AO[0]+2*d}, v{AO[0]+2*d+1}")
        hstore(vm, f"buffer_store_dwordx4 v[{RES+4*h}:{RES+4*h+3}], v4, s[{OS}:{OS+3}], s9 offen offset:{h*1024}", "xst", 1)
    def row_stats(A, T, soff, V):
        pr = lambda i: f"v[{A+2*i}:{A+2*i+1}]"
        k(f"v_pk_add_f32 v[{T}:{T+1}], {pr(0)}, {pr(1)}")
        k(f"v_pk_mul_f32 v[{T+2}:{T+3}], {pr(0)}, {pr(0)}")
        k(f"v_pk_fma_f32 v[{T+2}:{T+3}], {pr(1)}, {pr(1)}, v[{T+2}:{T+3}]")
        for i in range(2, 8):
            k(f"v_pk_add_f32 v[{T}:{T+1}], v[{T}:{T+1}], {pr(i)}")
            k(f"v_pk_fma_f32 v[{T+2}:{T+3}], {pr(i)}, {pr(i)}, v[{T+2}:{T+3}]")
        k(f"""
        v_add_f32 v{T}, v{T}, v{T+1}
        v_add_f32 v{T+1}, v{T+2}, v{T+3}
        v_mov_b32 v{T+2}, v{T}
        v_mov_b32 v{T+3}, v{T+1}
        s_nop 0
        v_permlane32_swap_b32 v{T}, v{T+2}
        v_permlane32_swap_b32 v{T+1}, v{T+3}
        s_mov_b32 exec_hi, 0
        v_pk_add_f32 v[{T}:{T+1}], v[{T}:{T+1}], v[{T+2}:{T+3}]
        """)
        t = f"buffer_store_dwordx2 v[{T}:{T+1}], v4, s[{OS}:{OS+3}], s{soff} offen{SC}"
        if V: V.issue(t, "sst")
        else: k(t)
        k("s_mov_b32 exec_hi, -1")
    if C["DBGP"] & 2: stamp_mid(k, 4)
    row_stats(AO[0], 6, 56, vm)
    k(f"{XJOIN}:\ns_barrier")
    stamp_mid(k, 7)
    w_next = [28]

    def ld_w():
        i = w_next[0]; w_next[0] += 1
        G, q = i >> 2, i & 3
        if q == 0:
            off = (16 * G + 48) % NS - 48
            k(f"s_{'add' if off >= 0 else 'sub'}_u32 m0, s63, {abs(off)*1024}\ns_add_u32 s48, s64, {16*G*1024}")
        vm.issue(f"buffer_load_dwordx4 v4, s[40:43], s48 offen offset:{q*1024} lds", ("w", G))
        return 2 + 2 * (q == 0)
    for _ in range(C['W_PRE']): ld_w()
    A4, WR, HP, MB, R2 = 16, 128, 160, 168, 172
    k(f"""
    v_add_u32 v5, 0x10000, v4
    v_add_u32 v6, 0x20000, v4
    v_mov_b32 v{HP+12}, 0
    v_mov_b32 v{HP+13}, 0
    v_mov_b32 v{HP+14}, 0
    v_mov_b32 v{HP+15}, 0
    """)
    R5B = 96 * 1024
    if layer == 0:
        k(f"""
        s_mul_i32 s50, s67, {28*1024}
        s_xor_b32 s51, s67, 1
        s_mul_i32 s51, s51, {28*1024}
        s_mul_i32 s15, s3, {7*1024}
        s_add_u32 s15, s15, {WQF}
        s_add_u32 s50, s50, s15
        s_add_u32 s51, s51, s15
        s_lshl_b32 s60, s67, 7
        s_add_u32 s60, s60, {CSQ}
        s_mul_i32 s59, s3, {14*1024}
        s_cmp_eq_u32 s3, 3
        s_cselect_b32 s59, {144*1024}, s59
        """)
    cur = {}

    def stream_ld(d, tag):
        t = d["tmp"]
        c = cur.get(t)
        n = 2
        key = (d["base"], d.get("blk"))
        if not (c and c[0] == key and c[1] <= d["off"] <= c[1] + 3072):
            x = base_add(d, t)
            k(x); n += x.count("\n") + 1
            cur[t] = c = (key, d["off"])
        if d.get("lo"): k("s_mov_b32 exec_hi, 0")
        vm.issue(ld_text(d, t, d["off"] - c[1]), tag)
        if d.get("lo"): k("s_mov_b32 exec_hi, -1"); n += 2
        return n

    lg = LG()
    NR, RA = 8, 6
    A5 = [64, 96, 80, 112]

    def xreg(kb):
        if kb == 28: return f"v[{MB}:{MB+3}]"
        i = KO.index(kb)
        if i < 10: return f"v[{176+4*i}:{179+4*i}]"
        if i < 12: return f"v[{8+4*(i-10)}:{11+4*(i-10)}]"
        return f"a[{4*(i-12)}:{4*(i-12)+3}]"

    def x_d(kb):
        return dict(reg=xreg(kb), srd=40, base=5, off=kb * 1024, tmp=44)

    kbo = [7 * g + c for g in range(4) for c in range(3)] + [7 * g + c for g in range(4) for c in (3, 4)] + [7 * g + c for g in range(4) for c in (5, 6)]
    p5 = []
    for i in range(4): p5 += [(0, i), (2, i)]
    for i in range(4): p5 += [(1, i), (3, i)]
    TL = C["P5T"]
    for i in range(4, 28 - TL):
        p5 += [(0, i), (2, i), (1, i), (3, i)]
    for sl in (3, 2, 1, 0):
        p5 += [(sl, i) for i in range(28 - TL, 28)]
    wr_at = {}
    for j, sl in enumerate((3, 2, 1)):
        e = 112 - (3 - j) * TL
        for q in range(4):
            wr_at.setdefault(min(e + 1 + q * max(1, (TL - 1) // 4 + 1), 111), []).append((sl, q))
    assert len(p5) == 112
    NT = N4 + 112
    land = [(f"v[{16+4*i}:{19+4*i}]", 110) for i in range(12)] \
        + [(xreg(kb), 146 + 2 * kb) for kb in range(28)] + [(f"v[{128+4*i}:{131+4*i}]", N4) for i in range(8)] \
        + [(f"v[{16+4*i}:{19+4*i}]", N4 + 16) for i in range(8)]
    assert len(land) == 56
    h_use = {}
    for s, (slot, i) in enumerate(p5):
        h_use.setdefault(2 * i + (slot >> 1), N4 + s)
    h_ord = sorted(range(56), key=lambda hi: h_use[hi])
    h_pos = {hi: p for p, hi in enumerate(h_ord)}

    def h_d(hi):
        i, b = hi >> 1, hi & 1
        g, c = divmod(kbo[i], 7)
        return dict(reg=land[h_pos[hi]][0], srd=68, base=10 + b, blk=g, off=c * 1024, tmp=44 + b)

    st_d = [dict(reg=f"v[{HP+4*q}:{HP+4*q+3}]", srd=40, base=7, off=q * 1024, tmp=14, lo=(q == 3)) for q in range(4)]

    items = []
    LEAD = C["LEAD"]
    XB = 4 + C["X_BURST"]
    for i in range(XB, 28):
        items.append((3 * i - LEAD, -1, 3 * (i & ~1) - 5, (lambda i=i: stream_ld(x_d(KO[i]), ("x", i)))))
    for q in range(4):
        items.append((60 - LEAD, -1, 57, (lambda q=q: stream_ld(st_d[q], "st"))))
    bars = sorted(C["BARS"])
    assert 48 <= bars[0] and 152 <= bars[-1] <= 160 - RA
    assert len(bars) == 3 and bars[1] <= 112 - RA
    for i in range(w_next[0], 40):
        items.append((bars[1] - LEAD + i * 0.01, -1, bars[1] - 4, ld_w))
    for i in range(40, 52):
        items.append((bars[-1] - LEAD - 10 + i * 0.01, bars[0], bars[-1] - 4, ld_w))
    for p, hi in enumerate(h_ord):
        part = 0 if hi < 24 else (1 if hi < 40 else 2)
        u0 = h_use[h_ord[p & ~1]]
        items.append((u0 - LEAD + p * 0.001, max(C["HT"][part], land[p][1]), u0 - 5, (lambda hi=hi, p=p: stream_ld(h_d(hi), ("h", p >> 1)))))
    CS = 160

    def p1b_prefetch(V):
        o = []
        for a in range(2):
            for kbl in range(7):
                def f(a=a, kbl=kbl):
                    if kbl % 4 == 0:
                        k(f"s_add_u32 m0, s59, {(a*7+kbl)*1024}\ns_add_u32 s48, s{50+a}, {kbl*1024}")
                    V.issue(f"buffer_load_dwordx4 v4, s[40:43], s48 offen offset:{(kbl%4)*1024} lds", "wq")
                    return 2 + 2 * (kbl % 4 == 0)
                o.append(f)
        return o

    def cs_prefetch(V):
        k(f"v_lshrrev_b32 v0, 5, v1\nv_lshlrev_b32 v0, 4, v0")
        for q in range(4):
            V.issue(f"buffer_load_dwordx4 v[{CS+4*q}:{CS+4*q+3}], v0, s[40:43], s60 offen offset:{q*32}", "wq")
        return 10
    if layer == 0:
        for f in p1b_prefetch(vm):
            items.append((NT + 10, bars[-1], NT + 10, f))
        items.append((NT + 11, N4 + 10, NT + 11, lambda: cs_prefetch(vm)))
    items.sort(key=lambda t: t[0])
    queue = list(items)

    def issue_next(n):
        for idx, it in enumerate(queue):
            if it[1] <= n:
                queue.pop(idx); return it[3]()
        return 0

    def force(n):
        c = 0
        while any(it[2] <= n for it in queue):
            c += issue_next(n)
        return c

    def rd(f):
        slot = ((f + 48) % NS) * 1024
        base = [4, 5, 6][slot >> 16]
        r = WR + 4 * (f % NR)
        lg.issue(("w", f))
        k(f"ds_read_b128 v[{r}:{r+3}], v{base} offset:{slot & 0xffff}")

    fill = []
    vfill = []

    def epi_ops(ct, V, gaps=3, pk=False):
        a = A4 + 16 * ct
        hp = HP + 4 * (ct & 1)
        o = ["GAP"] * gaps
        if C["NOPK"] and not pk:
            for d in range(4):
                for r in (2 * d, 2 * d + 1):
                    o.append(f"v_mul_f32 v{a+r}, v{a+r}, v{a+8+r}")
                for r in (2 * d, 2 * d + 1):
                    o.append(f"v_mul_f32 v{a+r}, v{R2}, v{a+r}")
                o.append(f"v_cvt_pk_bf16_f32 v{hp+d}, v{a+2*d}, v{a+2*d+1}")
        else:
            for r in range(0, 8, 2):
                o.append(f"v_pk_mul_f32 v[{a+r}:{a+r+1}], v[{a+r}:{a+r+1}], v[{a+8+r}:{a+9+r}]")
            for r in range(0, 8, 2):
                o.append(f"v_pk_mul_f32 v[{a+r}:{a+r+1}], v[{a+r}:{a+r+1}], v[{R2}:{R2+1}]")
            for d in range(4):
                o.append(f"v_cvt_pk_bf16_f32 v{hp+d}, v{a+2*d}, v{a+2*d+1}")

        def st():
            k(f"s_add_u32 s14, s6, {ct*1024}")
            cur.pop(14, None)
            return 3 + hstore(V, f"buffer_store_dwordx4 v[{hp}:{hp+3}], v4, s[40:43], s14 offen", ("hst", ct), 2)
        o.append(st)
        return o

    def run(lst, room):
        used = 0
        while lst and used < room:
            f = lst.pop(0)
            if f == "GAP":
                break
            if callable(f): used += f() or 0
            else:
                k(f); used += f.count("\n") + 1
        return used

    def add_val(tag, ds):
        def w():
            s_ = vm.waitstr(tag)
            if s_: k(s_)
            return 1 if s_ else 0

        def b():
            chk_branch(ds); done_val.add(tag); return 1
        vfill.extend([w] + chk_ops([d["reg"] for d in ds]) + ["GAP", b])

    T0 = HP + 4
    stat_ops = [f"v_pk_add_f32 v[{HP+4*q}:{HP+4*q+1}], v[{HP+4*q}:{HP+4*q+1}], v[{HP+4*q+2}:{HP+4*q+3}]" for q in range(4)] + [
        f"v_pk_add_f32 v[{HP}:{HP+1}], v[{HP}:{HP+1}], v[{HP+4}:{HP+5}]",
        f"v_pk_add_f32 v[{HP+8}:{HP+9}], v[{HP+8}:{HP+9}], v[{HP+12}:{HP+13}]",
        f"v_pk_add_f32 v[{HP}:{HP+1}], v[{HP}:{HP+1}], v[{HP+8}:{HP+9}]",
        f"v_mov_b32 v{T0}, v{HP}", f"v_mov_b32 v{T0+1}, v{HP+1}", "GAP",
        f"v_permlane32_swap_b32 v{HP}, v{T0}", f"v_permlane32_swap_b32 v{HP+1}, v{T0+1}",
        f"v_pk_add_f32 v[{HP}:{HP+1}], v[{HP}:{HP+1}], v[{T0}:{T0+1}]",
        f"v_mul_f32 v{HP}, {f2h(-1.0/448)}, v{HP}",
        f"v_mul_f32 v{HP+1}, {f2h(1.0/448)}, v{HP+1}",
        f"v_fma_f32 v{HP+1}, -v{HP}, v{HP}, v{HP+1}",
        f"v_max_f32 v{HP+1}, 0, v{HP+1}",
        f"v_add_f32 v{HP+1}, {f2h(1e-5)}, v{HP+1}",
        f"v_rcp_f32 v{R2}, v{HP+1}",
        f"v_cvt_pk_bf16_f32 v{MB}, v{HP}, v{HP}",
        f"v_lshlrev_b32 v{T0}, 16, v{MB}",
        f"v_sub_f32 v{T0}, v{HP}, v{T0}",
        f"v_mov_b32 v{R2+1}, v{R2}",
        f"s_mov_b32 exec_lo, 0\nv_cvt_pk_bf16_f32 v{MB}, v{T0}, v{T0}\ns_mov_b32 exec_lo, -1",
        f"v_mov_b32 v{MB+1}, v{MB}", f"v_mov_b32 v{MB+2}, v{MB}", f"v_mov_b32 v{MB+3}, v{MB}",
    ]

    if C["NOPK"]:
        import re
        so = []
        for o in stat_ops:
            m = re.match(r"v_pk_add_f32 v\[(\d+):\d+\], v\[(\d+):\d+\], v\[(\d+):\d+\]", o)
            if m:
                d, x, y = map(int, m.groups())
                so += [f"v_add_f32 v{d}, v{x}, v{y}", f"v_add_f32 v{d+1}, v{x+1}, v{y+1}"]
            else: so.append(o)
        stat_ops = so
    if C["XACK"]: vm.wait("xst" if C["XACK"] == 1 else "sst")
    for _ in range(C["XDLY"]): k("s_nop 15")
    stamp_mid(k, 9)
    pl = k.newlabel("pr")
    for f in range(RA): rd(f)
    spin(pl, [x_d(kb) for kb in KO[:4]], pl + "_b", True, [x_d(kb) for kb in KO[4:XB]])
    k(f"{pl}_b:")
    vm.done = len(vm.tags)
    for i in range(4, XB): vm.tags.append(("x", i))
    stamp_mid(k, 8)
    nxt = 0; pi = [0]
    NOROLE = k.name + "_norole"
    P1B = k.name + "_p1b"
    val = {}
    for i in range(4, 28, 2):
        val.setdefault(3 * i - (4 if i < 12 else 5), []).append((("x", i + 1), [x_d(KO[i]), x_d(KO[i + 1])]))
    for i in range(28):
        val.setdefault(h_use[h_ord[2 * i]] - (5 if land[2 * i][0][0] == "a" or land[2 * i + 1][0][0] == "a" else 4), []).append((("h", i), [h_d(h_ord[2 * i]), h_d(h_ord[2 * i + 1])]))
    val.setdefault(58, []).append(("st", st_d))
    done_val = set(("x", i) for i in range(4))
    for n in range(NT):
        if n in SS: common.stamp_mid(k, [i for i in range(1, 20) if i != 8][list(SS).index(n)])
        used = force(n)
        if n in bars:
            if n == bars[1]: vm.wait(("w", 9))
            if n == bars[-1]: vm.wait(("w", 12))
            k("s_barrier"); used += 2
        if n + RA < N4:
            rd(n + RA); used += 1
        for v in val.get(n, []): add_val(*v)
        used += run(vfill, 3)
        if "st" in done_val and stat_ops:
            fill.extend(stat_ops); stat_chk = stat_ops; stat_ops = None
        if n < N4:
            ct, kb = p4_fk(n)
            if n % 2 == 0:
                w = lg.waitstr(("w", min(n + 1, N4 - 1)))
                if w: k(w); used += 1
            r = WR + 4 * (n % NR)
            a = A4 + 16 * ct
            first = (kb == KO[0]) if ct < 3 else (kb == 0)
            if kb < 28: assert ("x", KO.index(kb) | 1) in done_val, n
            else: assert stat_ops is None and not any(o in stat_chk for o in fill if isinstance(o, str) and o != "GAP")
            c = "0" if first else f"v[{a}:{a+15}]"
            k(f"{MF} v[{a}:{a+15}], v[{r}:{r+3}], {xreg(kb)}, {c}")
            if n == 86: stamp_mid(k, 10)
            if n == 144: stamp_mid(k, 11)
            if kb == 28 and ct != 5:
                if ct == 6:
                    fill.extend(epi_ops(5, vm, gaps=1) + epi_ops(6, vm, gaps=0))
                else:
                    fill.extend(epi_ops(ct, vm, gaps=3 if ct in (0, 3) else 0))
            if n == 150:
                for d in range(8):
                    fill.append(f"v_lshlrev_b32 v{A5[0]+2*d}, 16, v{RES+d}")
                    fill.append(f"v_and_b32 v{A5[0]+2*d+1}, s61, v{RES+d}")
        else:
            slot, i = p5[n - N4]
            hi = 2 * i + (slot >> 1)
            u = (slot & 1) * 28 + kbo[i]
            assert ("h", h_pos[hi] >> 1) in done_val, n
            a = A5[slot]
            c = "0" if (i == 0 and slot != 0) else f"v[{a}:{a+15}]"
            if n - N4 == 8:
                assert not fill
            k(f"{MF} v[{a}:{a+15}], {wdreg(u)}, {land[h_pos[hi]][0]}, {c}")
            if n == N4 + 48: stamp_mid(k, 13)
            if n == N4 + 80: stamp_mid(k, 14)
            if n - N4 == min(wr_at) - 3:
                assert all(land[p][0][0] == "v" for p in range(56) if ("h", p >> 1) not in done_val)
                for s in range(1, 4):
                    k(f"""
                    s_xor_b32 s9, s3, {s}
                    s_mul_i32 s9, s9, {3*4096}
                    s_add_u32 s9, s9, {R5B + (s-1)*4096}
                    v_add_u32 v{4+s}, s9, v4
                    """)
                k(f"s_mul_i32 s9, s3, {3*4096}\ns_add_u32 s9, s9, {R5B}\nv_add_u32 v2, s9, v4")
            for s, q in wr_at.get(n - N4, []):
                k(f"ds_write_b128 v{4+s}, v[{A5[s]+4*q}:{A5[s]+4*q+3}] offset:{q*1024}"); used += 2
        if n == N4 - 1:
            stamp_mid(k, 12)
            k(f"s_cmp_eq_u32 s70, 0\ns_cbranch_scc1 {NOROLE}")
        if n >= nxt and queue and used <= C["BUD"] - 2:
            c = issue_next(n)
            if c:
                used += c
                pc = C["PACE"] if n < N4 else C["PACE5"]
                nxt = n + pc[pi[0] % len(pc)]; pi[0] += 1
        run(fill, C["BUD"] - used if not (N4 - 1 <= n < N4 + 8) else C["E56"])
    assert not fill and not vfill
    print("leftover", len(queue))
    while queue: issue_next(NT)
    stamp_mid(k, 16)
    if layer == 1:
        srd(k, 44, P_OUT, XBYTES)
        k(f"""
        v_and_b32 v7, 31, v1
        s_lshl_b32 s9, s66, 5
        v_add_u32 v7, s9, v7
        v_mul_u32_u24 v7, 896, v7
        v_lshrrev_b32 v3, 5, v1
        v_lshl_add_u32 v7, v3, 4, v7
        s_lshl_b32 s9, s67, 6
        """)
    reduce3(A5[0], 16, 2)
    PK = 8
    for d in range(8):
        k(f"v_cvt_pk_bf16_f32 v{PK+d}, v{A5[0]+2*d}, v{A5[0]+2*d+1}")
    dbg = f"s_sub_u32 s91, {BUDGET + 1}, s13\ns_add_u32 s91, s91, s92" if (common.STAMP and (not FUSE or layer == C["STL"])) else ""
    if layer == 1:
        k(f"""
        v_permlane32_swap_b32 v{PK}, v{PK+2}
        v_permlane32_swap_b32 v{PK+1}, v{PK+3}
        v_permlane32_swap_b32 v{PK+4}, v{PK+6}
        v_permlane32_swap_b32 v{PK+5}, v{PK+7}
        buffer_store_dwordx4 v[{PK}:{PK+3}], v7, s[44:47], s9 offen{C['OSC']}
        buffer_store_dwordx4 v[{PK+4}:{PK+7}], v7, s[44:47], s9 offen offset:32{C['OSC']}
        {dbg}
        s_endpgm
        """)
    else:
        k(f"s_add_u32 s9, s12, {X2F}")
        for h in range(2):
            hstore(None, f"buffer_store_dwordx4 v[{PK+4*h}:{PK+4*h+3}], v4, s[40:43], s9 offen offset:{h*1024}", None, 3)
        k(f"s_add_u32 s56, s56, {ST2 - MK0 - ST_OFF}")
        row_stats(A5[0], 16, 56, None)
        stamp_mid(k, 17)
        RB = 48 * 1024
        SV = 32
        k(f"""
        {P1B}:
        v_add_u32 v13, s59, v4
        s_waitcnt vmcnt(3)
        """)
        for i in range(14):
            k(f"ds_read_b128 a[{4*i}:{4*i+3}], v13 offset:{i*1024}")
        k(f"""
        s_mul_i32 s10, s66, {28*1024}
        s_xor_b32 s11, s66, 1
        s_mul_i32 s11, s11, {28*1024}
        s_mul_i32 s9, s3, {7*1024}
        s_add_u32 s9, s9, {X2F}
        s_add_u32 s10, s10, s9
        s_add_u32 s11, s11, s9
        s_lshl_b32 s56, s66, 12
        s_add_u32 s56, s56, {ST2}
        s_lshr_b32 s4, s66, 1
        s_and_b32 s12, s66, 1
        s_lshr_b32 s5, s67, 1
        s_mov_b32 s48, s13
        s_and_b32 s13, s67, 1
        v_and_b32 v2, 31, v1
        v_mov_b32 v{SV+12}, 0
        v_mov_b32 v{SV+13}, 0
        v_mov_b32 v{SV+14}, 0
        v_mov_b32 v{SV+15}, 0
        """)
        qkv_setup(k, KVF1, QF1 if FUSE else QF, 59 if FUSE else None)
        k("s_mov_b32 s13, s48")
        for s in range(1, 4):
            k(f"""
            s_xor_b32 s9, s3, {s}
            s_mul_i32 s9, s9, {3*4096}
            s_add_u32 s9, s9, {RB + (s-1)*4096}
            v_add_u32 v{4+s}, s9, v4
            """)
        k(f"s_mul_i32 s9, s3, {3*4096}\ns_add_u32 s9, s9, {RB}\nv_add_u32 v12, s9, v4")
        if C["DBGP"] & 1: stamp_mid(k, 3)
        if C["X2ACK"]: k(f"s_waitcnt vmcnt({C['X2ACK'] - 1})")
        if C["DBGP"] & 1: stamp_mid(k, 4)
        ko2 = [0, 2, 4, 6, 1, 3, 5]

        def x2_d(b, kbl):
            i = 2 * kbl + b
            r = 176 + 4 * i if i < 10 else 128 + 4 * (i - 10)
            return dict(reg=f"v[{r}:{r+3}]", srd=40, base=10 + b, off=kbl * 1024)
        pl = k.newlabel("pr")
        d8 = [x2_d(1, kbl) for kbl in range(7)]
        d6 = [x2_d(0, kbl) for kbl in range(7)]
        ds4 = [dict(reg=f"v[{SV+4*q}:{SV+4*q+3}]", srd=40, base=56, off=q * 1024, lo=(q == 3)) for q in range(4)]
        spin(pl, d8, pl + "_b", True, d6 + ds4)
        k(f"{pl}_b:\ns_waitcnt lgkmcnt(0)")
        stamp_mid(k, 18)
        ad = lambda d, x, y: [f"v_add_f32 v{d}, v{x}, v{y}", f"v_add_f32 v{d+1}, v{x+1}, v{y+1}"]
        so = []
        for q in range(4): so += ad(SV + 4 * q, SV + 4 * q, SV + 4 * q + 2)
        so += ad(SV, SV, SV + 4) + ad(SV + 8, SV + 8, SV + 12) + ad(30, SV, SV + 8)
        so += [f"v_mov_b32 v{SV}, v30", f"v_mov_b32 v{SV+1}, v31", "v_lshrrev_b32 v3, 5, v1", "GAP",
               f"v_permlane32_swap_b32 v30, v{SV}", f"v_permlane32_swap_b32 v31, v{SV+1}"] + ad(30, 30, SV)
        so += [f"v_mul_f32 v30, {f2h(1.0/448)}, v30", f"v_mul_f32 v31, {f2h(1.0/448)}, v31", "v_fma_f32 v31, -v30, v30, v31",
               "v_max_f32 v31, 0, v31", f"v_add_f32 v31, {f2h(1e-5)}, v31", "v_rsq_f32 v31, v31"]
        seq = []
        for s in (3, 2, 1, 0):
            seq += [(s, kbl) for kbl in range(7)]
        qwr = {7 * (4 - s) + [1, 3, 5, 6][q]: [(s, q)] for s in (1, 2, 3) for q in range(4)}
        ck = chk_ops([d["reg"] for d in d6])
        ck2 = chk_ops([d["reg"] for d in ds4])
        for idx, (slot, kbl) in enumerate(seq):
            if idx == 10: k("s_waitcnt vmcnt(4)")
            if idx in (10, 11):
                for _ in range(4):
                    if ck: k(ck.pop(0))
            if idx == 14: chk_branch(d6)
            if idx == 15:
                k("s_waitcnt vmcnt(0)")
                for o in ck2: k(o)
            if idx == 17: chk_branch(ds4)
            u = (slot & 1) * 7 + kbl
            a = A5[slot]
            c = "0" if kbl == 0 else f"v[{a}:{a+15}]"
            k(f"{MF} v[{a}:{a+15}], a[{4*u}:{4*u+3}], {x2_d(slot >> 1, kbl)['reg']}, {c}")
            if 17 <= idx: run(so, 4)
            for s, q in qwr.get(idx, []):
                k(f"ds_write_b128 v{4+s}, v[{A5[s]+4*q}:{A5[s]+4*q+3}] offset:{q*1024}")
        run(so, 99)
        stamp_mid(k, 15)
        reduce3(A5[0], 176 if not FUSE else [176, 192, 128], 12)
        qkv_epilogue(k, A5[0], CS, '', SC if FUSE else C['QSC'], C['KVSC'], FUSE)
        k(dbg)
        k("s_branch mm_l1" if FUSE else "s_endpgm")
    if not UNI:
        k(f"{NOR1}:")
        if layer == 0: mark_next(0, C["MK1"], C["MKB1"])
        k(f"s_branch {XJOIN}")
    k(f"{NOROLE}:\ns_nop 15")
    V3 = VM(k)
    for f in epi_ops(5, V3, gaps=0, pk=True) + epi_ops(6, V3, gaps=0, pk=True):
        if callable(f): f()
        else: k(f)
    if layer == 0:
        k("s_waitcnt vmcnt(0)")
        for f in p1b_prefetch(V3): f()
        cs_prefetch(V3)
        m1 = 0 if UNI else C["MK1"]
        mark_next(m1, 32 - m1, C["MKB"])
        k(f"s_waitcnt vmcnt(0)\ns_barrier\ns_branch {P1B}")
    else:
        k("s_endpgm")
    for lb, ds in stubs:
        if isinstance(ds, int):
            k(f"{lb}:\n{flag_ld} ; retry\ns_sub_i32 s13, s13, 1\ns_waitcnt vmcnt(0) ; retry")
            for o in flag_ops.split("\n"): k(o.strip() + " ; retry")
            k(f"s_cmp_lt_i32 s13, 0\ns_cbranch_scc1 {lb}_b ; retry\ns_bitcmp1_b32 s28, {ds}\ns_cbranch_scc0 {lb} ; retry\ns_branch {lb}_b ; retry")
            continue
        spin(lb, ds, lb + "_b")
        k(f"s_branch {lb}_b ; retry")
    KR = 64
    S = 80
    k(f"""
    {FB}:
    v_mov_b32 v14, 0xff800000
    s_mov_b32 s9, {kvf}
    {FB}_l1:
    buffer_load_dwordx4 v[{KR}:{KR+3}], v4, s[40:43], s9 offen
    buffer_load_dwordx4 v[{KR+4}:{KR+7}], v4, s[40:43], s9 offen offset:1024
    s_waitcnt vmcnt(0)
    {MF} v[{S}:{S+15}], v[{KR}:{KR+3}], v[{Q}:{Q+3}], 0
    {MF} v[{S}:{S+15}], v[{KR+4}:{KR+7}], v[{Q+4}:{Q+7}], v[{S}:{S+15}]
    """)
    for r in range(0, 16, 2):
        k(f"v_max3_f32 v14, v{S+r}, v{S+r+1}, v14")
    k(f"""
    s_add_u32 s9, s9, 4096
    s_cmp_lt_u32 s9, {kvf + 64*4096}
    s_cbranch_scc1 {FB}_l1
    v_mov_b32 v8, v14
    s_nop 1
    v_permlane32_swap_b32 v14, v8
    v_max_f32 v14, v14, v8
    """)
    for r in range(16):
        k(f"v_mov_b32 v{O+r}, 0")
    k(f"""
    s_mov_b32 s9, {kvf}
    {FB}_l2:
    buffer_load_dwordx4 v[{KR}:{KR+3}], v4, s[40:43], s9 offen
    buffer_load_dwordx4 v[{KR+4}:{KR+7}], v4, s[40:43], s9 offen offset:1024
    buffer_load_dwordx4 v[{KR+8}:{KR+11}], v4, s[40:43], s9 offen offset:2048
    buffer_load_dwordx4 v[{KR+12}:{KR+15}], v4, s[40:43], s9 offen offset:3072
    s_waitcnt vmcnt(0)
    {MF} v[{S}:{S+15}], v[{KR}:{KR+3}], v[{Q}:{Q+3}], 0
    {MF} v[{S}:{S+15}], v[{KR+4}:{KR+7}], v[{Q+4}:{Q+7}], v[{S}:{S+15}]
    """)
    for r in range(16):
        k(f"v_sub_f32 v{S+r}, v{S+r}, v14")
    for r in range(16):
        k(f"v_exp_f32 v{S+r}, v{S+r}")
    for d in range(8):
        k(f"v_cvt_pk_bf16_f32 v{P+d}, v{S+2*d}, v{S+2*d+1}")
    k(f"""
    {MF} v[{O}:{O+15}], v[{KR+8}:{KR+11}], v[{P}:{P+3}], v[{O}:{O+15}]
    {MF} v[{O}:{O+15}], v[{KR+12}:{KR+15}], v[{P+4}:{P+7}], v[{O}:{O+15}]
    s_add_u32 s9, s9, 4096
    s_cmp_lt_u32 s9, {kvf + 64*4096}
    s_nop 7
    s_cbranch_scc1 {FB}_l2
    s_nop 7
    v_mov_b32 v9, v{O+12}
    v_mov_b32 v8, v{O+12}
    s_nop 1
    v_permlane32_swap_b32 v9, v8
    v_rcp_f32 v9, v8
    s_nop 1
    s_branch {NORM}
    """)
    if not (FUSE and layer == 0): epilogue(k)
    return k, dict(grid=256, block=256, lds=LDS)
```

```python
from common import *
import struct, math


def f2h(x):
    return "0x%08x" % struct.unpack("<I", struct.pack("<f", x))[0]


QSCALE = (28 ** -0.5) * math.log2(math.e)
MF = "v_mfma_f32_32x32x16_bf16"


def stats_finish(k, s1, s2):
    k(f"""
    v_mul_f32 v{s1}, {f2h(1.0/448)}, v{s1}
    v_mul_f32 v{s2}, {f2h(1.0/448)}, v{s2}
    v_fma_f32 v{s2}, -v{s1}, v{s1}, v{s2}
    v_max_f32 v{s2}, 0, v{s2}
    v_add_f32 v{s2}, {f2h(1e-5)}, v{s2}
    v_rsq_f32 v{s2}, v{s2}
    """)


def qkv_setup(k, kvf=KVF, qf=QF, vt=None):
    k(f"""
    s_lshl_b32 s6, s4, 1
    s_add_u32 s6, s6, s12
    s_lshl_b32 s7, s5, 1
    s_add_u32 s62, s7, s13
    s_lshl_b32 s8, s6, 4
    s_add_u32 s8, s8, s62
    s_lshl_b32 s8, s8, 11
    s_add_u32 s60, s8, {qf}
    v_lshlrev_b32 v50, 4, v1
    s_lshl_b32 s9, s6, 12
    s_add_u32 s9, s9, {kvf}
    s_and_b32 s6, s62, 7
    s_lshr_b32 s7, s6, 2
    s_lshl_b32 s7, s7, 10
    s_and_b32 s8, s6, 1
    s_lshl_b32 s8, s8, 9
    s_add_u32 s7, s7, s8
    s_and_b32 s8, s6, 2
    s_lshl_b32 s8, s8, 2
    s_add_u32 s7, s7, s8
    s_lshl_b32 s8, s6, 6
    s_add_u32 s8, s8, 2048
    s_cmp_ge_u32 s62, 8
    s_cselect_b32 s7, s8, s7
    s_cselect_b64 vcc, -1, 0
    s_add_u32 s61, s9, s7
    v_lshrrev_b32 v51, 4, v2
    v_lshlrev_b32 v51, 10, v51
    v_bfe_u32 v52, v2, 2, 1
    v_lshl_add_u32 v51, v52, 9, v51
    v_and_b32 v52, 3, v2
    v_lshl_add_u32 v51, v52, 1, v51
    v_bfe_u32 v52, v2, 3, 1
    v_lshl_add_u32 v51, v52, 3, v51
    v_lshlrev_b32 v52, 4, v2
    v_cndmask_b32 v51, v52, v51, vcc
    """)
    if vt is not None:
        k.lines = k.lines[:-10]
        k(f"""
        v_bfe_u32 v51, v1, 3, 1
        v_lshlrev_b32 v51, 10, v51
        v_bfe_u32 v52, v1, 2, 1
        v_lshl_add_u32 v51, v52, 9, v51
        v_and_b32 v52, 3, v1
        v_lshl_add_u32 v51, v52, 4, v51
        v_lshlrev_b32 v52, 4, v2
        v_cndmask_b32 v51, v52, v51, vcc
        v_lshl_add_u32 v52, v2, 3, s{vt}
        v_bfe_u32 v53, v1, 2, 2
        v_and_b32 v54, 1, v1
        v_lshl_add_u32 v53, v54, 2, v53
        v_bfe_u32 v54, v1, 1, 1
        v_lshl_add_u32 v53, v54, 4, v53
        v_lshl_add_u32 v53, v53, 3, s{vt}
        """)


def qkv_epilogue(k, ACC, CS, sfx='', sc='', sck=None, vt=False):
    sck = sc if sck is None else sck
    k(f"""
    v_mul_f32 v36, {f2h(QSCALE)}, v31
    v_cmp_eq_u32 vcc, 1, v3
    v_sub_f32 v30, 0, v30
    v_cndmask_b32 v37, v36, v31, vcc
    """)
    for r in range(16):
        k(f"v_fmac_f32 v{ACC+r}, v30, v{CS+r}")
    for r in range(16):
        k(f"v_mul_f32 v{ACC+r}, v{36 if r < 12 else 37}, v{ACC+r}")
    PKD = 40
    for d in range(8):
        k(f"v_cvt_pk_bf16_f32 v{PKD+d}, v{ACC+2*d}, v{ACC+2*d+1}")
    k(f"""
    buffer_store_dwordx4 v[{PKD}:{PKD+3}], v50, s[40:43], s60 offen{sc}
    buffer_store_dwordx4 v[{PKD+4}:{PKD+7}], v50, s[40:43], s60 offen offset:1024{sc}
    s_and_b32 s10, s62, 7
    v_mov_b32 v48, v{PKD+6}
    v_mov_b32 v49, v{PKD+7}
    s_mov_b32 exec_lo, 0
    s_cmp_lg_u32 s10, 7
    s_cbranch_scc1 {k.name}_kv1{sfx}
    s_cmp_ge_u32 s62, 8
    s_cselect_b32 s10, 0x3f80, 0
    v_mov_b32 v48, s10
    v_mov_b32 v49, 0
    {k.name}_kv1{sfx}:
    s_cmp_ge_u32 s62, 8
    s_cbranch_scc1 {k.name}_v{sfx}
    buffer_store_dwordx2 v[48:49], v51, s[40:43], s61 offen{sck}
    s_branch {k.name}_kvd{sfx}
    {k.name}_v{sfx}:
    """)
    if vt:
        k(f"""
        ds_write_b64 v52, v[48:49]
        s_mov_b64 exec, -1
        s_waitcnt lgkmcnt(0)
        ds_read_b64_tr_b16 v[36:37], v53
        ds_read_b64_tr_b16 v[38:39], v53 offset:64
        s_mov_b64 exec, 0xffff
        s_waitcnt lgkmcnt(0)
        buffer_store_dwordx4 v[36:39], v51, s[40:43], s61 offen{sck}
        """)
    else:
        k(f"""
        buffer_store_short v48, v51, s[40:43], s61 offen{sck}
        buffer_store_short_d16_hi v48, v51, s[40:43], s61 offen offset:16{sck}
        buffer_store_short v49, v51, s[40:43], s61 offen offset:32{sck}
        buffer_store_short_d16_hi v49, v51, s[40:43], s61 offen offset:48{sck}
        """)
    k(f"""
    {k.name}_kvd{sfx}:
    s_mov_b64 exec, -1
    """)


def gen_p1a(name, MAP='H2', NF=(2, 4), PSC=' sc1', ND=5, KP=16, PREPOS=0, NTP=' nt', NTX='', NTW='', MKSC=' sc1', QSC='', CPL=(2, 5), FUSE=0):
    import os
    DBG = os.environ.get("DBG2", "").split(",")
    k = Kernel(name)
    NXT = ("mm_kernel", "mm_kernel_end") if FUSE else ("ma_kernel", "mb_kernel_end")
    if FUSE == 2: FUSE = 0
    prologue(k, 256, (44, 62, None, NXT[0], "pc", CPL[0]))
    WB = 57344
    PB = WB + 512 * 128
    STB = PB + 28 * 1024
    LDS = STB + 512
    LN = k.name
    k("""
    s_bfe_u32 s4, s2, 0x20001
    s_lshl_b32 s4, s4, 3
    s_and_b32 s5, s2, 1
    s_add_u32 s4, s4, s5
    s_lshr_b32 s5, s2, 3
    s_and_b32 s6, s5, 3
    s_lshl_b32 s6, s6, 1
    s_add_u32 s4, s4, s6
    """)
    k(f"""
    s_lshr_b32 s5, s5, 2
    v_and_b32 v2, 31, v1
    v_lshrrev_b32 v3, 5, v1
    v_lshrrev_b32 v4, 3, v1
    v_and_b32 v5, 7, v1
    v_lshrrev_b32 v6, 4, v1
    v_lshlrev_b32 v50, 4, v1
    """)
    k(f"""
    s_lshl_b32 s6, s4, 6
    s_lshl_b32 s7, s3, 4
    s_add_u32 s6, s6, s7
    v_add_u32 v7, s6, v4
    v_mul_u32_u24 v7, 896, v7
    v_xor_b32 v8, v5, v6
    v_lshl_add_u32 v8, v8, 4, v7
    v_xor_b32 v9, v5, v6
    v_xor_b32 v9, 4, v9
    v_lshl_add_u32 v9, v9, 4, v7
    v_add_u32 v9, {8*896}, v9
    """)
    k(f"""
    s_mul_i32 s6, s5, 112
    s_mul_i32 s7, s3, {8*896}
    s_add_u32 s6, s6, s7
    v_mul_u32_u24 v10, 896, v4
    v_lshl_add_u32 v10, v5, 4, v10
    v_add_u32 v10, s6, v10
    """)
    k(f"""
    s_lshl_b32 s6, s3, 6
    v_add_u32 v11, s6, v1
    v_lshlrev_b32 v12, 7, v11
    v_add_u32 v12, {WB+112}, v12
    v_mul_u32_u24 v11, 56, v11
    s_and_b32 s7, s5, 3
    s_lshl_b32 s7, s7, 4
    v_add_u32 v11, s7, v11
    v_add_u32 v14, {256*56}, v11
    s_lshl_b32 s9, s3, 11
    s_lshl_b32 s10, s3, 10
    s_add_u32 s10, s10, {WB}
    s_and_b32 s6, s2, 7
    s_lshl_b32 s7, s5, 3
    s_add_u32 s6, s6, s7
    s_lshl_b32 s6, s6, 2
    s_add_u32 s6, s6, s3
    s_lshl_b32 s6, s6, 14
    s_add_u32 s15, s6, {MK0}
    s_cmp_eq_u32 s5, 7
    s_cselect_b32 s69, 0, s5
    s_lshl_b32 s69, s69, 13
    s_bfe_u32 s70, s2, 0x20003
    s_mul_i32 s70, s70, 7
    s_lshr_b32 s70, s70, 1
    s_lshl_b32 s70, s70, 12
    v_mov_b32 v56, -1
    v_mov_b32 v57, -1
    v_mov_b32 v58, -1
    v_mov_b32 v59, -1
    """)
    k("s_waitcnt lgkmcnt(0)")
    stamp_mid(k, 0)
    vm = VM(k)
    srd(k, S_WS, P_WS, WS_USED)
    srd(k, 44, P_X, XBYTES)
    srd(k, 48, P_WQ, D * D * 2)

    def ldx(cnt):
        for _ in range(cnt):
            k("s_add_u32 m0, s9, s69\ns_lshr_b32 s11, s69, 6")
            vm.issue(f"buffer_load_dwordx4 v8, s[44:47], s11 offen{NTX} lds", "x")
            k("s_add_u32 m0, m0, 1024\ns_add_u32 s69, s69, 8192")
            vm.issue(f"buffer_load_dwordx4 v9, s[44:47], s11 offen{NTX} lds", "x")
            k("s_cmp_eq_u32 s69, 57344\ns_cselect_b32 s69, 0, s69")

    def ldw(cnt):
        k("s_mov_b32 exec_lo, 0x7f7f7f7f\ns_mov_b32 exec_hi, 0x7f7f7f7f")
        for _ in range(cnt):
            k("s_add_u32 m0, s10, s70\ns_mul_i32 s11, s70, 7")
            vm.issue(f"buffer_load_dwordx4 v10, s[48:51], s11 offen{NTW} lds", "w")
            k("s_add_u32 s70, s70, 4096\ns_cmp_eq_u32 s70, 57344\ns_cselect_b32 s70, 0, s70")
        k("s_mov_b64 exec, -1")
    ldx(NF[0]); ldw(NF[1])
    k(f"""
    s_and_b32 s6, s2, 7
    s_bfe_u32 s7, s2, 0x20003
    s_mul_i32 s66, s5, 3
    s_add_u32 s66, s66, s7
    s_sub_u32 s66, s66, 1
    s_lshl_b32 s66, s66, 3
    s_add_u32 s66, s66, s6
    s_cmp_eq_u32 s7, 0
    s_cselect_b32 s66, 255, s66
    s_mov_b32 s59, 0x20000
    s_cmp_ge_u32 s66, 112
    s_cbranch_scc1 {LN}_u1
    s_mov_b32 s63, 0
    s_cmp_lt_u32 s3, 2
    s_cselect_b32 s56, s{P_WG}, s{P_WU}
    s_cselect_b32 s57, s{P_WG+1}, s{P_WU+1}
    s_mov_b32 s58, {D*F*2}
    s_mov_b32 s65, {F*2}
    s_and_b32 s6, s66, 3
    s_mul_i32 s6, s6, 112
    s_and_b32 s7, s3, 1
    s_mul_i32 s7, s7, 56
    s_add_u32 s6, s6, s7
    s_mul_i32 s64, s6, {F*2}
    s_lshr_b32 s67, s66, 2
    s_and_b32 s68, s66, 3
    s_branch {LN}_u9
    {LN}_u1:
    s_mov_b32 s65, {D*2}
    s_cmp_ge_u32 s66, 168
    s_cbranch_scc1 {LN}_u2
    s_mov_b32 s63, 1
    s_mov_b32 s56, s{P_WD}
    s_mov_b32 s57, s{P_WD+1}
    s_mov_b32 s58, {D*F*2}
    s_sub_u32 s6, s66, 112
    s_branch {LN}_u3
    {LN}_u2:
    s_mov_b32 s63, 2
    s_mov_b32 s56, s{P_WO}
    s_mov_b32 s57, s{P_WO+1}
    s_mov_b32 s58, {D*D*2}
    s_sub_u32 s6, s66, 168
    s_cmp_lt_u32 s66, 182
    s_cbranch_scc1 {LN}_u3
    s_mov_b32 s63, 3
    s_mov_b32 s58, 0
    s_mov_b32 s6, 0
    {LN}_u3:
    s_mul_i32 s68, s6, 9363
    s_lshr_b32 s68, s68, 16
    s_mul_i32 s7, s68, 7
    s_sub_u32 s67, s6, s7
    s_mul_i32 s6, s68, 224
    s_mul_i32 s7, s3, 56
    s_add_u32 s6, s6, s7
    s_mul_i32 s64, s6, {D*2}
    {LN}_u9:
    s_and_b32 s57, s57, 0xffff
    s_lshl_b32 s6, s67, 7
    s_add_u32 s64, s64, s6
    v_mul_lo_u32 v13, v4, s65
    v_lshl_add_u32 v13, v5, 4, v13
    s_lshl_b32 s65, s65, 3
    s_mul_i32 s6, s3, {7*1024}
    s_add_u32 s6, s6, {PB}
    """)
    k(f"""
    s_mov_b32 s66, s6
    s_cmp_lt_u32 s5, 4
    s_cselect_b32 s52, s{P_WK}, s{P_WV}
    s_cselect_b32 s53, s{P_WK+1}, s{P_WV+1}
    s_and_b32 s53, s53, 0xffff
    s_mov_b32 s54, {D*DH*2}
    s_mov_b32 s55, 0x20000
    v_and_b32 v55, 15, v1
    v_lshrrev_b32 v54, 3, v55
    v_lshlrev_b32 v54, 10, v54
    v_and_b32 v15, 7, v55
    v_lshl_add_u32 v54, v15, 7, v54
    v_bfe_u32 v15, v55, 1, 2
    v_xor_b32 v15, v15, v6
    v_lshl_add_u32 v54, v15, 5, v54
    v_add_u32 v54, s9, v54
    v_bfe_u32 v15, v55, 3, 1
    v_lshl_add_u32 v54, v15, 4, v54
    v_xor_b32 v61, 16, v54
    s_lshl_b32 s6, s3, 7
    s_add_u32 s6, s6, {STB}
    v_lshl_add_u32 v55, v55, 3, s6
    """)
    k(f"""
    s_mov_b32 s71, 0x3f803f80
    s_lshr_b32 s12, s3, 1
    s_and_b32 s13, s3, 1
    s_lshl_b32 s6, s12, 5
    v_add_u32 v32, s6, v2
    v_lshlrev_b32 v53, 3, v32
    v_add_u32 v53, {STB}, v53
    v_lshrrev_b32 v33, 3, v32
    v_lshlrev_b32 v33, 10, v33
    v_and_b32 v34, 7, v32
    v_lshl_add_u32 v33, v34, 7, v33
    v_bfe_u32 v34, v32, 1, 3
    """)
    for q in range(4):
        k(f"""
        v_add_u32 v32, {2*q}, v3
        v_xor_b32 v32, v32, v34
        v_lshl_add_u32 v{24+q}, v32, 4, v33
        """)
    k(f"""
    v_bfe_u32 v32, v1, 2, 2
    v_bfe_u32 v33, v1, 4, 1
    v_and_b32 v34, 3, v1
    v_lshl_add_u32 v33, v33, 2, v34
    v_lshlrev_b32 v34, 3, v33
    s_mul_i32 s6, s13, 56
    v_add_u32 v34, s6, v34
    s_lshl_b32 s7, s13, 3
    s_add_u32 s7, s7, 112
    v_mov_b32 v29, s7
    v_cmp_eq_u32 vcc, 7, v33
    v_cndmask_b32 v34, v34, v29, vcc
    v_add_u32 v34, {WB}, v34
    v_lshl_add_u32 v29, v3, 2, v32
    v_lshl_add_u32 v29, v29, 7, v34
    v_lshl_add_u32 v28, v3, 3, v32
    v_lshl_add_u32 v28, v28, 7, v34
    """)
    k("s_mov_b32 s14, s9")
    qkv_setup(k)
    k(f"""
    s_mov_b32 s9, s14
    v_mov_b32 v32, s71
    v_mov_b32 v33, s71
    v_mov_b32 v34, s71
    v_mov_b32 v35, s71
    """)
    k(f"""
    v_bfe_u32 v60, v1, 2, 2
    v_lshl_add_u32 v60, v3, 2, v60
    v_and_b32 v15, 3, v1
    v_lshlrev_b32 v15, 3, v15
    v_lshl_add_u32 v60, v60, 7, v15
    v_bfe_u32 v15, v1, 4, 1
    s_mov_b32 s61x, 0xffff0000
    s_mov_b32 s24, s40
    s_mov_b32 s25, s41
    s_mov_b32 s26, s42
    s_mov_b32 s27, 0x20000
    s_cmp_lg_u32 s63, 0
    s_cbranch_scc1 {LN}_a1
    v_mul_u32_u24 v15, 14336, v15
    s_lshl_b32 s6, s3, 5
    s_add_u32 s6, s6, {PB}
    v_add3_u32 v60, v60, v15, s6
    s_lshl_b32 s6, s67, 2
    s_add_u32 s6, s6, s3
    s_mul_i32 s8, s6, 9363
    s_lshr_b32 s8, s8, 16
    s_mul_i32 s7, s8, 7
    s_sub_u32 s7, s6, s7
    s_mul_i32 s8, s8, {WGS*1024}
    s_add_u32 s8, s8, {WGUF}
    s_sub_u32 s28, s7, 3
    s_lshr_b32 s29, s28, 1
    s_mul_i32 s29, s29, 58
    s_and_b32 s28, s28, 1
    s_add_u32 s28, s28, s29
    s_add_u32 s28, s28, 87
    s_mul_i32 s29, s68, 14
    s_add_u32 s29, s29, s28
    s_mul_i32 s30, s68, 18
    s_add_u32 s30, s30, s7
    s_cmp_lt_u32 s7, 3
    s_cselect_b32 s29, s30, s29
    s_cselect_b32 s30, 3, 2
    s_cselect_b32 s31, 12, 0
    s_lshl_b32 s30, s30, 10
    s_add_u32 s29, s29, s31
    s_lshl_b32 s29, s29, 10
    s_add_u32 s16, s29, s8
    """.replace("s61x", "s32"))
    for j in range(1, 7):
        k(f"s_add_u32 s{16+j}, s{15+j}, s30")
    k(f"""
    s_mul_i32 s29, s68, 3
    s_add_u32 s29, s29, s7
    s_lshl_b32 s29, s29, 10
    s_add_u32 s29, s29, s8
    s_add_u32 s30, s7, 84
    s_add_u32 s31, s28, 56
    s_cmp_lt_u32 s7, 3
    s_cselect_b32 s22, s29, s22
    s_cselect_b32 s30, s30, s31
    s_lshl_b32 s30, s30, 10
    s_add_u32 s30, s30, s8
    s_lshl_b32 s31, s68, 2
    s_add_u32 s23, s30, s31
    s_branch {LN}_a9
    {LN}_a1:
    v_lshl_add_u32 v60, v15, 5, v60
    s_mul_i32 s6, s12, {7*2048}
    s_lshl_b32 s7, s13, 6
    s_add_u32 s6, s6, s7
    s_add_u32 s6, s6, {PB}
    v_add_u32 v60, s6, v60
    s_lshl_b32 s6, s67, 1
    s_add_u32 s6, s6, s13
    s_mul_i32 s7, s6, 112
    s_mul_i32 s8, s68, 14
    s_add_u32 s7, s7, s8
    s_mul_i32 s8, s12, 7
    s_add_u32 s7, s7, s8
    s_lshl_b32 s7, s7, 10
    s_add_u32 s16, s7, {WDF}
    s_lshl_b32 s7, s6, 5
    s_lshl_b32 s8, s68, 4
    s_add_u32 s7, s7, s8
    s_lshl_b32 s8, s12, 3
    s_add_u32 s7, s7, s8
    s_lshl_b32 s7, s7, 10
    s_add_u32 s7, s7, {WOF}
    s_cmp_eq_u32 s63, 2
    s_cselect_b32 s16, s7, s16
    s_cmp_lg_u32 s63, 3
    s_cbranch_scc1 {LN}_a2
    s_and_b32 s6, s2, 3
    s_mul_i32 s7, s6, {7*2048}
    v_add_u32 v60, s7, v29
    s_mul_i32 s7, s62, 28
    s_mul_i32 s6, s6, 7
    s_add_u32 s7, s7, s6
    s_lshl_b32 s7, s7, 10
    s_add_u32 s16, s7, {WQF}
    s_and_b32 s6, s2, 0x1c
    s_or_b32 s6, s6, s12
    s_cmp_eq_u32 s6, 0
    s_cselect_b32 s26, s26, 0
    {LN}_a2:
    """)
    for j in range(1, 8):
        k(f"s_add_u32 s{16+j}, s{15+j}, 1024")
    k(f"{LN}_a9:")
    stamp_mid(k, 7)
    vm.issue("buffer_load_dwordx4 v[16:19], v11, s[52:55], 0 offen", "kv")
    vm.issue("buffer_load_dwordx4 v[20:23], v14, s[52:55], 0 offen", "kv")
    ldx(7 - NF[0])
    ldw(14 - NF[1])
    stamp_mid(k, 1)
    def preblk():
        cpf = code_pf(k, 44, 220, NXT[0], NXT[1], "pc2", CPL[1])
        k(f"s_bfe_u32 s6, s2, 0x20003\ns_cmp_eq_u32 s6, 0\ns_cbranch_scc1 {LN}_mk1")
        for i in range(7):
            k(f"s_add_u32 m0, s66, {i*1024}\ns_nop 0")
            vm.issue(f"buffer_load_dwordx4 v13, s[56:59], s64 offen{NTP} lds", "pre")
            k("s_add_u32 s64, s64, s65")
        k(f"{LN}_mk1b:")
        vm.issue(cpf, "cpf")
        stamp_mid(k, 8)
    if PREPOS == 0: preblk()
    vm.wait("kv")
    k("ds_write_b128 v12, v[16:19]\nds_write_b128 v12, v[20:23] offset:32768")
    SR = 128
    T = 184
    vm.wait("x")
    stamp_mid(k, 10)
    for c in range(7):
        for h in range(2):
            r = SR + 8 * c + 4 * h
            k(f"ds_read_b128 v[{r}:{r+3}], v{61 if h else 54} offset:{c*8192}")
    for c in range(ND):
        k(f"s_waitcnt lgkmcnt({12-2*c})")
        for d in range(8):
            r = SR + 8 * c + d
            z = c == 0 and d == 0
            k(f"v_dot2_f32_bf16 v30, v{r}, s71, {'0' if z else 'v30'}")
            k(f"v_dot2_f32_bf16 v31, v{r}, v{r}, {'0' if z else 'v31'}")
    if PREPOS == 1: preblk()
    sv = []
    for i, r in enumerate(range(SR + 8 * ND, SR + 56)):
        t = 40 + 2 * (i & 1)
        sv += [f"v_lshlrev_b32 v{t}, 16, v{r}", f"v_and_b32 v{t+1}, s32, v{r}",
               f"v_add_f32 v30, v30, v{t}", f"v_fmac_f32 v31, v{t}, v{t}",
               f"v_add_f32 v30, v30, v{t+1}", f"v_fmac_f32 v31, v{t+1}, v{t+1}"]
    ad = ["v_add_f32 v30, v30, v36", "v_add_f32 v31, v31, v37"]
    sv += [
           "v_mov_b32 v36, v30", "v_mov_b32 v37, v31", "GAP",
           "v_permlane32_swap_b32 v30, v36", "v_permlane32_swap_b32 v31, v37", *ad,
           "v_mov_b32 v36, v30", "v_mov_b32 v37, v31", "GAP",
           "v_permlane16_swap_b32 v30, v36", "v_permlane16_swap_b32 v31, v37", *ad,
           f"v_mul_f32 v30, {f2h(1.0/448)}, v30", f"v_mul_f32 v31, {f2h(1.0/448)}, v31", "v_fma_f32 v31, -v30, v30, v31",
           "v_max_f32 v31, 0, v31", f"v_add_f32 v31, {f2h(1e-5)}, v31", "v_rsq_f32 v31, v31", "GAP", "W"]
    stamp_mid(k, 2)
    ACC, CS, RING = 64, 80, 96
    lg = LG()

    def reads(kb):
        r = RING + 8 * (kb % 4)
        return [f"ds_read_b64_tr_b16 v[{r}:{r+1}], v28 offset:{kb*2048}",
                f"ds_read_b64_tr_b16 v[{r+2}:{r+3}], v28 offset:{kb*2048+512}",
                f"ds_read_b128 v[{r+4}:{r+7}], v{24+(kb&3)} offset:{(kb>>2)*8192}"]

    def ds(lg, text, tag):
        lg.issue(tag); k(text)

    def put(lg, sv, n):
        while sv and n > 0:
            o = sv.pop(0); n -= 1
            if o == "GAP": return
            if o == "W": ds(lg, "ds_write_b64 v55, v[30:31]", "stw")
            else: k(o)

    def step(lg, sv, kb, side, more=()):
        w = lg.waitstr(("f", kb))
        if w: k(w)
        r = RING + 8 * (kb % 4)
        c0 = "0" if kb == 0 else f"v[{ACC}:{ACC+15}]"
        c1 = "0" if kb == 0 else f"v[{CS}:{CS+15}]"
        if kb + 3 < 28: side = [(x, ("f", kb + 3)) for x in reads(kb + 3)] + side
        h = (len(side) + 1) // 2
        room = max(0, min((11 - len(side) - 2 * len(more)) // 2, -(-len(sv) // max(1, 2 * (24 - kb))) + 1))
        k(f"{MF} v[{ACC}:{ACC+15}], v[{r}:{r+3}], v[{r+4}:{r+7}], {c0}")
        for o, t in side[:h]: ds(lg, o, t)
        put(lg, sv, room)
        k(f"{MF} v[{CS}:{CS+15}], v[{r}:{r+3}], v[32:35], {c1}")
        for o, t in side[h:]: ds(lg, o, t)
        for f in more: f()
        put(lg, sv, room)
    vm.wait("w")
    k(f"s_waitcnt lgkmcnt(0)\ns_barrier")
    stamp_mid(k, 3)
    for kb in range(3):
        for r in reads(kb): ds(lg, r, ("f", kb))
    for kb in range(KP):
        step(lg, sv, kb, [])
    stamp_mid(k, 4)
    k(f"s_cmp_eq_u32 s63, 3\ns_cbranch_scc1 {LN}_np")
    vm.wait("pre")
    k(f"{LN}_np:")
    k(f"s_barrier\ns_cmp_eq_u32 s63, 2\ns_cbranch_scc1 {LN}_t2")
    stamp_mid(k, 6)

    def finish(offs, sfx):
        import copy
        l2 = copy.deepcopy(lg); s2 = list(sv)
        trs = []
        for j, (o0, o1) in enumerate(offs):
            trs += [(f"ds_read_b64_tr_b16 v[{T+4*j}:{T+4*j+1}], v60 offset:{o0}", ("t", j)),
                    (f"ds_read_b64_tr_b16 v[{T+4*j+2}:{T+4*j+3}], v60 offset:{o1}", ("t", j))]

        def st(j):
            def f():
                w = l2.waitstr(("t", j))
                if w: k(w)
                if sfx == "o" and j & 1:
                    k(f"v_cndmask_b32 v{T+4*j+2}, 0, v{T+4*j+2}, vcc\nv_cndmask_b32 v{T+4*j+3}, 0, v{T+4*j+3}, vcc")
                k(f"buffer_store_dwordx4 v[{T+4*j}:{T+4*j+3}], v50, s[24:27], s{16+j} offen{PSC}")
            return f
        sts = [st(j) for j in range(len(offs))]
        if sfx == "o": k("s_mov_b32 vcc_lo, -1\ns_mov_b32 vcc_hi, 0")
        for kb in range(KP, 28):
            side, trs = trs[:4], trs[4:]
            more = [sts.pop(0)] if (sts and kb >= KP + 2) else []
            if kb == 26:
                assert not s2, len(s2)
                k((l2.waitstr("stw") or "") + "\ns_barrier")
                side = side + [("ds_read_b64 v[30:31], v53", "st")]
            step(l2, s2, kb, side, more)
        for f in sts: f()
        if sfx == "":
            k(f"s_cmp_lg_u32 s63, 0\ns_nop 9\ns_cbranch_scc1 {LN}_nc")
            for j in range(7):
                for d in range(4):
                    k(f"v_dot2_f32_bf16 v{16+(d&1)}, v{T+4*j+d}, s71, {'0' if (j == 0 and d < 2) else 'v%d' % (16+(d&1))}")
            k(f"""
            v_add_f32 v16, v16, v17
            v_mov_b32 v17, v16
            s_nop 1
            v_permlane32_swap_b32 v16, v17
            v_add_f32 v16, v16, v17
            v_cvt_pk_bf16_f32 v17, v16, v16
            v_lshlrev_b32 v17, 16, v17
            v_sub_f32 v17, v16, v17
            v_cvt_pk_bf16_f32 v16, v16, v17
            buffer_store_dword v16, v50, s[24:27], s23 offen sc1
            {LN}_nc:
            """)
        k(l2.waitstr("st") or "")
        qkv_epilogue(k, ACC, CS, sfx, QSC)
        if FUSE:
            k(f"""
            s_add_u32 s60, s60, {QF1 - QF}
            buffer_store_dwordx4 v[56:59], v50, s[40:43], s60 offen{MKSC}
            buffer_store_dwordx4 v[56:59], v50, s[40:43], s60 offen offset:1024{MKSC}
            """)
    finish([(j * 2048, j * 2048 + 1024) for j in range(7)], "")
    stamp_mid(k, 5)

    def mk(i0, i1):
        for i in range(i0, i1):
            if i % 4 == 0 or i == i0: k(f"s_add_u32 s14, s15, {(i & ~3)*1024}")
            k(f"buffer_store_dwordx4 v[56:59], v50, s[40:43], s14 offen offset:{(i%4)*1024}{MKSC}")
    k(f"""
    s_bfe_u32 s6, s2, 0x20003
    s_cmp_lg_u32 s6, 0
    s_cbranch_scc1 {LN}_fin
    s_lshl_b32 s6, s62, 7
    s_add_u32 s6, s6, {CSQ}
    v_lshlrev_b32 v13, 4, v3
    """)
    for q in range(4):
        k(f"buffer_store_dwordx4 v[{CS+4*q}:{CS+4*q+3}], v13, s[24:27], s6 offen offset:{q*32}")
    mk(7, 16)
    k(f"""
    s_sub_u32 s14, s15, {MK0}
    s_lshr_b32 s14, s14, 4
    s_add_u32 s14, s14, {ST2}
    buffer_store_dwordx4 v[56:59], v50, s[40:43], s14 offen{MKSC}
    """)
    if FUSE:
        k(f"""
        s_sub_u32 s14, s14, {ST2 - KVF1}
        buffer_store_dwordx4 v[56:59], v50, s[40:43], s14 offen{MKSC}
        s_cmp_lg_u32 s15, {MK0 + 255 * 16384}
        s_cbranch_scc1 {LN}_fin
        s_mov_b32 s14, {FLG}
        buffer_store_dwordx4 v[56:59], v50, s[40:43], s14 offen{MKSC}
        buffer_store_dwordx4 v[56:59], v50, s[40:43], s14 offen offset:1024{MKSC}
        v_mov_b32 v16, 0
        v_mov_b32 v17, 0
        v_mov_b32 v18, 0
        v_mov_b32 v19, 0
        buffer_store_dwordx4 v[16:19], v50, s[40:43], s14 offen offset:2048{MKSC}
        buffer_store_dwordx4 v[16:19], v50, s[40:43], s14 offen offset:3072{MKSC}
        """)
    k(f"{LN}_fin:\ns_endpgm\n{LN}_t2:")
    finish([((28*(jj>>1)+16*(jj&1))*128, (28*(jj>>1)+16*(jj&1)+8)*128) for jj in range(8)], "o")
    k(f"s_endpgm\n{LN}_mk1:")
    mk(0, 7)
    k(f"s_branch {LN}_mk1b")
    epilogue(k)
    return k, dict(grid=256, block=256, lds=LDS)
```

```python
import sys, os, json
import common
if len(sys.argv) > 2 and sys.argv[2] == 'stamp': common.STAMP = True
from build import *
from k_p1 import gen_p1a
from k_mega3 import gen_mega, DEF
over = json.loads(os.environ.get("OVER", "{}"))
ov1 = json.loads(os.environ.get("OV1", "{}"))
if over.get("FUSE", DEF["FUSE"]):
    k, c = gen_mega("mm_kernel", 0, **over)
    L = [gen_p1a("p1a_kernel", **{"FUSE": 1, **ov1}), gen_mega("mm_l1", 1, k=k, **over)]
else:
    L = [gen_p1a("p1a_kernel", **ov1), gen_mega("ma_kernel", 0, **over), gen_mega("mb_kernel", 1, **over)]
assemble(L, sys.argv[1] if len(sys.argv) > 1 else "out.s")
```

```python
from common import *
import common
from k_p1 import f2h, stats_finish, qkv_setup, qkv_epilogue

MF = "v_mfma_f32_32x32x16_bf16"
SC = " sc1"
BUDGET = 200000

DEF = dict(
    X_BURST=6, LEAD=28,
    PACE=(2, 3), BARS=(106, 106, 154), BUD=6,
    KVROT=0, ROT=0, FE=4, MAP='H2', DUAL=0, PACE5=(2,), W_PRE=0,
    SS=(), CPF=15, NOPK=1, E56=6, WD1=0, WD2=12, WD2S=16, BGAP=2, OACK=1, XACK=1, X2ACK=0, DBGP=0, PFS=0, AS=(), KVSC=None, FUSE=1, STL=1, G0=0, NV=6, FP=(8, 16), CPL=(64, 64), QSC='', OSC='', XP=0, P5T=8, ODLY=0, XDLY=0, MK1=16, MKB=11, UNI=2, MKB1=99, DSPLIT=32,
    HT=(150, 200, 252),
)


def gen_mega(name, layer, k=None, **over):
    C = dict(DEF); C.update(over)
    FUSE = C["FUSE"]
    F1 = FUSE and layer == 1
    SS = C["SS"]

    def stamp_mid(k, idx):
        if SS and idx not in (0, 8): return
        if C["AS"] and idx not in (0, 1, 2, 15, 16, 17, 18): return
        if FUSE and layer != C["STL"] and idx not in ((15, 17, 18) if layer == 0 else (0, 1)): return
        common.stamp_mid(k, idx)
    if F1:
        k.name = name
        k(f"{name}:")
    else:
        k = Kernel(name)
        prologue(k, 256, (44, 15, None, "mm_l1" if FUSE else name + "_end", "pc", C["CPL"][0]) if C["CPF"] & 4 else None)
    QB = 20 if F1 else 10
    kvf = KVF if layer == 0 else KVF1
    mk, hf = (MK0, HF) if layer == 0 else (MK1, HF1)
    Q, O, SA, SB, P = 16, 48, 112, 128, 144
    NS = 160
    LDS = NS * 1024
    RES = 248
    if C["MAP"] == "H2":
        k("""
        s_bfe_u32 s4, s2, 0x20001
        s_lshl_b32 s4, s4, 6
        s_lshr_b32 s5, s2, 6
        s_lshl_b32 s5, s5, 4
        s_add_u32 s4, s4, s5
        s_and_b32 s5, s2, 1
        s_lshl_b32 s5, s5, 3
        s_add_u32 s4, s4, s5
        s_bfe_u32 s5, s2, 0x30003
        s_add_u32 s4, s4, s5
        """)
    else:
        k("""
        s_and_b32 s4, s2, 7
        s_lshl_b32 s4, s4, 5
        s_lshr_b32 s5, s2, 3
        s_add_u32 s4, s4, s5
        """)
    k(f"""
    s_lshr_b32 s5, s4, 2
    s_and_b32 s6, s4, 3
    s_lshl_b32 s6, s6, 3
    v_lshlrev_b32 v4, 4, v1
    v_and_b32 v2, 31, v1
    v_lshrrev_b32 v3, 5, v1
    s_lshl_b32 s8, s3, 16
    s_add_u32 s8, s8, {kvf}
    v_lshrrev_b32 v5, 3, v2
    v_lshlrev_b32 v5, 11, v5
    v_and_b32 v6, 7, v1
    v_add_u32 v6, s6, v6
    v_lshl_add_u32 v6, v3, 5, v6
    v_lshl_add_u32 v13, v6, 4, v5
    s_lshl_b32 s7, s5, 15
    s_lshl_b32 s14, s3, 13
    s_add_u32 s49, s7, s14
    s_add_u32 s49, s49, {mk + O_OFF}
    s_add_u32 s7, s7, {QF1 if F1 else QF}
    s_lshr_b32 s14, s2, 3
    s_and_b32 s14, s14, {15 if C["KVROT"] else 0}
    s_lshl_b32 s14, s14, 12
    s_add_u32 s9, s8, s14
    """)
    for jj in range(4):
        k(f"""
        s_add_u32 s14, s3, {jj}
        s_and_b32 s14, s14, 3
        s_lshl_b32 s14, s14, 13
        s_add_u32 s{QB+jj}, s7, s14
        """)
    stubs = []
    flag_ld = f"buffer_load_dword v252, v15, s[40:43], s36 offen{SC}"
    flag_ops = """v_cmp_eq_u32 vcc, 0, v252
    s_nop 0
    s_and_b32 s28, vcc_lo, 0xffff
    s_lshl_b32 s29, s28, 16
    s_or_b32 s28, s28, s29
    s_lshr_b32 s28, s28, s32"""
    if F1:
        k(f"""
        s_mov_b32 s36, {FLG}
        v_sub_u32 v15, 15, v1
        v_and_b32 v15, 0x40000000, v15
        v_lshl_add_u32 v15, v1, 7, v15
        s_mov_b32 s28, 0
        s_lshr_b32 s14, s4, 4
        s_add_u32 s14, s14, {C["G0"]}
        s_and_b32 s32, s14, 15
        s_lshl_b32 s9, s32, 14
        s_lshl_b32 s14, s3, 12
        s_add_u32 s9, s9, s14
        s_mov_b32 s33, s9
        s_lshr_b32 s37, s4, 4
        s_lshl_b32 s37, s37, 7
        s_add_u32 s37, s37, {FLG}
        """)
        ws_sub_srd(k, 24, KVF1, 64 * 4096)
    else:
        wait_ptrs(k)
        stamp_mid(k, 0)
    KS = 24 if F1 else 40
    NV = C["NV"]
    vm = VM(k)
    order = [1, 2, 3, 0]
    NRING = 4

    def ab(t):
        return 16 * (t % NRING)

    def ld_kv(t, parts=(0, 1, 2, 3)):
        if parts[0] == 0:
            if F1:
                if t: k("s_add_u32 s9, s9, 16384\ns_and_b32 s9, s9, 0x3ffff")
                if t >= NV:
                    lb = k.newlabel("tw")
                    k(f"s_bitcmp1_b32 s28, {t}\ns_cbranch_scc0 {lb}\n{lb}_b:")
                    stubs.append((lb, t))
            elif t: k(f"s_add_u32 s9, s9, 4096\ns_pack_lh_b32_b16 s9, s9, s8")
        for f in parts:
            vm.issue(f"buffer_load_dwordx4 a[{ab(t)+4*f}:{ab(t)+4*f+3}], v4, s[{KS}:{KS+3}], s9 offen offset:{f*1024}{SC if F1 and t < NV else ''}", ("k" if f < 2 else "v", t))

    def ld_q(jj):
        for h in range(2):
            vm.issue(f"buffer_load_dwordx4 v[{Q+8*jj+4*h}:{Q+8*jj+4*h+3}], v13, s[40:43], s{QB+jj} offen offset:{h*1024}{SC if F1 else ''}", ("q", jj))

    def first_loads():
        ld_kv(0, (0, 1))
        ld_q(1)
        ld_q(2)
        ld_kv(0, (2, 3))
        ld_q(3)
        ld_q(0)
        if not F1: ld_kv(1)
    if not F1: first_loads()
    steps = [(t, jj) for t in range(16) for jj in order]
    Sb = [SA, SB]

    def qk(s, half):
        t, jj = steps[s]
        S = Sb[s & 1]
        c = "0" if half == 0 else f"v[{S}:{S+15}]"
        return f"{MF} v[{S}:{S+15}], a[{ab(t)+4*half}:{ab(t)+4*half+3}], v[{Q+8*jj+4*half}:{Q+8*jj+4*half+3}], {c}"

    def pv(s, half):
        t, jj = steps[s]
        o = O + 16 * jj
        c = "0" if (t == 0 and half == 0) else f"v[{o}:{o+15}]"
        return f"{MF} v[{o}:{o+15}], a[{ab(t)+8+4*half}:{ab(t)+8+4*half+3}], v[{P+4*half}:{P+4*half+3}], {c}"

    def need_qk(s):
        t, jj = steps[s]
        if t >= 1:
            vm.wait(("v", t))
        vm.wait(("k", t)); vm.wait(("q", jj))
        if F1 and t == 0:
            ds = [dict(reg=f"v[{Q+8*jj+4*h}:{Q+8*jj+4*h+3}]", srd=40, base=QB + jj, off=h * 1024, voff=13, stmp=45) for h in range(2)]
            if s == 0: ds += kv_d(0, (0, 1))
            for o in chk_ops([d["reg"] for d in ds], (2, 254)): k(o)
            chk_branch(ds)
        if F1 and 1 <= t < NV and s % 4 == 0:
            ds = kv_d(t, (0, 1, 2, 3))
            for o in chk_ops([d["reg"] for d in ds], (2, 254)): k(o)
            chk_branch(ds)

    def kv_d(t, parts):
        return [dict(reg=f"a[{ab(t)+4*f}:{ab(t)+4*f+3}]", srd=24, base=33, off=f * 1024, stmp=45, tile=t, tmps=(2, 254)) for f in parts]

    for jj in range(1, 4):
        k(f"""
        s_add_u32 s14, s3, {jj}
        s_and_b32 s14, s14, 3
        s_mul_i32 s14, s14, {3*4096}
        s_add_u32 s14, s14, {(jj-1)*4096}
        v_add_u32 v{5+jj}, s14, v4
        s_xor_b32 s14, s3, {jj}
        s_mul_i32 s14, s14, {3*4096}
        s_add_u32 s14, s14, {(jj-1)*4096}
        v_add_u32 v{9+jj}, s14, v4
        """)
    k(f"""
    s_mul_i32 s14, s3, {3*4096}
    v_add_u32 v5, s14, v4
    """)
    srd(k, 68, P_WS, WS_USED)
    k(f"""
    s_and_b32 s14, s4, 15
    s_lshl_b32 s63, s3, 12
    s_mul_i32 s64, s14, {WGS*1024}
    s_add_u32 s64, s64, s63
    s_add_u32 s64, s64, {WGUF}
    s_add_u32 s63, s63, {48*1024}
    s_and_b32 s15, s14, 7
    s_cmp_lt_u32 s15, 7
    s_cselect_b32 s70, s70, 0
    s_lshr_b32 s44, s4, 4
    s_add_u32 s45, s44, s15
    s_and_b32 s44, s44, {3 if C["ROT"] else 0}
    s_lshl_b32 s57, s44, 15
    s_lshl_b32 s15, s15, 1
    s_and_b32 s67, s3, 1
    s_add_u32 s67, s67, s15
    s_xor_b32 s65, s67, 1
    s_lshl_b32 s46, s67, 15
    s_lshl_b32 s47, s65, 15
    s_lshl_b32 s15, s3, 13
    s_add_u32 s44, s15, {WOF}
    s_add_u32 s46, s46, s44
    s_add_u32 s47, s47, s44
    s_mul_i32 s62, s67, {112*1024}
    s_mul_i32 s65, s65, {112*1024}
    s_mul_i32 s48, s3, {28*1024}
    s_add_u32 s7, s48, {WDF}
    s_add_u32 s62, s62, s7
    s_add_u32 s65, s65, s7
    s_lshr_b32 s44, s4, 4
    s_lshl_b32 s44, s44, 2
    s_add_u32 s6, s44, s3
    s_mul_i32 s5, s6, {28*1024}
    s_add_u32 s5, s5, {mk + X1_OFF}
    s_lshl_b32 s7, s6, 12
    s_add_u32 s7, s7, {mk + ST_OFF}
    s_mul_i32 s6, s6, 112
    s_mul_i32 s13, s14, 7
    s_add_u32 s6, s6, s13
    s_lshl_b32 s6, s6, 10
    s_add_u32 s6, s6, {hf}
    s_lshr_b32 s13, s14, 3
    s_lshl_b32 s13, s13, 1
    s_add_u32 s44, s44, s13
    s_lshr_b32 s13, s3, 1
    s_add_u32 s66, s44, s13
    s_xor_b32 s11, s66, 1
    s_lshl_b32 s50, s66, 15
    s_lshl_b32 s51, s11, 15
    s_add_u32 s15, s15, {mk + O_OFF}
    s_add_u32 s50, s50, s15
    s_add_u32 s51, s51, s15
    s_mul_i32 s10, s66, {112*1024}
    s_mul_i32 s11, s11, {112*1024}
    s_add_u32 s48, s48, {hf}
    s_add_u32 s10, s10, s48
    s_add_u32 s11, s11, s48
    s_mul_i32 s12, s66, 28
    s_lshl_b32 s13, s67, 1
    s_add_u32 s12, s12, s13
    s_lshl_b32 s12, s12, 10
    s_lshl_b32 s56, s66, 12
    s_lshr_b32 s13, s67, 2
    s_lshl_b32 s13, s13, 10
    s_add_u32 s56, s56, s13
    s_bfe_u32 s13, s67, 0x10001
    s_lshl_b32 s13, s13, 9
    s_add_u32 s56, s56, s13
    s_and_b32 s13, s67, 1
    s_lshl_b32 s13, s13, 3
    s_add_u32 s56, s56, s13
    s_add_u32 s56, s56, {mk + ST_OFF}
    s_mov_b32 s13, {BUDGET}
    s_mov_b32 s61, 0xffff0000
    v_mov_b32 v{RES}, -1
    v_mov_b32 v{RES+1}, -1
    v_mov_b32 v{RES+2}, -1
    v_mov_b32 v{RES+3}, -1
    """)
    for g in range(4):
        k(f"""
        s_add_u32 s14, s45, {g}
        s_and_b32 s14, s14, 3
        s_mul_i32 s{52+g}, s14, {7168 if C["ROT"] else 0}
        """)
        if not C["ROT"]: k(f"s_mov_b32 s{52+g}, {7168*g}")
    if layer == 0:
        k(f"""
        s_lshl_b32 s14, s66, 5
        v_add_u32 v14, s14, v2
        v_mul_u32_u24 v14, 896, v14
        v_lshl_add_u32 v14, v3, 3, v14
        s_min_u32 s58, s67, 13
        s_lshl_b32 s58, s58, 6
        """)
    if layer == 0 and C["CPF"] & 8:
        cpf_ld = code_pf(k, 20, 9, *(("mm_l1", "mm_kernel_end") if FUSE else ("mb_kernel", "mb_kernel_end")), "pc2", C["CPL"][1], 252)
    k(f"""
    s_mov_b32 s14, {f2h(2.0**-60)}
    s_mov_b32 s15, {f2h(2.0**60)}
    """)

    def wdreg(u):
        return f"a[{64+4*u}:{67+4*u}]" if u < 48 else f"v[{216+4*(u-48)}:{219+4*(u-48)}]"

    def woreg(a, kk):
        i = a * 8 + kk
        return f"v[{152+4*i}:{155+4*i}]"

    pf = []
    for i in range(28):
        q = i & 3
        pre = ""
        if q == 0:
            pre = (f"s_add_u32 s57, s57, 16384\ns_cmp_eq_u32 s57, {7*16384}\ns_cselect_b32 s57, 0, s57\n" if i else "") \
                + "s_add_u32 m0, s63, s57\ns_add_u32 s48, s64, s57"
        pf.append((pre, f"buffer_load_dwordx4 v4, s[40:43], s48 offen offset:{q*1024} lds", ("w", 6)))
    for u in range(56):
        a, kbl = divmod(u, 28)
        g, c = divmod(kbl, 7)
        pre = f"s_add_u32 s48, s{62 if a == 0 else 65}, s{52+g}" if c == 0 else ("s_add_u32 s48, s48, 4096" if c == 4 else "")
        pf.append((pre, f"buffer_load_dwordx4 {wdreg(u)}, v4, s[68:71], s48 offen offset:{(c%4)*1024}", "wd"))
    for a in range(2):
        for kk in range(8):
            pre = f"s_add_u32 s48, s{46+a}, 4096" if kk == 4 else ""
            pf.append((pre, f"buffer_load_dwordx4 {woreg(a, kk)}, v4, s[68:71], s{46+a if kk < 4 else 48} offen offset:{(kk%4)*1024}", "wo"))
    late = []
    for u in range(56 - C["WD1"] - C["WD2"], 56):
        a, kbl = divmod(u, 28)
        g, c = divmod(kbl, 7)
        first = u in (56 - C["WD1"] - C["WD2"], 56 - C["WD2"])
        pre = ""
        if c in (0, 4) or first:
            pre = f"s_add_u32 s48, s{62 if a == 0 else 65}, s{52+g}" + ("\ns_add_u32 s48, s48, 4096" if c >= 4 else "")
        late.append((pre, pf[28 + u][1], "wd"))
    del pf[28 + 56 - len(late): 28 + 56]
    if F1 or (layer == 1 and C["XP"] & 1): pf = [x for x in pf if x[2] != "wd"]; late = []
    if layer == 1 and C["XP"] & 2: pf = [x for x in pf if x[2] != "wo"]
    if layer == 1 and C["XP"] & 4: pf = [x for i, x in enumerate(pf) if x[2] != ("w", 6) or i >= 24]
    fills = []
    if layer == 0 and C["CPF"] & 8:
        fills.append(("", cpf_ld, "cpf"))
    for ct in range(7):
        fills.append((f"s_add_u32 s44, s6, {ct*1024}", f"buffer_store_dwordx4 v[{RES}:{RES+3}], v4, s[40:43], s44 offen{SC}", "fill"))
    if layer == 0:
        for h in range(2):
            fills.append((f"s_add_u32 s44, s12, {X2F + h*1024}", f"buffer_store_dwordx4 v[{RES}:{RES+3}], v4, s[68:71], s44 offen{SC}", "fill"))
        resl = [("", f"buffer_load_dwordx2 v[{RES+2*q}:{RES+2*q+1}], v14, s[52:55], s58 offen offset:{q*16}", "res") for q in range(4)]
    else:
        resl = [(f"s_add_u32 s44, s12, {X2F}" if h == 0 else "", f"buffer_load_dwordx4 v[{RES+4*h}:{RES+4*h+3}], v4, s[68:71], s44 offen offset:{h*1024}{SC if F1 else ''}", "res") for h in range(2)]
    staged = [None]

    def hstore(V, text, tag, bit):
        if V: V.issue(text + SC, tag)
        else: k(text + SC)
        if C["DUAL"] >> bit & 1:
            if V: V.issue(text, tag)
            else: k(text)
            return 2
        return 0

    def prep():
        if pf and pf[0][0]:
            k(pf[0][0]); pf[0] = ("",) + pf[0][1:]

    def side(lst):
        if not lst: return
        p, ins, tag = lst.pop(0)
        k(p); vm.issue(ins, tag)

    def lds_wr(jj):
        o = O + 16 * jj
        return [f"ds_write_b128 v{5+jj}, v[{o+4*q}:{o+4*q+3}] offset:{q*1024}" for q in range(4)]

    def chk_ops(regs, tm=(2, 7)):
        o = []
        for i, r in enumerate(regs):
            kind, b = r[0], int(r[2:r.index(":")])
            if kind == "a":
                o += [f"v_accvgpr_read_b32 v{tm[0]}, a{b}", f"v_accvgpr_read_b32 v{tm[1]}, a{b+2}"]
                p, q = f"v{tm[0]}", f"v{tm[1]}"
            else:
                p, q = f"v{b}", f"v{b+2}"
            o.append(f"v_max_u32 v3, {p}, {q}" if i == 0 else f"v_max3_u32 v3, {p}, {q}, v3")
        o.append("v_cmp_eq_u32 vcc, -1, v3")
        return o

    def ld_text(d, sreg, imm):
        t = f"buffer_load_dwordx4 {d['reg']}, v{d.get('voff', 4)}, s[{d['srd']}:{d['srd']+3}], s{sreg} offen offset:{imm}{SC}"
        return t

    def base_add(d, sreg):
        if "tile" in d:
            return f"s_add_u32 s{sreg}, s33, {d['tile'] * 16384 + d['off']}\ns_and_b32 s{sreg}, s{sreg}, 0x3ffff"
        if d.get("blk") is None:
            return f"s_add_u32 s{sreg}, s{d['base']}, {d['off']}"
        t = f"s_add_u32 s{sreg}, s{d['base']}, s{52+d['blk']}"
        return t + (f"\ns_add_u32 s{sreg}, s{sreg}, {d['off']}" if d["off"] else "")

    def spin(lb, ds, back, inline=False, more=()):
        mk_ = "" if inline else " ; retry"
        k(f"{lb}:")
        prev = None
        for d in list(ds) + list(more):
            if prev and prev[0] == (d["base"], d.get("blk")) and prev[1] <= d["off"] <= prev[1] + 3072:
                imm = d["off"] - prev[1]
            else:
                k(base_add(d, d.get("stmp", 15))); prev = ((d["base"], d.get("blk")), d["off"]); imm = 0
            if d.get("lo"): k("s_mov_b32 exec_hi, 0")
            k(ld_text(d, d.get("stmp", 15), imm) + mk_)
            if d.get("lo"): k("s_mov_b32 exec_hi, -1")
        k(f"s_sub_i32 s13, s13, 1\ns_cmp_lt_i32 s13, 0\ns_waitcnt vmcnt({len(more)}){mk_}")
        for o in chk_ops([d["reg"] for d in ds], ds[-1].get("tmps", (2, 7))): k(o + mk_)
        k(f"s_cbranch_scc1 {back}{mk_}\ns_cbranch_vccnz {lb}{mk_}")

    def chk_branch(ds):
        lb = k.newlabel("st")
        k(f"s_cbranch_vccnz {lb}\n{lb}_b:")
        stubs.append((lb, ds))

    def raise_flag(tg):
        lb = k.newlabel("nf")
        k(f"""
        s_cmp_lg_u32 s3, 0
        s_cbranch_scc1 {lb}{tg}
        v_readfirstlane_b32 s29, v253{tg}
        s_nop 0
        s_cmp_lg_u32 s29, 15
        s_cbranch_scc1 {lb}{tg}
        s_mov_b64 exec, 1
        buffer_store_dword v14, v14, s[40:43], s37 offen{SC}{tg}
        v_mov_b32 v253, 0{tg}
        s_mov_b64 exec, -1
        {lb}:
        """)
    if F1:
        k(f"""
        s_waitcnt vmcnt(0)
        s_barrier
        s_cmp_lg_u32 s3, 0
        s_cbranch_scc1 {name}_nf
        v_mov_b32 v14, 0
        v_mov_b32 v253, 1
        s_mov_b64 exec, 1
        buffer_atomic_add v253, v14, s[40:43], s37 offen offset:2048 sc0{SC}
        s_mov_b64 exec, -1
        {name}_nf:
        """)
        stamp_mid(k, 0)
        first_loads()
    prep()
    need_qk(0)
    if F1: raise_flag("")
    stamp_mid(k, 1)
    k(qk(0, 0))
    ld_kv(1 if F1 else 2, (0, 1))
    k(qk(0, 1))
    ld_kv(1 if F1 else 2, (2, 3))
    k("s_nop 7")
    n = len(steps)
    nb = [1]
    for s in range(n):
        t, jj = steps[s]
        if s in C["AS"] and (not FUSE or layer == C["STL"]): common.stamp_mid(k, 3 + list(C["AS"]).index(s))
        S = Sb[s & 1]
        e = lambda i: f"v_exp_f32 v{S+i}, v{S+i}"
        c = lambda d: f"v_cvt_pk_bf16_f32 v{P+d}, v{S+2*d}, v{S+2*d+1}"
        if s + 1 < n:
            need_qk(s + 1)
            k(qk(s + 1, 0))
        if F1 and s < 8:
            if s < 4: ld_kv(2, (s,))
            else: ld_kv(3 + ((s - 4) >> 1), (2 * (s & 1), 2 * (s & 1) + 1))
        elif t + 3 < 16:
            ld_kv(t + 3, ((s & 3),))
        else:
            side(pf)
        for i in range(4): k(e(i))
        if s > 0:
            k(pv(s - 1, 1))
        if not F1 or s >= C["PFS"]: side(pf)
        for i in range(4, 8): k(e(i))
        if s + 1 < n:
            k(qk(s + 1, 1))
        prep()
        for d in range(4): k(c(d))
        for i in range(8, 11): k(e(i))
        vm.wait(("v", t))
        if F1 and s == 0:
            ds = kv_d(0, (2, 3))
            for o in chk_ops([d["reg"] for d in ds], (2, 254)): k(o)
            chk_branch(ds)
        if F1 and s - 3 in C["FP"]:
            vm.wait(("flag", s - 3)); k(flag_ops)
        k(pv(s, 0))
        if F1 and s in C["FP"]:
            vm.issue(flag_ld, ("flag", s))
        if fills and s % C["FE"] == 0:
            side(fills)
        elif len(pf) > (n - 1 - s) + min(12, n - 1 - s) and s >= nb[0]:
            side(pf); nb[0] = s + C["BGAP"]
        extra = []
        if t == 15 and s & 3 >= 2:
            extra = lds_wr(order[(s & 3) - 2])
        if s == n - 1:
            extra = extra + lds_wr(3)
        for i in range(11, 16):
            k(e(i))
            if extra: k(extra.pop(0))
        for d in range(4, 8):
            k(c(d))
            if extra: k(extra.pop(0))
    assert not pf and not fills, (len(pf), len(fills))
    stamp_mid(k, 2)
    k(pv(n - 1, 1))
    if layer == 0:
        srd(k, 44, P_X, XBYTES)
        resl = [(p, i.replace("s[52:55]", "s[44:47]"), t) for p, i, t in resl]
    while resl: side(resl)
    k("s_waitcnt lgkmcnt(0)\ns_barrier")
    stamp_mid(k, 3)
    R = 64
    for j in range(3):
        for q in range(4):
            r = R + 16 * j + 4 * q
            k(f"ds_read_b128 v[{r}:{r+3}], v5 offset:{j*4096+q*1024}")
    for j in range(3):
        k(f"s_waitcnt lgkmcnt({8-4*j})")
        for r in ([12] + [x for x in range(0, 16, 2) if x != 12] if j == 2 else range(0, 16, 2)):
            k(f"v_pk_add_f32 v[{O+r}:{O+r+1}], v[{O+r}:{O+r+1}], v[{R+16*j+r}:{R+16*j+r+1}]")
            if j == 2 and r == 12:
                k(f"v_mov_b32 v9, v{O+12}\nv_mov_b32 v8, v{O+12}")
            if j == 2 and r == 2:
                k("v_permlane32_swap_b32 v9, v8")
            if j == 2 and r == 4:
                k("v_rcp_f32 v9, v8\nv_cmp_nle_f32 vcc, s14, v8\nv_cmp_nge_f32 s[46:47], s15, v8")
            if j == 2 and r == 10:
                k("s_or_b64 vcc, vcc, s[46:47]")
    FB, NORM = k.name + "_fb", k.name + "_norm"
    k(f"""
    s_cbranch_vccnz {FB}
    {NORM}:
    """)
    for h in range(2):
        for r in range(8 * h, 8 * h + 8, 2):
            k(f"v_pk_mul_f32 v[{O+r}:{O+r+1}], v[{O+r}:{O+r+1}], v[8:9] op_sel:[0,1] op_sel_hi:[1,1]")
        for d in range(4 * h, 4 * h + 4):
            k(f"v_cvt_pk_bf16_f32 v{P+d}, v{O+2*d}, v{O+2*d+1}")
        hstore(vm, f"buffer_store_dwordx4 v[{P+4*h}:{P+4*h+3}], v13, s[40:43], s49 offen offset:{h*1024}", "ost", 0)
    stamp_mid(k, 4)
    def reduce3(A, R, rb, extra=None):
        k("s_waitcnt lgkmcnt(0)\ns_barrier")
        if extra: extra(0)
        R = R if isinstance(R, list) else [R, R + 16, R + 32]
        for j in range(3):
            for q in range(4):
                r = R[j] + 4 * q
                k(f"ds_read_b128 v[{r}:{r+3}], v{rb} offset:{j*4096+q*1024}")
        if extra: extra(1)
        for j in range(3):
            k(f"s_waitcnt lgkmcnt({8-4*j})")
            for r in range(0, 16, 2):
                k(f"v_pk_add_f32 v[{A+r}:{A+r+1}], v[{A+r}:{A+r+1}], v[{R[j]+r}:{R[j]+r+1}]")

    def mark_next(first, cnt, batch=99):
        k(f"""
        s_lshr_b32 s9, s4, 3
        s_lshl_b32 s9, s9, 2
        s_add_u32 s9, s9, s3
        s_lshl_b32 s9, s9, 15
        s_add_u32 s9, s9, {MK1 + first*1024}
        v_mov_b32 v16, -1
        v_mov_b32 v17, -1
        v_mov_b32 v18, -1
        v_mov_b32 v19, -1
        """)
        for i in range(cnt):
            if i and i % 4 == 0: k("s_add_u32 s9, s9, 4096")
            if i and i % batch == 0: k("s_waitcnt vmcnt(0)")
            k(f"buffer_store_dwordx4 v[16:19], v4, s[40:43], s9 offen offset:{(i%4)*1024}{SC}")

    NOR1, XJOIN = k.name + "_nor1", k.name + "_xjoin"
    AO = [80, 96, 112, 128]
    UNI = C["UNI"]
    OS = 68 if UNI == 1 else 40
    k("s_barrier" if UNI else f"s_barrier\ns_cmp_eq_u32 s70, 0\ns_cbranch_scc1 {NOR1}")
    vm.wait("res")
    for d in range(8):
        k(f"v_lshlrev_b32 v{AO[0]+2*d}, 16, v{RES+d}")
        k(f"v_and_b32 v{AO[0]+2*d+1}, s61, v{RES+d}")

    def o_d(b, kk):
        i = 2 * kk + b
        return dict(reg=f"v[{16+4*i}:{19+4*i}]", srd=OS, base=50 + b, off=kk * 1024)
    for _ in range(C["WD1"]): side(late)
    if C["OACK"]: vm.wait("ost")
    for _ in range(C["ODLY"]): k("s_nop 15")
    stamp_mid(k, 5)
    pl = k.newlabel("pr")
    od = [[o_d(b, kk) for kk in range(8)] for b in (1, 0)]
    spin(pl, od[0], pl + "_b", True, od[1])
    k(f"{pl}_b:")
    stamp_mid(k, 6)
    seq = []
    for s in (3, 2, 1, 0): seq += [(s, kk) for kk in range(8)]
    owr = {8 * (4 - s) + 1 + 2 * q: [(s, q)] for s in (1, 2, 3) for q in range(4)}
    for idx, (slot, kk) in enumerate(seq):
        if idx == 0: vm.done = len(vm.tags); n0 = len(vm.tags)
        if idx == 11:
            k(f"s_waitcnt vmcnt({len(vm.tags) - n0})")
        if 11 <= idx <= 13:
            for o in chk_ops([d["reg"] for d in od[1]])[3 * (idx - 11): 3 * (idx - 11) + 3]: k(o)
        if idx == 16:
            chk_branch(od[1])
            if C["DBGP"] & 2: stamp_mid(k, 0)
        a = AO[slot]
        c = "0" if (kk == 0 and slot) else f"v[{a}:{a+15}]"
        k(f"{MF} v[{a}:{a+15}], {woreg(slot & 1, kk)}, {o_d(slot >> 1, kk)['reg']}, {c}")
        if idx >= C["WD2S"] and late:
            side(late)
            if len(late) > 28 - idx: side(late)
        for s, q in owr.get(idx, []):
            k(f"ds_write_b128 v{9+s}, v[{AO[s]+4*q}:{AO[s]+4*q+3}] offset:{q*1024}")
    assert not late
    if C["DBGP"] & 2: stamp_mid(k, 1)
    k(f"s_add_u32 s9, s12, {mk + X1_OFF}")
    if UNI == 2:
        k(f"""
        s_lshr_b32 s15, s4, 3
        s_lshl_b32 s15, s15, 2
        s_add_u32 s15, s15, s3
        s_lshl_b32 s15, s15, 12
        s_add_u32 s15, s15, {DUMMY}
        s_cmp_eq_u32 s70, 0
        s_cselect_b32 s9, s15, s9
        s_add_u32 s15, s15, 2048
        s_cmp_eq_u32 s70, 0
        s_cselect_b32 s56, s15, s56
        """)
    reduce3(AO[0], 16, 5, (lambda ph: stamp_mid(k, 3) if ph == 0 else None) if C["DBGP"] & 2 else None)
    for h in range(2):
        for d in range(4 * h, 4 * h + 4):
            k(f"v_cvt_pk_bf16_f32 v{RES+d}, v{AO[0]+2*d}, v{AO[0]+2*d+1}")
        hstore(vm, f"buffer_store_dwordx4 v[{RES+4*h}:{RES+4*h+3}], v4, s[{OS}:{OS+3}], s9 offen offset:{h*1024}", "xst", 1)
    def row_stats(A, T, soff, V):
        pr = lambda i: f"v[{A+2*i}:{A+2*i+1}]"
        k(f"v_pk_add_f32 v[{T}:{T+1}], {pr(0)}, {pr(1)}")
        k(f"v_pk_mul_f32 v[{T+2}:{T+3}], {pr(0)}, {pr(0)}")
        k(f"v_pk_fma_f32 v[{T+2}:{T+3}], {pr(1)}, {pr(1)}, v[{T+2}:{T+3}]")
        for i in range(2, 8):
            k(f"v_pk_add_f32 v[{T}:{T+1}], v[{T}:{T+1}], {pr(i)}")
            k(f"v_pk_fma_f32 v[{T+2}:{T+3}], {pr(i)}, {pr(i)}, v[{T+2}:{T+3}]")
        k(f"""
        v_add_f32 v{T}, v{T}, v{T+1}
        v_add_f32 v{T+1}, v{T+2}, v{T+3}
        v_mov_b32 v{T+2}, v{T}
        v_mov_b32 v{T+3}, v{T+1}
        s_nop 0
        v_permlane32_swap_b32 v{T}, v{T+2}
        v_permlane32_swap_b32 v{T+1}, v{T+3}
        s_mov_b32 exec_hi, 0
        v_pk_add_f32 v[{T}:{T+1}], v[{T}:{T+1}], v[{T+2}:{T+3}]
        """)
        t = f"buffer_store_dwordx2 v[{T}:{T+1}], v4, s[{OS}:{OS+3}], s{soff} offen{SC}"
        if V: V.issue(t, "sst")
        else: k(t)
        k("s_mov_b32 exec_hi, -1")
    if C["DBGP"] & 2: stamp_mid(k, 4)
    row_stats(AO[0], 6, 56, vm)
    k(f"{XJOIN}:\ns_barrier")
    stamp_mid(k, 7)
    w_next = [28]

    def ld_w():
        i = w_next[0]; w_next[0] += 1
        G, q = i >> 2, i & 3
        if q == 0:
            off = (16 * G + 48) % NS - 48
            k(f"s_{'add' if off >= 0 else 'sub'}_u32 m0, s63, {abs(off)*1024}\ns_add_u32 s48, s64, {16*G*1024}")
        vm.issue(f"buffer_load_dwordx4 v4, s[40:43], s48 offen offset:{q*1024} lds", ("w", G))
        return 2 + 2 * (q == 0)
    for _ in range(C['W_PRE']): ld_w()
    A4, WR, HP, MB, R2 = 16, 128, 160, 168, 172
    k(f"""
    v_add_u32 v5, 0x10000, v4
    v_add_u32 v6, 0x20000, v4
    v_mov_b32 v{HP+12}, 0
    v_mov_b32 v{HP+13}, 0
    v_mov_b32 v{HP+14}, 0
    v_mov_b32 v{HP+15}, 0
    """)
    R5B = 96 * 1024
    if layer == 0:
        k(f"""
        s_mul_i32 s50, s67, {28*1024}
        s_xor_b32 s51, s67, 1
        s_mul_i32 s51, s51, {28*1024}
        s_mul_i32 s15, s3, {7*1024}
        s_add_u32 s15, s15, {WQF}
        s_add_u32 s50, s50, s15
        s_add_u32 s51, s51, s15
        s_lshl_b32 s60, s67, 7
        s_add_u32 s60, s60, {CSQ}
        s_mul_i32 s59, s3, {14*1024}
        s_cmp_eq_u32 s3, 3
        s_cselect_b32 s59, {144*1024}, s59
        """)
    cur = {}

    def stream_ld(d, tag):
        t = d["tmp"]
        c = cur.get(t)
        n = 2
        key = (d["base"], d.get("blk"))
        if not (c and c[0] == key and c[1] <= d["off"] <= c[1] + 3072):
            x = base_add(d, t)
            k(x); n += x.count("\n") + 1
            cur[t] = c = (key, d["off"])
        if d.get("lo"): k("s_mov_b32 exec_hi, 0")
        vm.issue(ld_text(d, t, d["off"] - c[1]), tag)
        if d.get("lo"): k("s_mov_b32 exec_hi, -1"); n += 2
        return n

    lg = LG()
    NR, RA = 8, 6
    A5 = [64, 96, 80, 112]

    def xreg(kb):
        if kb == 28: return f"v[{MB}:{MB+3}]"
        i = KO.index(kb)
        if i < 10: return f"v[{176+4*i}:{179+4*i}]"
        if i < 12: return f"v[{8+4*(i-10)}:{11+4*(i-10)}]"
        return f"a[{4*(i-12)}:{4*(i-12)+3}]"

    def x_d(kb):
        return dict(reg=xreg(kb), srd=40, base=5, off=kb * 1024, tmp=44)

    kbo = [7 * g + c for g in range(4) for c in range(3)] + [7 * g + c for g in range(4) for c in (3, 4)] + [7 * g + c for g in range(4) for c in (5, 6)]
    p5 = []
    for i in range(4): p5 += [(0, i), (2, i)]
    for i in range(4): p5 += [(1, i), (3, i)]
    TL = C["P5T"]
    for i in range(4, 28 - TL):
        p5 += [(0, i), (2, i), (1, i), (3, i)]
    for sl in (3, 2, 1, 0):
        p5 += [(sl, i) for i in range(28 - TL, 28)]
    wr_at = {}
    for j, sl in enumerate((3, 2, 1)):
        e = 112 - (3 - j) * TL
        for q in range(4):
            wr_at.setdefault(min(e + 1 + q * max(1, (TL - 1) // 4 + 1), 111), []).append((sl, q))
    assert len(p5) == 112
    NT = N4 + 112
    land = [(f"v[{16+4*i}:{19+4*i}]", 110) for i in range(12)] \
        + [(xreg(kb), 146 + 2 * kb) for kb in range(28)] + [(f"v[{128+4*i}:{131+4*i}]", N4) for i in range(8)] \
        + [(f"v[{16+4*i}:{19+4*i}]", N4 + 16) for i in range(8)]
    assert len(land) == 56
    h_use = {}
    for s, (slot, i) in enumerate(p5):
        h_use.setdefault(2 * i + (slot >> 1), N4 + s)
    h_ord = sorted(range(56), key=lambda hi: h_use[hi])
    h_pos = {hi: p for p, hi in enumerate(h_ord)}

    def h_d(hi):
        i, b = hi >> 1, hi & 1
        g, c = divmod(kbo[i], 7)
        return dict(reg=land[h_pos[hi]][0], srd=68, base=10 + b, blk=g, off=c * 1024, tmp=44 + b)

    st_d = [dict(reg=f"v[{HP+4*q}:{HP+4*q+3}]", srd=40, base=7, off=q * 1024, tmp=14, lo=(q == 3)) for q in range(4)]

    items = []
    LEAD = C["LEAD"]
    XB = 4 + C["X_BURST"]
    for i in range(XB, 28):
        items.append((3 * i - LEAD, -1, 3 * (i & ~1) - 5, (lambda i=i: stream_ld(x_d(KO[i]), ("x", i)))))
    for q in range(4):
        items.append((60 - LEAD, -1, 57, (lambda q=q: stream_ld(st_d[q], "st"))))
    bars = sorted(C["BARS"])
    assert 48 <= bars[0] and 152 <= bars[-1] <= 160 - RA
    assert len(bars) == 3 and bars[1] <= 112 - RA
    for i in range(w_next[0], 40):
        items.append((bars[1] - LEAD + i * 0.01, -1, bars[1] - 4, ld_w))
    for i in range(40, 52):
        items.append((bars[-1] - LEAD - 10 + i * 0.01, bars[0], bars[-1] - 4, ld_w))
    for p, hi in enumerate(h_ord):
        part = 0 if hi < 24 else (1 if hi < 40 else 2)
        u0 = h_use[h_ord[p & ~1]]
        items.append((u0 - LEAD + p * 0.001, max(C["HT"][part], land[p][1]), u0 - 5, (lambda hi=hi, p=p: stream_ld(h_d(hi), ("h", p >> 1)))))
    CS = 160

    def p1b_prefetch(V):
        o = []
        for a in range(2):
            for kbl in range(7):
                def f(a=a, kbl=kbl):
                    if kbl % 4 == 0:
                        k(f"s_add_u32 m0, s59, {(a*7+kbl)*1024}\ns_add_u32 s48, s{50+a}, {kbl*1024}")
                    V.issue(f"buffer_load_dwordx4 v4, s[40:43], s48 offen offset:{(kbl%4)*1024} lds", "wq")
                    return 2 + 2 * (kbl % 4 == 0)
                o.append(f)
        return o

    def cs_prefetch(V):
        k(f"v_lshrrev_b32 v0, 5, v1\nv_lshlrev_b32 v0, 4, v0")
        for q in range(4):
            V.issue(f"buffer_load_dwordx4 v[{CS+4*q}:{CS+4*q+3}], v0, s[40:43], s60 offen offset:{q*32}", "wq")
        return 10
    if layer == 0:
        for f in p1b_prefetch(vm):
            items.append((NT + 10, bars[-1], NT + 10, f))
        items.append((NT + 11, N4 + 10, NT + 11, lambda: cs_prefetch(vm)))
    items.sort(key=lambda t: t[0])
    queue = list(items)

    def issue_next(n):
        for idx, it in enumerate(queue):
            if it[1] <= n:
                queue.pop(idx); return it[3]()
        return 0

    def force(n):
        c = 0
        while any(it[2] <= n for it in queue):
            c += issue_next(n)
        return c

    def rd(f):
        slot = ((f + 48) % NS) * 1024
        base = [4, 5, 6][slot >> 16]
        r = WR + 4 * (f % NR)
        lg.issue(("w", f))
        k(f"ds_read_b128 v[{r}:{r+3}], v{base} offset:{slot & 0xffff}")

    fill = []
    vfill = []

    def epi_ops(ct, V, gaps=3, pk=False):
        a = A4 + 16 * ct
        hp = HP + 4 * (ct & 1)
        o = ["GAP"] * gaps
        if C["NOPK"] and not pk:
            for d in range(4):
                for r in (2 * d, 2 * d + 1):
                    o.append(f"v_mul_f32 v{a+r}, v{a+r}, v{a+8+r}")
                for r in (2 * d, 2 * d + 1):
                    o.append(f"v_mul_f32 v{a+r}, v{R2}, v{a+r}")
                o.append(f"v_cvt_pk_bf16_f32 v{hp+d}, v{a+2*d}, v{a+2*d+1}")
        else:
            for r in range(0, 8, 2):
                o.append(f"v_pk_mul_f32 v[{a+r}:{a+r+1}], v[{a+r}:{a+r+1}], v[{a+8+r}:{a+9+r}]")
            for r in range(0, 8, 2):
                o.append(f"v_pk_mul_f32 v[{a+r}:{a+r+1}], v[{a+r}:{a+r+1}], v[{R2}:{R2+1}]")
            for d in range(4):
                o.append(f"v_cvt_pk_bf16_f32 v{hp+d}, v{a+2*d}, v{a+2*d+1}")

        def st():
            k(f"s_add_u32 s14, s6, {ct*1024}")
            cur.pop(14, None)
            return 3 + hstore(V, f"buffer_store_dwordx4 v[{hp}:{hp+3}], v4, s[40:43], s14 offen", ("hst", ct), 2)
        o.append(st)
        return o

    def run(lst, room):
        used = 0
        while lst and used < room:
            f = lst.pop(0)
            if f == "GAP":
                break
            if callable(f): used += f() or 0
            else:
                k(f); used += f.count("\n") + 1
        return used

    def add_val(tag, ds):
        def w():
            s_ = vm.waitstr(tag)
            if s_: k(s_)
            return 1 if s_ else 0

        def b():
            chk_branch(ds); done_val.add(tag); return 1
        vfill.extend([w] + chk_ops([d["reg"] for d in ds]) + ["GAP", b])

    T0 = HP + 4
    stat_ops = [f"v_pk_add_f32 v[{HP+4*q}:{HP+4*q+1}], v[{HP+4*q}:{HP+4*q+1}], v[{HP+4*q+2}:{HP+4*q+3}]" for q in range(4)] + [
        f"v_pk_add_f32 v[{HP}:{HP+1}], v[{HP}:{HP+1}], v[{HP+4}:{HP+5}]",
        f"v_pk_add_f32 v[{HP+8}:{HP+9}], v[{HP+8}:{HP+9}], v[{HP+12}:{HP+13}]",
        f"v_pk_add_f32 v[{HP}:{HP+1}], v[{HP}:{HP+1}], v[{HP+8}:{HP+9}]",
        f"v_mov_b32 v{T0}, v{HP}", f"v_mov_b32 v{T0+1}, v{HP+1}", "GAP",
        f"v_permlane32_swap_b32 v{HP}, v{T0}", f"v_permlane32_swap_b32 v{HP+1}, v{T0+1}",
        f"v_pk_add_f32 v[{HP}:{HP+1}], v[{HP}:{HP+1}], v[{T0}:{T0+1}]",
        f"v_mul_f32 v{HP}, {f2h(-1.0/448)}, v{HP}",
        f"v_mul_f32 v{HP+1}, {f2h(1.0/448)}, v{HP+1}",
        f"v_fma_f32 v{HP+1}, -v{HP}, v{HP}, v{HP+1}",
        f"v_max_f32 v{HP+1}, 0, v{HP+1}",
        f"v_add_f32 v{HP+1}, {f2h(1e-5)}, v{HP+1}",
        f"v_rcp_f32 v{R2}, v{HP+1}",
        f"v_cvt_pk_bf16_f32 v{MB}, v{HP}, v{HP}",
        f"v_lshlrev_b32 v{T0}, 16, v{MB}",
        f"v_sub_f32 v{T0}, v{HP}, v{T0}",
        f"v_mov_b32 v{R2+1}, v{R2}",
        f"s_mov_b32 exec_lo, 0\nv_cvt_pk_bf16_f32 v{MB}, v{T0}, v{T0}\ns_mov_b32 exec_lo, -1",
        f"v_mov_b32 v{MB+1}, v{MB}", f"v_mov_b32 v{MB+2}, v{MB}", f"v_mov_b32 v{MB+3}, v{MB}",
    ]

    if C["NOPK"]:
        import re
        so = []
        for o in stat_ops:
            m = re.match(r"v_pk_add_f32 v\[(\d+):\d+\], v\[(\d+):\d+\], v\[(\d+):\d+\]", o)
            if m:
                d, x, y = map(int, m.groups())
                so += [f"v_add_f32 v{d}, v{x}, v{y}", f"v_add_f32 v{d+1}, v{x+1}, v{y+1}"]
            else: so.append(o)
        stat_ops = so
    if C["XACK"]: vm.wait("xst" if C["XACK"] == 1 else "sst")
    for _ in range(C["XDLY"]): k("s_nop 15")
    stamp_mid(k, 9)
    pl = k.newlabel("pr")
    for f in range(RA): rd(f)
    spin(pl, [x_d(kb) for kb in KO[:4]], pl + "_b", True, [x_d(kb) for kb in KO[4:XB]])
    k(f"{pl}_b:")
    vm.done = len(vm.tags)
    for i in range(4, XB): vm.tags.append(("x", i))
    stamp_mid(k, 8)
    nxt = 0; pi = [0]
    NOROLE = k.name + "_norole"
    P1B = k.name + "_p1b"
    val = {}
    for i in range(4, 28, 2):
        val.setdefault(3 * i - (4 if i < 12 else 5), []).append((("x", i + 1), [x_d(KO[i]), x_d(KO[i + 1])]))
    for i in range(28):
        val.setdefault(h_use[h_ord[2 * i]] - (5 if land[2 * i][0][0] == "a" or land[2 * i + 1][0][0] == "a" else 4), []).append((("h", i), [h_d(h_ord[2 * i]), h_d(h_ord[2 * i + 1])]))
    val.setdefault(58, []).append(("st", st_d))
    done_val = set(("x", i) for i in range(4))
    for n in range(NT):
        if n in SS: common.stamp_mid(k, [i for i in range(1, 20) if i != 8][list(SS).index(n)])
        used = force(n)
        if n in bars:
            if n == bars[1]: vm.wait(("w", 9))
            if n == bars[-1]: vm.wait(("w", 12))
            k("s_barrier"); used += 2
        if n + RA < N4:
            rd(n + RA); used += 1
        for v in val.get(n, []): add_val(*v)
        used += run(vfill, 3)
        if "st" in done_val and stat_ops:
            fill.extend(stat_ops); stat_chk = stat_ops; stat_ops = None
        if n < N4:
            ct, kb = p4_fk(n)
            if n % 2 == 0:
                w = lg.waitstr(("w", min(n + 1, N4 - 1)))
                if w: k(w); used += 1
            r = WR + 4 * (n % NR)
            a = A4 + 16 * ct
            first = (kb == KO[0]) if ct < 3 else (kb == 0)
            if kb < 28: assert ("x", KO.index(kb) | 1) in done_val, n
            else: assert stat_ops is None and not any(o in stat_chk for o in fill if isinstance(o, str) and o != "GAP")
            c = "0" if first else f"v[{a}:{a+15}]"
            k(f"{MF} v[{a}:{a+15}], v[{r}:{r+3}], {xreg(kb)}, {c}")
            if n == 86: stamp_mid(k, 10)
            if n == 144: stamp_mid(k, 11)
            if kb == 28 and ct != 5:
                if ct == 6:
                    fill.extend(epi_ops(5, vm, gaps=1) + epi_ops(6, vm, gaps=0))
                else:
                    fill.extend(epi_ops(ct, vm, gaps=3 if ct in (0, 3) else 0))
            if n == 150:
                for d in range(8):
                    fill.append(f"v_lshlrev_b32 v{A5[0]+2*d}, 16, v{RES+d}")
                    fill.append(f"v_and_b32 v{A5[0]+2*d+1}, s61, v{RES+d}")
        else:
            slot, i = p5[n - N4]
            hi = 2 * i + (slot >> 1)
            u = (slot & 1) * 28 + kbo[i]
            assert ("h", h_pos[hi] >> 1) in done_val, n
            a = A5[slot]
            c = "0" if (i == 0 and slot != 0) else f"v[{a}:{a+15}]"
            if n - N4 == 8:
                assert not fill
            k(f"{MF} v[{a}:{a+15}], {wdreg(u)}, {land[h_pos[hi]][0]}, {c}")
            if n == N4 + 48: stamp_mid(k, 13)
            if n == N4 + 80: stamp_mid(k, 14)
            if n - N4 == min(wr_at) - 3:
                assert all(land[p][0][0] == "v" for p in range(56) if ("h", p >> 1) not in done_val)
                for s in range(1, 4):
                    k(f"""
                    s_xor_b32 s9, s3, {s}
                    s_mul_i32 s9, s9, {3*4096}
                    s_add_u32 s9, s9, {R5B + (s-1)*4096}
                    v_add_u32 v{4+s}, s9, v4
                    """)
                k(f"s_mul_i32 s9, s3, {3*4096}\ns_add_u32 s9, s9, {R5B}\nv_add_u32 v2, s9, v4")
            for s, q in wr_at.get(n - N4, []):
                k(f"ds_write_b128 v{4+s}, v[{A5[s]+4*q}:{A5[s]+4*q+3}] offset:{q*1024}"); used += 2
        if n == N4 - 1:
            stamp_mid(k, 12)
            k(f"s_cmp_eq_u32 s70, 0\ns_cbranch_scc1 {NOROLE}")
        if n >= nxt and queue and used <= C["BUD"] - 2:
            c = issue_next(n)
            if c:
                used += c
                pc = C["PACE"] if n < N4 else C["PACE5"]
                nxt = n + pc[pi[0] % len(pc)]; pi[0] += 1
        run(fill, C["BUD"] - used if not (N4 - 1 <= n < N4 + 8) else C["E56"])
    assert not fill and not vfill
    print("leftover", len(queue))
    while queue: issue_next(NT)
    stamp_mid(k, 16)
    if layer == 1:
        srd(k, 44, P_OUT, XBYTES)
        k(f"""
        v_and_b32 v7, 31, v1
        s_lshl_b32 s9, s66, 5
        v_add_u32 v7, s9, v7
        v_mul_u32_u24 v7, 896, v7
        v_lshrrev_b32 v3, 5, v1
        v_lshl_add_u32 v7, v3, 4, v7
        s_lshl_b32 s9, s67, 6
        """)
    reduce3(A5[0], 16, 2)
    PK = 8
    for d in range(8):
        k(f"v_cvt_pk_bf16_f32 v{PK+d}, v{A5[0]+2*d}, v{A5[0]+2*d+1}")
    dbg = f"s_sub_u32 s91, {BUDGET + 1}, s13\ns_add_u32 s91, s91, s92" if (common.STAMP and (not FUSE or layer == C["STL"])) else ""
    if layer == 1:
        k(f"""
        v_permlane32_swap_b32 v{PK}, v{PK+2}
        v_permlane32_swap_b32 v{PK+1}, v{PK+3}
        v_permlane32_swap_b32 v{PK+4}, v{PK+6}
        v_permlane32_swap_b32 v{PK+5}, v{PK+7}
        buffer_store_dwordx4 v[{PK}:{PK+3}], v7, s[44:47], s9 offen{C['OSC']}
        buffer_store_dwordx4 v[{PK+4}:{PK+7}], v7, s[44:47], s9 offen offset:32{C['OSC']}
        {dbg}
        s_endpgm
        """)
    else:
        k(f"s_add_u32 s9, s12, {X2F}")
        for h in range(2):
            hstore(None, f"buffer_store_dwordx4 v[{PK+4*h}:{PK+4*h+3}], v4, s[40:43], s9 offen offset:{h*1024}", None, 3)
        k(f"s_add_u32 s56, s56, {ST2 - MK0 - ST_OFF}")
        row_stats(A5[0], 16, 56, None)
        stamp_mid(k, 17)
        RB = 48 * 1024
        SV = 32
        k(f"""
        {P1B}:
        v_add_u32 v13, s59, v4
        s_waitcnt vmcnt(3)
        """)
        for i in range(14):
            k(f"ds_read_b128 a[{4*i}:{4*i+3}], v13 offset:{i*1024}")
        k(f"""
        s_mul_i32 s10, s66, {28*1024}
        s_xor_b32 s11, s66, 1
        s_mul_i32 s11, s11, {28*1024}
        s_mul_i32 s9, s3, {7*1024}
        s_add_u32 s9, s9, {X2F}
        s_add_u32 s10, s10, s9
        s_add_u32 s11, s11, s9
        s_lshl_b32 s56, s66, 12
        s_add_u32 s56, s56, {ST2}
        s_lshr_b32 s4, s66, 1
        s_and_b32 s12, s66, 1
        s_lshr_b32 s5, s67, 1
        s_mov_b32 s48, s13
        s_and_b32 s13, s67, 1
        v_and_b32 v2, 31, v1
        v_mov_b32 v{SV+12}, 0
        v_mov_b32 v{SV+13}, 0
        v_mov_b32 v{SV+14}, 0
        v_mov_b32 v{SV+15}, 0
        """)
        qkv_setup(k, KVF1, QF1 if FUSE else QF, 59 if FUSE else None)
        k("s_mov_b32 s13, s48")
        for s in range(1, 4):
            k(f"""
            s_xor_b32 s9, s3, {s}
            s_mul_i32 s9, s9, {3*4096}
            s_add_u32 s9, s9, {RB + (s-1)*4096}
            v_add_u32 v{4+s}, s9, v4
            """)
        k(f"s_mul_i32 s9, s3, {3*4096}\ns_add_u32 s9, s9, {RB}\nv_add_u32 v12, s9, v4")
        if C["DBGP"] & 1: stamp_mid(k, 3)
        if C["X2ACK"]: k(f"s_waitcnt vmcnt({C['X2ACK'] - 1})")
        if C["DBGP"] & 1: stamp_mid(k, 4)
        ko2 = [0, 2, 4, 6, 1, 3, 5]

        def x2_d(b, kbl):
            i = 2 * kbl + b
            r = 176 + 4 * i if i < 10 else 128 + 4 * (i - 10)
            return dict(reg=f"v[{r}:{r+3}]", srd=40, base=10 + b, off=kbl * 1024)
        pl = k.newlabel("pr")
        d8 = [x2_d(1, kbl) for kbl in range(7)]
        d6 = [x2_d(0, kbl) for kbl in range(7)]
        ds4 = [dict(reg=f"v[{SV+4*q}:{SV+4*q+3}]", srd=40, base=56, off=q * 1024, lo=(q == 3)) for q in range(4)]
        spin(pl, d8, pl + "_b", True, d6 + ds4)
        k(f"{pl}_b:\ns_waitcnt lgkmcnt(0)")
        stamp_mid(k, 18)
        ad = lambda d, x, y: [f"v_add_f32 v{d}, v{x}, v{y}", f"v_add_f32 v{d+1}, v{x+1}, v{y+1}"]
        so = []
        for q in range(4): so += ad(SV + 4 * q, SV + 4 * q, SV + 4 * q + 2)
        so += ad(SV, SV, SV + 4) + ad(SV + 8, SV + 8, SV + 12) + ad(30, SV, SV + 8)
        so += [f"v_mov_b32 v{SV}, v30", f"v_mov_b32 v{SV+1}, v31", "v_lshrrev_b32 v3, 5, v1", "GAP",
               f"v_permlane32_swap_b32 v30, v{SV}", f"v_permlane32_swap_b32 v31, v{SV+1}"] + ad(30, 30, SV)
        so += [f"v_mul_f32 v30, {f2h(1.0/448)}, v30", f"v_mul_f32 v31, {f2h(1.0/448)}, v31", "v_fma_f32 v31, -v30, v30, v31",
               "v_max_f32 v31, 0, v31", f"v_add_f32 v31, {f2h(1e-5)}, v31", "v_rsq_f32 v31, v31"]
        seq = []
        for s in (3, 2, 1, 0):
            seq += [(s, kbl) for kbl in range(7)]
        qwr = {7 * (4 - s) + [1, 3, 5, 6][q]: [(s, q)] for s in (1, 2, 3) for q in range(4)}
        ck = chk_ops([d["reg"] for d in d6])
        ck2 = chk_ops([d["reg"] for d in ds4])
        for idx, (slot, kbl) in enumerate(seq):
            if idx == 10: k("s_waitcnt vmcnt(4)")
            if idx in (10, 11):
                for _ in range(4):
                    if ck: k(ck.pop(0))
            if idx == 14: chk_branch(d6)
            if idx == 15:
                k("s_waitcnt vmcnt(0)")
                for o in ck2: k(o)
            if idx == 17: chk_branch(ds4)
            u = (slot & 1) * 7 + kbl
            a = A5[slot]
            c = "0" if kbl == 0 else f"v[{a}:{a+15}]"
            k(f"{MF} v[{a}:{a+15}], a[{4*u}:{4*u+3}], {x2_d(slot >> 1, kbl)['reg']}, {c}")
            if 17 <= idx: run(so, 4)
            for s, q in qwr.get(idx, []):
                k(f"ds_write_b128 v{4+s}, v[{A5[s]+4*q}:{A5[s]+4*q+3}] offset:{q*1024}")
        run(so, 99)
        stamp_mid(k, 15)
        reduce3(A5[0], 176 if not FUSE else [176, 192, 128], 12)
        qkv_epilogue(k, A5[0], CS, '', SC if FUSE else C['QSC'], C['KVSC'], FUSE)
        k(dbg)
        k("s_branch mm_l1" if FUSE else "s_endpgm")
    if not UNI:
        k(f"{NOR1}:")
        if layer == 0: mark_next(0, C["MK1"], C["MKB1"])
        k(f"s_branch {XJOIN}")
    k(f"{NOROLE}:\ns_nop 15")
    V3 = VM(k)
    for f in epi_ops(5, V3, gaps=0, pk=True) + epi_ops(6, V3, gaps=0, pk=True):
        if callable(f): f()
        else: k(f)
    if layer == 0:
        k("s_waitcnt vmcnt(0)")
        for f in p1b_prefetch(V3): f()
        cs_prefetch(V3)
        m1 = 0 if UNI else C["MK1"]
        mark_next(m1, 32 - m1, C["MKB"])
        k(f"s_waitcnt vmcnt(0)\ns_barrier\ns_branch {P1B}")
    else:
        k("s_endpgm")
    for lb, ds in stubs:
        if isinstance(ds, int):
            k(f"{lb}:\n{flag_ld} ; retry\ns_sub_i32 s13, s13, 1\ns_waitcnt vmcnt(0) ; retry")
            for o in flag_ops.split("\n"): k(o.strip() + " ; retry")
            k(f"s_cmp_lt_i32 s13, 0\ns_cbranch_scc1 {lb}_b ; retry\ns_bitcmp1_b32 s28, {ds}\ns_cbranch_scc0 {lb} ; retry\ns_branch {lb}_b ; retry")
            continue
        spin(lb, ds, lb + "_b")
        k(f"s_branch {lb}_b ; retry")
    KR = 64
    S = 80
    k(f"""
    {FB}:
    v_mov_b32 v14, 0xff800000
    s_mov_b32 s9, {kvf}
    {FB}_l1:
    buffer_load_dwordx4 v[{KR}:{KR+3}], v4, s[40:43], s9 offen
    buffer_load_dwordx4 v[{KR+4}:{KR+7}], v4, s[40:43], s9 offen offset:1024
    s_waitcnt vmcnt(0)
    {MF} v[{S}:{S+15}], v[{KR}:{KR+3}], v[{Q}:{Q+3}], 0
    {MF} v[{S}:{S+15}], v[{KR+4}:{KR+7}], v[{Q+4}:{Q+7}], v[{S}:{S+15}]
    """)
    for r in range(0, 16, 2):
        k(f"v_max3_f32 v14, v{S+r}, v{S+r+1}, v14")
    k(f"""
    s_add_u32 s9, s9, 4096
    s_cmp_lt_u32 s9, {kvf + 64*4096}
    s_cbranch_scc1 {FB}_l1
    v_mov_b32 v8, v14
    s_nop 1
    v_permlane32_swap_b32 v14, v8
    v_max_f32 v14, v14, v8
    """)
    for r in range(16):
        k(f"v_mov_b32 v{O+r}, 0")
    k(f"""
    s_mov_b32 s9, {kvf}
    {FB}_l2:
    buffer_load_dwordx4 v[{KR}:{KR+3}], v4, s[40:43], s9 offen
    buffer_load_dwordx4 v[{KR+4}:{KR+7}], v4, s[40:43], s9 offen offset:1024
    buffer_load_dwordx4 v[{KR+8}:{KR+11}], v4, s[40:43], s9 offen offset:2048
    buffer_load_dwordx4 v[{KR+12}:{KR+15}], v4, s[40:43], s9 offen offset:3072
    s_waitcnt vmcnt(0)
    {MF} v[{S}:{S+15}], v[{KR}:{KR+3}], v[{Q}:{Q+3}], 0
    {MF} v[{S}:{S+15}], v[{KR+4}:{KR+7}], v[{Q+4}:{Q+7}], v[{S}:{S+15}]
    """)
    for r in range(16):
        k(f"v_sub_f32 v{S+r}, v{S+r}, v14")
    for r in range(16):
        k(f"v_exp_f32 v{S+r}, v{S+r}")
    for d in range(8):
        k(f"v_cvt_pk_bf16_f32 v{P+d}, v{S+2*d}, v{S+2*d+1}")
    k(f"""
    {MF} v[{O}:{O+15}], v[{KR+8}:{KR+11}], v[{P}:{P+3}], v[{O}:{O+15}]
    {MF} v[{O}:{O+15}], v[{KR+12}:{KR+15}], v[{P+4}:{P+7}], v[{O}:{O+15}]
    s_add_u32 s9, s9, 4096
    s_cmp_lt_u32 s9, {kvf + 64*4096}
    s_nop 7
    s_cbranch_scc1 {FB}_l2
    s_nop 7
    v_mov_b32 v9, v{O+12}
    v_mov_b32 v8, v{O+12}
    s_nop 1
    v_permlane32_swap_b32 v9, v8
    v_rcp_f32 v9, v8
    s_nop 1
    s_branch {NORM}
    """)
    if not (FUSE and layer == 0): epilogue(k)
    return k, dict(grid=256, block=256, lds=LDS)
```
